```python
import torch

def _softmax(x, axis=-1):
    return torch.softmax(x, dim=axis)

def _gelu(x):
    return torch.nn.functional.gelu(x, approximate='tanh')

def _silu(x):
    return torch.nn.functional.silu(x)

def _sigmoid(x):
    return torch.sigmoid(x)

def _layernorm(x, axis=-1, eps=1e-05):
    m = x.mean(dim=axis, keepdim=True)
    v = x.var(dim=axis, keepdim=True, unbiased=False)
    return (x - m) / torch.sqrt(v + eps)

def _scatter_add(tgt, idx, src, axis=0):
    return tgt.clone().index_add_(axis, idx, src)

def _segment_sum(src, seg, n):
    out = torch.zeros((n,) + src.shape[1:], dtype=src.dtype)
    return out.index_add_(0, seg, src)

def _pad(x, pw):
    flat = tuple((v for pair in reversed(pw) for v in pair))
    return torch.nn.functional.pad(x, flat)
kernel_name = 'gated_mix__sliding_block__mixer_gmlp__prompt'

def setup_inputs():

    _w = lambda a: (lambda t: t.to(torch.bfloat16) if t.is_floating_point() else t)(torch.as_tensor(a))

    def _A_setup():
        B, S, D = (1, 2048, 512)
        return {'x': _w((lambda *s: torch.randn(*s, dtype=torch.bfloat16) * 0.05)(B, S, D)), 'wqkv': _w((lambda *s: torch.randn(*s, dtype=torch.bfloat16) * 1.6)(D, 3 * D)), 'wo': _w((lambda *s: torch.randn(*s, dtype=torch.bfloat16) * 0.05)(D, D))}
    _A_in = _A_setup()

    def _B_setup():
        B, S, D, F = (1, 2048, 512, 1792)
        Fh = F // 2
        return {'x': _w((lambda *s: torch.randn(*s, dtype=torch.bfloat16) * 0.05)(B, S, D)), 'w_in': _w((lambda *s: torch.randn(*s, dtype=torch.bfloat16) * 0.8)(D, 2 * Fh)), 'w_sp': _w(0.01 * (lambda *s: torch.randn(*s, dtype=torch.bfloat16) * 0.8)(S, S)), 'b_sp': _w(1.0 + 0.01 * (lambda *s: torch.randn(*s, dtype=torch.bfloat16) * 0.1)(S)), 'w_out': _w((lambda *s: torch.randn(*s, dtype=torch.bfloat16) * 0.1)(Fh, D))}
    _B_in = _B_setup()
    return {'A_x': _A_in['x'], 'A_wqkv': _A_in['wqkv'], 'A_wo': _A_in['wo'], 'B_x': _B_in['x'], 'B_w_in': _B_in['w_in'], 'B_w_sp': _B_in['w_sp'], 'B_b_sp': _B_in['b_sp'], 'B_w_out': _B_in['w_out'], 'gate_w': _w((lambda *s: torch.randn(*s, dtype=torch.bfloat16) * 0.05)(512) * 16.0)}

def reference(A_x, A_wqkv, A_wo, B_x, B_w_in, B_w_sp, B_b_sp, B_w_out, gate_w):

    def _A_ref(x, wqkv, wo):
        B, S, D = x.shape
        H = 32
        Dh = D // H
        W = 256
        qkv = (lambda x, *d: x.permute(*d))((x @ wqkv).reshape(B, S, 3, H, Dh), 2, 0, 3, 1, 4)
        q, k, v = (qkv[0], qkv[1], qkv[2])
        scores = torch.einsum('bhqd,bhkd->bhqk', q, k) * Dh ** (-0.5)
        idx = torch.arange(S)
        mask = (idx[:, None] - idx[None, :] >= 0) & (idx[:, None] - idx[None, :] < W)
        scores = torch.where(mask[None, None], scores, -1000000000.0)
        p = _softmax(scores, axis=-1)
        o = torch.einsum('bhqk,bhkd->bhqd', p, v)
        return (lambda x, *d: x.permute(*d))(o, 0, 2, 1, 3).reshape(B, S, D) @ wo

    def _B_ref(x, w_in, w_sp, b_sp, w_out):
        B, S, D = x.shape
        F = w_in.shape[-1]
        Fh = F // 2
        z = _gelu(torch.einsum('bsd,df->bsf', x, w_in))
        z1 = z[..., :Fh].clone()
        z2 = _layernorm(z[..., Fh:], axis=-1)
        g = torch.einsum('ts,bsf->btf', w_sp, z2) + b_sp[None, :, None]
        return torch.einsum('bsf,fd->bsd', z1 * g, w_out)
    x = A_x
    g = _sigmoid((x * gate_w).sum(-1, keepdims=True))
    a = _A_ref(x, A_wqkv, A_wo)
    b = _B_ref(x, B_w_in, B_w_sp, B_b_sp, B_w_out)
    return g * a + (1 - g) * b
```

```python
import re

TRANS = ('v_exp_f32', 'v_log_f32', 'v_rcp_f32', 'v_rsq_f32', 'v_sqrt_f32', 'v_sin_f32', 'v_cos_f32', 'v_rcp_iflag_f32')
REG = re.compile(r'(?<![\w.])(-|\|)?([vsa])(\d+|\[(\d+):(\d+)\])(?![\w])')

def regs_of(tok):
    out = set()
    tok = tok.strip()
    if tok in ('vcc', 'vcc_lo', 'vcc_hi'):
        return {('s', 'vcc')}
    if tok in ('exec', 'exec_lo', 'exec_hi'):
        return {('s', 'exec')}
    if tok == 'm0':
        return {('s', 'm0')}
    m = re.fullmatch(r'-?\|?([vsa])(\d+)\|?', tok)
    if m:
        return {(m.group(1), int(m.group(2)))}
    m = re.fullmatch(r'-?\|?([vsa])\[(\d+):(\d+)\]\|?', tok)
    if m:
        return {(m.group(1), i) for i in range(int(m.group(2)), int(m.group(3)) + 1)}
    return out

class Ins:
    __slots__ = ('text', 'op', 'ops', 'cls', 'defs', 'uses', 'passes', 'cops', 'abops', 'dpp', 'wide_store', 'isdma', 'states')
    def __init__(self, text):
        self.text = text
        t = text.split(';')[0].strip()
        self.states = 1
        self.passes = 0; self.cops = set(); self.abops = set(); self.dpp = False; self.wide_store = set(); self.isdma = False
        self.defs = set(); self.uses = set()
        if not t or t.endswith(':') or t.startswith('.'):
            self.op = None; self.cls = 'none'; self.ops = []; self.states = 0
            if t.endswith(':'): self.cls = 'label'
            return
        p = t.split(None, 1)
        op = p[0]; rest = p[1] if len(p) > 1 else ''
        base = re.sub(r'_(e32|e64|dpp|sdwa)$', '', op)
        self.op = base
        toks = []; cur = ''; depth = 0
        for ch in rest:
            if ch == '[': depth += 1
            if ch == ']': depth -= 1
            if ch == ',' and depth == 0:
                toks.append(cur.strip()); cur = ''
            else:
                cur += ch
        if cur.strip(): toks.append(cur.strip())
        mods = ''
        if toks:
            last = toks[-1].split()
            if len(last) > 1:
                toks[-1] = last[0]; mods = ' '.join(last[1:])
        self.ops = toks
        R = [regs_of(x) for x in toks]
        allr = set().union(*R) if R else set()
        if base.startswith('v_mfma'):
            self.cls = 'mfma'
            self.passes = 8 if '32x32' in base else 4
            self.defs = R[0]; self.abops = R[1] | R[2]; self.cops = R[3]
            self.uses = self.abops | self.cops
        elif base.startswith('v_'):
            self.cls = 'trans' if base in TRANS else 'valu'
            if 'row_' in mods or 'quad_perm' in mods or op.endswith('_dpp') or 'wave_' in mods: self.dpp = True
            if base.startswith('v_cmp'):
                self.defs = R[0]; self.uses = set().union(*R[1:])
                if base.startswith('v_cmpx'): self.defs = self.defs | {('s', 'exec')}
            elif base.startswith('v_permlane') and 'swap' in base:
                self.defs = R[0] | R[1]; self.uses = R[0] | R[1]
            elif base in ('v_add_co_u32', 'v_sub_co_u32', 'v_subrev_co_u32'):
                self.defs = R[0] | R[1]; self.uses = set().union(*R[2:])
            elif base in ('v_addc_co_u32', 'v_subb_co_u32'):
                self.defs = R[0] | R[1]; self.uses = set().union(*R[2:])
            elif base in ('v_nop',):
                pass
            else:
                self.defs = R[0]; self.uses = set().union(*R[1:]) if len(R) > 1 else set()
                if base in ('v_fmac_f32', 'v_dot2c_f32_bf16', 'v_pk_fmac_f16', 'v_fmaak_f32_', 'v_writelane_b32') or self.dpp:
                    self.uses = self.uses | R[0]
                if base == 'v_cndmask_b32' and len(toks) == 3: self.uses = self.uses | {('s', 'vcc')}
        elif base.startswith('ds_'):
            self.cls = 'ds'
            if base.startswith('ds_read') or base in ('ds_bpermute_b32', 'ds_permute_b32', 'ds_swizzle_b32') or '_rtn' in base:
                self.defs = R[0]; self.uses = set().union(*R[1:])
            else:
                self.uses = allr
        elif base.startswith('buffer_') or base.startswith('global_') or base.startswith('flat_'):
            self.cls = 'vmem'
            isdma = (' lds' in ' ' + mods + ' ' or mods.endswith('lds') or 'load_lds' in base)
            self.isdma = isdma
            if base in ('buffer_wbl2', 'buffer_inv'):
                pass
            elif 'load' in base and not isdma:
                self.defs = R[0]; self.uses = set().union(*R[1:])
            elif 'atomic' in base and ('sc0' in mods.split()):
                self.defs = R[0]; self.uses = allr
            else:
                self.uses = allr
                if 'store' in base and ('x4' in base or 'x3' in base):
                    self.wide_store = R[0] if base.startswith('buffer_') else R[1]
            if isdma: self.uses = self.uses | {('s', 'm0')}
        elif base.startswith('s_'):
            self.cls = 'salu'
            if base == 's_nop':
                self.cls = 'nop'; self.states = int(toks[0], 0) + 1
            elif base in ('s_waitcnt', 's_barrier', 's_setprio', 's_endpgm', 's_sleep', 's_branch') or base.startswith('s_cbranch'):
                self.cls = 'ctl'
            elif base.startswith('s_cmp') or base.startswith('s_bitcmp'):
                self.uses = allr
            elif base.startswith('s_load') or base in ('s_memtime', 's_memrealtime') or base.startswith('s_buffer_load'):
                self.cls = 'smem'; self.defs = R[0]; self.uses = set().union(*R[1:]) if len(R) > 1 else set()
            else:
                self.defs = R[0]; self.uses = set().union(*R[1:]) if len(R) > 1 else set()
                if 'saveexec' in base: self.defs = self.defs | {('s', 'exec')}
        else:
            raise ValueError('unknown instr: ' + text)

def vonly(s): return {r for r in s if r[0] in 'va'}
def sonly(s): return {r for r in s if r[0] == 's'}

def need(prev, cur):
    n = 0
    pv = prev.cls in ('valu', 'trans')
    cv = cur.cls in ('valu', 'trans')
    if pv:
        d = vonly(prev.defs)
        if cur.cls == 'mfma' and d & cur.uses: n = max(n, 2)
        if cv and cur.op.startswith('v_permlane') and d & cur.uses: n = max(n, 2)
        if cv and cur.dpp and d & cur.uses: n = max(n, 2)
        if cv and cur.op in ('v_readfirstlane_b32', 'v_readlane_b32') and d & cur.uses: n = max(n, 1)
        if prev.cls == 'trans' and cv and cur.cls != 'trans' and d & cur.uses: n = max(n, 1)
        if prev.cls == 'trans' and cur.cls == 'trans' and d & cur.uses: n = max(n, 1)
        if prev.cls == 'trans' and cur.cls in ('vmem', 'ds') and d & cur.uses: n = max(n, 1)
        sd = sonly(prev.defs)
        if sd:
            if cv and sd & cur.uses: n = max(n, 2)
            if cur.cls == 'vmem' and sd & cur.uses: n = max(n, 5)
            if cur.cls in ('salu', 'smem') and sd & cur.uses: n = max(n, 1)
            if ('s', 'exec') in sd and cur.cls == 'mfma': n = max(n, 4)
            if ('s', 'exec') in sd and cur.dpp: n = max(n, 5)
    if prev.cls == 'mfma':
        d = prev.defs
        big = prev.passes == 8
        if cur.cls == 'mfma':
            if d & cur.abops: n = max(n, 12 if big else 8)
            if d & cur.cops:
                if not (cur.cops == d and cur.passes == prev.passes): n = max(n, 10 if big else 6)
            if (d & cur.defs) and not (d & cur.cops): n = max(n, 10 if big else 6)
        elif cv or cur.cls in ('vmem', 'ds'):
            if d & (cur.uses | cur.defs): n = max(n, 12 if big else 8)
        if cv and (prev.cops & cur.defs): n = max(n, 7 if big else 3)
    if prev.cls == 'salu' and ('s', 'm0') in prev.defs and cur.isdma: n = max(n, 1)
    if prev.wide_store:
        if cv and prev.wide_store & cur.defs: n = max(n, 2)
        elif prev.wide_store & cur.defs: n = max(n, 1)
    return n

class Asm:
    def __init__(self):
        self.items = []
        self.uid = 0
    def __call__(self, text):
        for ln in text.split('\n'):
            ln = ln.strip()
            if ln: self.items.append(Ins(ln))
    def raw(self, text):
        i = Ins(''); i.text = text; self.items.append(i)
    def label(self, name): self('%s:' % name)
    def newlabel(self, p='L'):
        self.uid += 1; return '%s_%d' % (p, self.uid)

    def fix_hazards(self, window=24, verbose=False):
        items = self.items
        labels = {}
        out = []
        ninserted = 0
        for ins in items:
            if ins.states == 0:
                out.append(ins); continue
            req = 0; dist = 0
            for prev in reversed(out):
                if prev.states == 0: continue
                if dist >= window: break
                r = need(prev, ins)
                if r - dist > req: req = r - dist
                dist += prev.states
            if req > 0:
                out.append(Ins('s_nop %d' % (req - 1))); ninserted += 1
                if verbose: print('nop %d before %s' % (req, ins.text))
            out.append(ins)
        self.items = out
        changed = True
        while changed:
            changed = False
            items = self.items
            lab = {i.text.strip()[:-1]: k for k, i in enumerate(items) if i.cls == 'label'}
            for k, ins in enumerate(items):
                if ins.op and (ins.op == 's_branch' or ins.op.startswith('s_cbranch')):
                    tgt = ins.ops[0]
                    if tgt not in lab: continue
                    tail = [x for x in items[max(0, k - 3 * window):k + 1] if x.states][-window:]
                    head = [x for x in items[lab[tgt]:lab[tgt] + 3 * window] if x.states][:window]
                    dh = 0
                    for hi, h in enumerate(head):
                        dist = dh
                        for prev in reversed(tail):
                            r = need(prev, h)
                            if r - dist > 0:
                                pos = lab[tgt] + 1
                                items.insert(pos, Ins('s_nop %d' % (r - dist - 1)))
                                ninserted += 1; changed = True
                                if verbose: print('branch nop %d: %s -> %s' % (r - dist, prev.text, h.text))
                                break
                            dist += prev.states
                            if dist >= window: break
                        if changed: break
                        dh += h.states
                    if changed: break
        return ninserted
    def text(self):
        o = []
        for i in self.items:
            if i.cls == 'label' or i.text.startswith('.') or i.text.startswith(';'): o.append(i.text)
            else: o.append('    ' + i.text)
        return '\n'.join(o) + '\n'

def interleave(main, fill, start=0, per=None):
    n = len(main) - start
    out = list(main[:start])
    if n <= 0: return out + list(fill)
    k = 0
    for i in range(n):
        out.append(main[start + i])
        tgt = ((i + 1) * len(fill) + n - 1) // n if per is None else min(len(fill), (i + 1) * per)
        while k < tgt:
            out.append(fill[k]); k += 1
    out += fill[k:]
    return out
```

```python
S = 2048; D = 512
WS_QKV  = 0x0000000
WS_H1   = 0x0600000
WS_Z2N  = 0x0A00000
WS_A3   = 0x0E00000
WS_STAT = 0x1400000
WS_G    = 0x1480000
WS_END  = 0x1500000
KA_X, KA_WQKV, KA_WO, KA_BX, KA_WIN, KA_WSP, KA_BSP, KA_WOUT, KA_GATE, KA_OUT, KA_DBG, KA_WS = [8*i for i in range(12)]
import math
LOG2E = 1.4426950408889634
def f2u(x):
    import struct
    return struct.unpack('<I', struct.pack('<f', x))[0]
GELU_C0 = -2.0*math.sqrt(2.0/math.pi)*LOG2E
GELU_C1 = GELU_C0*0.044715
QSCALE = 0.25*LOG2E

def kernel_header(name):
    return f""".globl {name}
.p2align 8
.type {name},@function
{name}:
"""
def kernel_desc(name, vgpr, agpr=0, sgpr=102):
    acc = (vgpr + 3)//4*4
    return f""".amdhsa_kernel {name}
  .amdhsa_next_free_vgpr {acc + agpr}
  .amdhsa_next_free_sgpr {sgpr}
  .amdhsa_accum_offset {acc}
  .amdhsa_group_segment_fixed_size 0
  .amdhsa_kernarg_size 96
  .amdhsa_user_sgpr_count 2
  .amdhsa_user_sgpr_kernarg_segment_ptr 1
  .amdhsa_system_sgpr_workgroup_id_x 1
  .amdhsa_float_denorm_mode_32 3
.end_amdhsa_kernel
"""
def srd(a, s, ptr, nbytes, add=None):
    if add is None:
        a(f"s_mov_b32 s{s}, s{ptr}")
        a(f"s_mov_b32 s{s+1}, s{ptr+1}")
    else:
        a(f"s_add_u32 s{s}, s{ptr}, {add}")
        a(f"s_addc_u32 s{s+1}, s{ptr+1}, 0")
    a(f"s_mov_b32 s{s+2}, {nbytes}")
    a(f"s_mov_b32 s{s+3}, 0x20000")
```

```python
from asmlib import *
from common import *

NAME = 'gm_k1_kernel'
SLOT = 49152
LDS_BYTES = 3*SLOT
GRID = 256
BLOCK = 256
VGPRS = 256
HUGE = 0x7ff00000

ACC = 16
X = [128, 144]
W = [160, 188]
XA = [216, 217]
WA = [218+i for i in range(7)]
VX = [225+i for i in range(4)]
VW = [229+i for i in range(4)]
def acc(n, tt): return ACC + (n*4+tt)*4
def r4(b): return f"v[{b}:{b+3}]"
def r2(b): return f"v[{b}:{b+1}]"

def gelu_pairs(a, regs, t0, cpair0, cpair1, one):
    G = 4
    for k in range(0, len(regs), G):
        grp = regs[k:k+G]
        T = [t0 + 4*i for i in range(len(grp))]
        for x, t in zip(grp, T): a(f"v_pk_mul_f32 {r2(t)}, {r2(x)}, {r2(x)}")
        for x, t in zip(grp, T): a(f"v_pk_fma_f32 {r2(t)}, {r2(t)}, {r2(cpair1)}, {r2(cpair0)}")
        for x, t in zip(grp, T): a(f"v_pk_mul_f32 {r2(t)}, {r2(t)}, {r2(x)}")
        for x, t in zip(grp, T):
            a(f"v_exp_f32 v{t}, v{t}"); a(f"v_exp_f32 v{t+1}, v{t+1}")
        for x, t in zip(grp, T): a(f"v_pk_add_f32 {r2(t)}, {r2(t)}, {r2(one)}")
        for x, t in zip(grp, T):
            a(f"v_rcp_f32 v{t}, v{t}"); a(f"v_rcp_f32 v{t+1}, v{t+1}")
        for x, t in zip(grp, T): a(f"v_pk_mul_f32 {r2(x)}, {r2(x)}, {r2(t)}")

def build(cfg):
    a = Asm()
    L = lambda s: f"K1_{s}"
    a(f"s_cmp_ge_u32 s2, 256")
    a(f"s_cbranch_scc1 {L('end')}")
    a(f"s_load_dwordx2 s[4:5], s[0:1], {KA_X}")
    a(f"s_load_dwordx2 s[6:7], s[0:1], {KA_WQKV}")
    a(f"s_load_dwordx2 s[8:9], s[0:1], {KA_WIN}")
    a(f"s_load_dwordx2 s[10:11], s[0:1], {KA_WS}")
    a(f"s_load_dwordx2 s[12:13], s[0:1], {KA_DBG}")
    a(f"s_load_dwordx2 s[14:15], s[0:1], {KA_GATE}")
    a("v_lshrrev_b32 v2, 6, v0")
    a("v_and_b32 v1, 63, v0")
    a("v_readfirstlane_b32 s20, v2")
    a("s_and_b32 s16, s2, 7")
    a("s_lshr_b32 s17, s2, 3")
    a("s_cmp_ge_u32 s17, 30")
    a(f"s_cbranch_scc1 {L('spare')}")
    a("s_cmp_ge_u32 s17, 15")
    a("s_cselect_b32 s18, 1, 0")
    a("s_cselect_b32 s19, 15, 0")
    a("s_sub_u32 s19, s17, s19")
    a("s_lshl_b32 s16, s16, 1")
    a("s_add_u32 s18, s18, s16")
    a("s_lshr_b32 s21, s20, 1")
    a("s_and_b32 s22, s20, 1")
    a("s_mul_i32 s43, s19, 3")
    a("s_lshr_b32 s43, s43, 1")
    a("s_and_b32 s44, s20, 1")
    a("s_add_u32 s43, s43, s44")
    a("s_lshl_b32 s43, s43, 7")
    a("s_lshl_b32 s44, s19, 7")
    a("s_cmp_eq_u32 s20, 0")
    a("s_cselect_b32 s45, 1792, 0")
    a("s_add_u32 s44, s44, s45")
    a("s_cmp_lt_u32 s20, 2")
    a("s_cselect_b32 s43, s44, s43")
    a("s_cselect_b32 s46, 1, 0")
    a("s_min_u32 s44, s20, 2")
    a("s_lshl_b32 s44, s44, 7")
    a("s_add_u32 s44, s44, 2688")
    a("s_cmp_eq_u32 s19, 14")
    a("s_cselect_b32 s43, s44, s43")
    a("s_cselect_b32 s46, 0, s46")
    a("s_cmp_eq_u32 s46, 1")
    a("s_movk_i32 s36, 3072")
    a("s_cselect_b32 s36, 3584, s36")
    a("s_waitcnt lgkmcnt(0)")
    a("s_cselect_b32 s28, s8, s6")
    a("s_cselect_b32 s29, s9, s7")
    a("s_add_u32 s28, s28, s43")
    a("s_addc_u32 s29, s29, 0")
    a("s_lshl_b32 s30, s36, 9")
    a("s_sub_u32 s30, s30, s43")
    a("s_mov_b32 s31, 0x20000")
    srd(a, 24, 4, 2048*1024)
    srd(a, 32, 10, WS_END)
    a("v_lshrrev_b32 v2, 3, v1")
    a("v_and_b32 v3, 7, v1")
    a("v_lshrrev_b32 v4, 1, v2")
    a("s_lshl_b32 s43, s18, 7")
    a("s_lshl_b32 s44, s20, 5")
    a("s_add_u32 s43, s43, s44")
    a("v_add_u32 v5, s43, v2")
    a("v_lshlrev_b32 v5, 10, v5")
    a("v_xor_b32 v6, v3, v4")
    a("v_xor_b32 v7, 4, v6")
    a("v_lshl_add_u32 v6, v6, 4, v5")
    a("v_lshl_add_u32 v7, v7, 4, v5")
    a(f"v_mov_b32 v{VX[0]}, v6")
    a(f"v_add_u32 v{VX[1]}, 7168, v7")
    a(f"v_add_u32 v{VX[2]}, {2*7168}, v6")
    a(f"v_add_u32 v{VX[3]}, {3*7168}, v7")
    a("v_and_b32 v5, 3, v2")
    a("v_lshrrev_b32 v6, 2, v2")
    a("v_lshl_add_u32 v5, v6, 3, v5")
    a("v_mul_lo_u32 v5, v5, s36")
    a("v_lshlrev_b32 v6, 1, v4")
    a("v_xor_b32 v6, v3, v6")
    a("v_lshl_add_u32 v5, v6, 4, v5")
    for b in range(4):
        h, s = b >> 1, b & 1
        a(f"s_mul_i32 s43, s36, {16*h+4*s}")
        a(f"s_sub_u32 s43, s43, {b*1024}")
        a(f"v_add_u32 v{VW[b]}, s43, v5")
    a("s_lshl_b32 s38, s36, 5")
    a("s_lshl_b32 s47, s20, 12")
    def dma_w(slot_sgpr_or_const, soff0, soff1):
        out = []
        for ks in range(2):
            if isinstance(slot_sgpr_or_const, int):
                out.append(f"s_add_u32 m0, s47, {slot_sgpr_or_const + 16384 + ks*16384}")
            else:
                out.append(f"s_add_u32 m0, {slot_sgpr_or_const}, {16384 + ks*16384}")
            so = soff0 if ks == 0 else soff1
            for b in range(4):
                out.append(f"buffer_load_dwordx4 v{VW[b]}, s[28:31], {so} offen offset:{b*1024} lds")
        return out
    def dma_x(slot_sgpr_or_const, so):
        out = []
        if isinstance(slot_sgpr_or_const, int):
            out.append(f"s_add_u32 m0, s47, {slot_sgpr_or_const}")
        else:
            out.append(f"s_mov_b32 m0, {slot_sgpr_or_const}")
        for i in range(4):
            out.append(f"buffer_load_dwordx4 v{VX[i]}, s[24:27], {so} offen offset:{i*1024} lds")
        return out
    for st in range(3):
        a(f"s_mul_i32 s43, s36, {64*st}")
        a(f"s_add_u32 s44, s43, s38")
        for t in dma_w(st*SLOT, 's43', 's44'): a(t)
        if st < 2:
            a(f"s_mov_b32 s43, {128*st}")
            for t in dma_x(st*SLOT, 's43'): a(t)
    a("v_and_b32 v2, 15, v1")
    a("v_lshrrev_b32 v3, 4, v1")
    a("v_lshrrev_b32 v4, 1, v2")
    a("v_xor_b32 v4, v4, v3")
    a("s_lshl_b32 s43, s21, 6")
    a("v_add_u32 v5, s43, v2")
    a("v_lshlrev_b32 v5, 7, v5")
    a(f"v_lshl_add_u32 v{XA[0]}, v4, 4, v5")
    a(f"v_xor_b32 v{XA[1]}, 64, v{XA[0]}")
    a("v_lshrrev_b32 v4, 2, v1")
    a("v_and_b32 v4, 7, v4")
    a("v_lshrrev_b32 v5, 5, v1")
    a("v_lshlrev_b32 v5, 11, v5")
    a("v_lshl_add_u32 v5, v4, 7, v5")
    a("v_lshrrev_b32 v4, 1, v4")
    a("v_lshl_add_u32 v5, v4, 5, v5")
    a("v_and_b32 v4, 3, v1")
    a("v_lshl_add_u32 v5, v4, 3, v5")
    a("s_and_b32 s48, s19, 1")
    a("s_lshl_b32 s48, s48, 1")
    a("s_mul_i32 s49, s22, 3")
    a("s_add_u32 s48, s48, s49")
    a("s_lshl_b32 s49, s22, 1")
    a("s_mul_i32 s50, s22, 6")
    for n in range(7):
        if n < 2: a(f"s_add_u32 s43, s49, {n}")
        elif n < 4: a(f"s_add_u32 s43, s49, {4+n-2}")
        else: a(f"s_add_u32 s43, s48, {8+n-4}")
        a(f"s_add_u32 s44, s50, {min(n,5)}")
        a("s_cmp_eq_u32 s19, 14")
        a("s_cselect_b32 s43, s44, s43")
        a("s_and_b32 s44, s43, 3")
        a("s_lshl_b32 s44, s44, 5")
        a("s_lshr_b32 s43, s43, 2")
        a("s_lshl_b32 s43, s43, 12")
        a("s_add_u32 s43, s43, 16384")
        a(f"v_xor_b32 v{WA[n]}, s44, v5")
        a(f"v_add_u32 v{WA[n]}, s43, v{WA[n]}")
    for r in range(ACC, ACC+112): a(f"v_mov_b32 v{r}, 0")
    def reads(ks, buf):
        out = []
        for tt in range(4):
            out.append(f"ds_read_b128 {r4(X[buf]+4*tt)}, v{XA[ks]} offset:{tt*2048}")
        for n in range(7):
            for s in range(2):
                out.append(f"ds_read_b64_tr_b16 {r2(W[buf]+4*n+2*s)}, v{WA[n]} offset:{ks*16384+s*1024}")
        return out
    def mfmas(buf):
        return [f"v_mfma_f32_16x16x32_bf16 {r4(acc(n,tt))}, {r4(W[buf]+4*n)}, {r4(X[buf]+4*tt)}, {r4(acc(n,tt))}" for n in range(7) for tt in range(4)]
    a("s_mov_b32 s40, 0")
    a("s_mov_b32 s41, s47")
    a(f"s_add_u32 s42, s47, {2*SLOT}")
    a("s_mul_i32 s37, s36, 192")
    a("s_mov_b32 s39, 256")
    a("s_waitcnt vmcnt(20)")
    a("s_barrier")
    for t in reads(0, 0): a(t)
    a("s_waitcnt lgkmcnt(0)")
    a.label(L('loop'))
    fill = []
    rd = reads(1, 1)
    fill += rd[:6]
    fill += [f"s_cmp_lt_u32 s40, 6", f"s_cselect_b32 s43, s39, {HUGE}"]
    fill += dma_x('s42', 's43')
    fill += rd[6:]
    fill += ["s_add_u32 s39, s39, 128"]
    for t in interleave(mfmas(0), fill, per=1): a(t)
    a("s_waitcnt vmcnt(12) lgkmcnt(0)")
    a("s_barrier")
    a(f"s_add_u32 s43, s47, {2*SLOT}")
    a("s_cmp_eq_u32 s41, s43")
    a(f"s_mov_b32 s51, {SLOT}")
    a(f"s_cselect_b32 s51, {(-2*SLOT) & 0xffffffff}, s51")
    fill = []
    rd = reads(0, 0)
    fill.append(f"v_add_u32 v{XA[0]}, s51, v{XA[0]}")
    fill += rd[:4]
    fill.append(f"v_add_u32 v{XA[1]}, s51, v{XA[1]}")
    for n in range(7):
        fill.append(f"v_add_u32 v{WA[n]}, s51, v{WA[n]}")
        fill += rd[4+2*n:6+2*n]
    dm = [f"s_cmp_lt_u32 s40, 5", f"s_cselect_b32 s43, s37, {HUGE}", f"s_add_u32 s44, s43, s38"] + dma_w('s41', 's43', 's44')
    dm += ["s_lshl_b32 s44, s38, 1", "s_add_u32 s37, s37, s44", "s_mov_b32 s42, s41", "s_add_u32 s41, s41, s51", "s_add_u32 s40, s40, 1"]
    fill = interleave(fill, dm)
    for t in interleave(mfmas(1), fill, per=2): a(t)
    a("s_waitcnt lgkmcnt(0)")
    a("s_cmp_lt_u32 s40, 8")
    a(f"s_cbranch_scc1 {L('loop')}")
    a("s_waitcnt vmcnt(0)")
    a("s_barrier")
    a("v_and_b32 v2, 15, v1")
    a("v_lshrrev_b32 v3, 4, v1")
    a("s_lshl_b32 s43, s18, 7")
    a("s_lshl_b32 s44, s21, 6")
    a("s_add_u32 s43, s43, s44")
    a("v_add_u32 v4, s43, v2")
    a("v_lshlrev_b32 v4, 5, v4")
    a("v_lshl_add_u32 v4, v3, 3, v4")
    a("v_lshlrev_b32 v5, 3, v1")
    a("s_cmp_eq_u32 s19, 14")
    a(f"s_cbranch_scc1 {L('pure')}")
    CP0, CP1, ONE = 236, 238, 240
    for r in (CP0, CP0+1): a(f"v_mov_b32 v{r}, {hex(f2u(GELU_C0))}")
    for r in (CP1, CP1+1): a(f"v_mov_b32 v{r}, {hex(f2u(GELU_C1))}")
    for r in (ONE, ONE+1): a(f"v_mov_b32 v{r}, 1.0")
    zregs = [acc(n, tt) + 2*h for n in range(2) for tt in range(4) for h in range(2)]
    gelu_pairs(a, zregs, X[0], CP0, CP1, ONE)
    a("s_lshl_b32 s43, s21, 6")
    a("v_add_u32 v6, s43, v2")
    a("v_lshlrev_b32 v6, 6, v6")
    a("s_lshl_b32 s43, s22, 5")
    a("v_lshl_add_u32 v6, v3, 3, v6")
    a("v_add_u32 v6, s43, v6")
    T = X[0]
    for tt in range(4):
        z = [acc(0, tt), acc(0, tt)+2, acc(1, tt), acc(1, tt)+2]
        t = T + 8*tt
        a(f"v_pk_add_f32 {r2(t)}, {r2(z[0])}, {r2(z[1])}")
        a(f"v_pk_mul_f32 {r2(t+2)}, {r2(z[0])}, {r2(z[0])}")
        a(f"v_pk_add_f32 {r2(t+4)}, {r2(z[2])}, {r2(z[3])}")
        a(f"v_pk_fma_f32 {r2(t+2)}, {r2(z[1])}, {r2(z[1])}, {r2(t+2)}")
        a(f"v_pk_add_f32 {r2(t)}, {r2(t)}, {r2(t+4)}")
        a(f"v_pk_fma_f32 {r2(t+2)}, {r2(z[2])}, {r2(z[2])}, {r2(t+2)}")
        a(f"v_pk_fma_f32 {r2(t+2)}, {r2(z[3])}, {r2(z[3])}, {r2(t+2)}")
        a(f"v_add_f32 v{t}, v{t}, v{t+1}")
        a(f"v_add_f32 v{t+1}, v{t+2}, v{t+3}")
        a(f"ds_write_b64 v6, {r2(t)} offset:{tt*1024}")
    a("s_waitcnt lgkmcnt(0)")
    a("s_barrier")
    a("s_cmp_lt_u32 s20, 2")
    a(f"s_cbranch_scc0 {L('nopub')}")
    a("v_lshlrev_b32 v6, 6, v0")
    for q in range(4): a(f"ds_read_b128 {r4(T+4*q)}, v6 offset:{16*q}")
    a("s_mul_i32 s43, s18, 14")
    a("s_add_u32 s43, s43, s19")
    a("s_lshl_b32 s43, s43, 10")
    a(f"s_add_u32 s43, s43, {WS_STAT}")
    a("v_lshlrev_b32 v7, 3, v0")
    a("s_waitcnt lgkmcnt(0)")
    a(f"v_pk_add_f32 {r2(T)}, {r2(T)}, {r2(T+2)}")
    a(f"v_pk_add_f32 {r2(T+4)}, {r2(T+4)}, {r2(T+6)}")
    a(f"v_pk_add_f32 {r2(T+8)}, {r2(T+8)}, {r2(T+10)}")
    a(f"v_pk_add_f32 {r2(T+12)}, {r2(T+12)}, {r2(T+14)}")
    a(f"v_pk_add_f32 {r2(T)}, {r2(T)}, {r2(T+4)}")
    a(f"v_pk_add_f32 {r2(T+8)}, {r2(T+8)}, {r2(T+12)}")
    a(f"v_pk_add_f32 {r2(T)}, {r2(T)}, {r2(T+8)}")
    a(f"buffer_store_dwordx2 {r2(T)}, v7, s[32:35], s43 offen sc0 sc1")
    a("s_waitcnt vmcnt(0)")
    a.label(L('nopub'))
    a("s_barrier")
    a("s_cmp_eq_u32 s20, 0")
    a(f"s_cbranch_scc0 {L('noatom')}")
    a("s_lshl_b32 s43, s18, 2")
    a("v_mov_b32 v6, s43")
    a("v_mov_b32 v7, 1")
    a("s_mov_b64 s[52:53], exec")
    a("s_mov_b64 exec, 1")
    a("global_atomic_add v6, v7, s[12:13]")
    a("s_mov_b64 exec, s[52:53]")
    a.label(L('noatom'))
    a("s_lshl_b32 s43, s18, 3")
    a("s_lshl_b32 s44, s21, 2")
    a("s_add_u32 s43, s43, s44")
    a("s_mul_i32 s43, s43, 56")
    a("s_lshl_b32 s44, s19, 2")
    a("s_add_u32 s43, s43, s44")
    a("s_lshl_b32 s44, s22, 1")
    a("s_add_u32 s43, s43, s44")
    a("s_lshl_b32 s43, s43, 9")
    a(f"s_add_u32 s54, s43, {WS_H1}")
    for tt in range(4):
        t = T + 4*tt
        for k, n in enumerate((2, 3)):
            c = acc(n, tt)
            a(f"v_cvt_pk_bf16_f32 v{t+2*k}, v{c}, v{c+1}")
            a(f"v_cvt_pk_bf16_f32 v{t+2*k+1}, v{c+2}, v{c+3}")
        a(f"s_add_u32 s43, s54, {tt*56*512}")
        a(f"buffer_store_dwordx2 {r2(t)}, v5, s[32:35], s43 offen")
        a(f"buffer_store_dwordx2 {r2(t+2)}, v5, s[32:35], s43 offen offset:512")
    a("s_mul_i32 s55, s19, 6")
    a("s_mul_i32 s44, s22, 3")
    a("s_add_u32 s55, s55, s44")
    def qkv_store(n, k, T2):
        a(f"s_add_u32 s43, s55, {k}")
        a("s_cmp_lt_u32 s43, 32")
        a(f"s_cselect_b32 s44, {hex(f2u(QSCALE))}, 1.0")
        a("s_lshl_b32 s43, s43, 16")
        for tt in range(4):
            c = acc(n, tt); t = T2 + 2*tt
            for i in range(4): a(f"v_mul_f32 v{c+i}, s44, v{c+i}")
            a(f"v_cvt_pk_bf16_f32 v{t}, v{c}, v{c+1}")
            a(f"v_cvt_pk_bf16_f32 v{t+1}, v{c+2}, v{c+3}")
            a(f"buffer_store_dwordx2 {r2(t)}, v4, s[32:35], s43 offen offset:{tt*512}")
    for k, n in enumerate((4, 5, 6)): qkv_store(n, k, W[0] + 8*k)
    a("s_cmp_eq_u32 s20, 0")
    a(f"s_cbranch_scc0 {L('nopoll')}")
    a("s_lshl_b32 s43, s18, 2")
    a("v_mov_b32 v6, s43")
    a("s_mov_b32 s56, 0")
    a.label(L('poll'))
    a("global_load_dword v7, v6, s[12:13] sc1")
    a("s_waitcnt vmcnt(0)")
    a("v_readfirstlane_b32 s43, v7")
    a("s_add_u32 s56, s56, 1")
    a("s_cmp_ge_u32 s56, 0x40000")
    a(f"s_cbranch_scc1 {L('nopoll')}")
    a("s_cmp_lt_u32 s43, 14")
    a(f"s_cbranch_scc1 {L('poll')}")
    a.label(L('nopoll'))
    a("s_barrier")
    a("s_cmp_lt_u32 s20, 2")
    a(f"s_cbranch_scc0 {L('nofin')}")
    a("s_mul_i32 s43, s18, 14336")
    a(f"s_add_u32 s43, s43, {WS_STAT}")
    a("v_lshlrev_b32 v7, 3, v0")
    for q in range(14):
        if q % 4 == 0 and q: a("s_add_u32 s43, s43, 4096")
        a(f"buffer_load_dwordx2 {r2(W[0]+2*q)}, v7, s[32:35], s43 offen offset:{(q%4)*1024} sc0 sc1")
    a("s_waitcnt vmcnt(0)")
    for q in range(1, 14): a(f"v_pk_add_f32 {r2(W[0])}, {r2(W[0])}, {r2(W[0]+2*q)}")
    m, e2 = W[0], W[0]+1
    a(f"v_mul_f32 v{m}, {hex(f2u(1.0/896))}, v{m}")
    a(f"v_mul_f32 v{e2}, {hex(f2u(1.0/896))}, v{e2}")
    a(f"v_fma_f32 v{e2}, -v{m}, v{m}, v{e2}")
    a(f"v_max_f32 v{e2}, 0, v{e2}")
    a(f"v_add_f32 v{e2}, {hex(f2u(1e-5))}, v{e2}")
    a(f"v_rsq_f32 v{e2}, v{e2}")
    a(f"v_mul_f32 v{m}, v{m}, v{e2}")
    a(f"v_sub_f32 v{m}, 0, v{m}")
    a("v_lshlrev_b32 v7, 3, v0")
    a(f"ds_write_b64 v7, {r2(m)} offset:8192")
    a("s_waitcnt lgkmcnt(0)")
    a.label(L('nofin'))
    a("s_barrier")
    a("s_lshl_b32 s43, s21, 6")
    a("v_add_u32 v6, s43, v2")
    a("v_lshlrev_b32 v6, 3, v6")
    for tt in range(4): a(f"ds_read_b64 {r2(X[1]+2*tt)}, v6 offset:{8192+tt*128}")
    a("s_add_u32 s43, s47, 16384")
    a("v_lshlrev_b32 v6, 5, v2")
    a("v_lshl_add_u32 v6, v3, 3, v6")
    a("v_add_u32 v6, s43, v6")
    a("s_waitcnt lgkmcnt(0)")
    for n in range(2):
        for tt in range(4):
            c = acc(n, tt); mr, r = X[1]+2*tt, X[1]+2*tt+1
            for i in range(4): a(f"v_fma_f32 v{c+i}, v{c+i}, v{r}, v{mr}")
            t = W[1] + 2*(n*4+tt)
            a(f"v_cvt_pk_bf16_f32 v{t}, v{c}, v{c+1}")
            a(f"v_cvt_pk_bf16_f32 v{t+1}, v{c+2}, v{c+3}")
            a(f"ds_write_b64 v6, {r2(t)} offset:{n*2048+tt*512}")
    a("v_lshlrev_b32 v6, 3, v2")
    a("v_lshl_add_u32 v6, v3, 8, v6")
    a("v_add_u32 v6, s43, v6")
    a("s_waitcnt lgkmcnt(0)")
    for n in range(2):
        for kk in range(2):
            for s in range(2):
                a(f"ds_read_b64_tr_b16 {r2(X[0]+4*(n*2+kk)+2*s)}, v6 offset:{n*2048+kk*1024+s*128}")
    a("s_lshl_b32 s43, s19, 2")
    a("s_lshl_b32 s44, s22, 1")
    a("s_add_u32 s43, s43, s44")
    a("s_lshl_b32 s43, s43, 16")
    a("s_lshl_b32 s44, s18, 2")
    a("s_lshl_b32 s45, s21, 1")
    a("s_add_u32 s44, s44, s45")
    a("s_lshl_b32 s44, s44, 10")
    a("s_add_u32 s43, s43, s44")
    a(f"s_add_u32 s43, s43, {WS_Z2N}")
    a("s_add_u32 s44, s43, 65536")
    a("v_lshlrev_b32 v7, 4, v1")
    a("s_waitcnt lgkmcnt(0)")
    for n in range(2):
        for kk in range(2):
            a(f"buffer_store_dwordx4 {r4(X[0]+4*(n*2+kk))}, v7, s[32:35], {'s43' if n==0 else 's44'} offen offset:{kk*1024}")
    a(f"s_branch {L('end')}")
    a.label(L('pure'))
    a("s_mul_i32 s55, s22, 6")
    a("s_add_u32 s55, s55, 84")
    for n in range(6): qkv_store(n, n, W[0] + 8*(n % 3))
    a(f"s_branch {L('end')}")
    a.label(L('spare'))
    a("s_lshl_b32 s16, s16, 1")
    a("s_add_u32 s16, s16, s17")
    a("s_sub_u32 s16, s16, 30")
    a("s_lshl_b32 s18, s16, 7")
    a("s_lshl_b32 s43, s20, 5")
    a("s_add_u32 s18, s18, s43")
    a("s_waitcnt lgkmcnt(0)")
    srd(a, 24, 4, 2048*1024)
    srd(a, 28, 14, 1024)
    srd(a, 32, 10, WS_END)
    a("v_and_b32 v2, 15, v1")
    a("v_lshrrev_b32 v3, 4, v1")
    a("v_lshlrev_b32 v4, 4, v2")
    for q in range(4): a(f"buffer_load_dwordx4 {r4(16+4*q)}, v4, s[28:31], 0 offen offset:{256*q}")
    a("v_add_u32 v5, s18, v3")
    a("v_lshl_add_u32 v5, v5, 10, v4")
    a("s_mov_b32 s40, 0")
    for it in range(8):
        for q in range(4): a(f"buffer_load_dwordx4 {r4(64+16*it+4*q)}, v5, s[24:27], 0 offen offset:{256*q}")
        a("v_add_u32 v5, 4096, v5")
    a("v_add_u32 v6, s18, v3")
    a("v_lshlrev_b32 v6, 2, v6")
    for it in range(8):
        a(f"s_waitcnt vmcnt({4*(7-it)})")
        b = 64+16*it
        a(f"v_dot2_f32_bf16 v8, v{b}, v16, 0")
        for r in range(1, 16): a(f"v_dot2_f32_bf16 v8, v{b+r}, v{16+r}, v8")
        a("s_nop 2")
        for sh in ('row_shr:8', 'row_shr:4', 'row_shr:2', 'row_shr:1'):
            a(f"v_add_f32_dpp v8, v8, v8 {sh} row_mask:0xf bank_mask:0xf bound_ctrl:1")
        a(f"v_mul_f32 v8, {hex(f2u(-LOG2E))}, v8")
        a("v_exp_f32 v8, v8")
        a("v_add_f32 v8, 1.0, v8")
        a("v_rcp_f32 v8, v8")
        a(f"v_mov_b32 v{32+it}, v8")
    a("v_cmp_eq_u32 s[52:53], 15, v2")
    a("s_mov_b64 s[54:55], exec")
    a("s_and_b64 exec, exec, s[52:53]")
    a(f"s_mov_b32 s57, {WS_G}")
    for it in range(8):
        a(f"buffer_store_dword v{32+it}, v6, s[32:35], s57 offen offset:{16*it}")
    a("s_mov_b64 exec, s[54:55]")
    a.label(L('end'))
    a("s_endpgm")
    n = a.fix_hazards()
    return a, n
```

```python
import sys, importlib
sys.path.insert(0, 'gen')
from common import *
import k1
def make(cfg=None, kernels=('k1','k2','k3')):
    cfg = cfg or {}
    mods = []
    for k in kernels:
        mods.append(importlib.import_module(k))
    hdr = open('gated_mix__sliding_block__mixer_gmlp__prompt.s.ref').read().split('\n')
    top = [l for l in hdr if l.startswith(';') and '@launch' not in l and 'Override launch' not in l and 'grid=ceil' not in l]
    top = top[:14]
    out = '\n'.join(top) + '\n'
    for m in mods:
        out += f"; @launch kernel={m.NAME} grid=({m.GRID},1,1) block=({m.BLOCK},1,1) lds={m.LDS_BYTES}\n"
    out += '.amdgcn_target "amdgcn-amd-amdhsa--gfx950"\n.text\n'
    descs = ''
    for m in mods:
        a, n = m.build(cfg)
        out += kernel_header(m.NAME) + a.text()
        descs += '.p2align 6\n' + kernel_desc(m.NAME, m.VGPRS, getattr(m, 'AGPRS', 0))
    out += '.section .rodata,"a"\n' + descs
    return out
if __name__ == '__main__':
    ks = sys.argv[2].split(',') if len(sys.argv) > 2 else ('k1','k2','k3')
    txt = make({}, ks)
    path = sys.argv[1] if len(sys.argv) > 1 else 'gated_mix__sliding_block__mixer_gmlp__prompt.s'
    open(path, 'w').write(txt)
    print('wrote', path, len(txt), 'bytes')
```

```python
import re

TRANS = ('v_exp_f32', 'v_log_f32', 'v_rcp_f32', 'v_rsq_f32', 'v_sqrt_f32', 'v_sin_f32', 'v_cos_f32', 'v_rcp_iflag_f32')
REG = re.compile(r'(?<![\w.])(-|\|)?([vsa])(\d+|\[(\d+):(\d+)\])(?![\w])')

def regs_of(tok):
    out = set()
    tok = tok.strip()
    if tok in ('vcc', 'vcc_lo', 'vcc_hi'):
        return {('s', 'vcc')}
    if tok in ('exec', 'exec_lo', 'exec_hi'):
        return {('s', 'exec')}
    if tok == 'm0':
        return {('s', 'm0')}
    m = re.fullmatch(r'-?\|?([vsa])(\d+)\|?', tok)
    if m:
        return {(m.group(1), int(m.group(2)))}
    m = re.fullmatch(r'-?\|?([vsa])\[(\d+):(\d+)\]\|?', tok)
    if m:
        return {(m.group(1), i) for i in range(int(m.group(2)), int(m.group(3)) + 1)}
    return out

class Ins:
    __slots__ = ('text', 'op', 'ops', 'cls', 'defs', 'uses', 'passes', 'cops', 'abops', 'dpp', 'wide_store', 'isdma', 'states')
    def __init__(self, text):
        self.text = text
        t = text.split(';')[0].strip()
        self.states = 1
        self.passes = 0; self.cops = set(); self.abops = set(); self.dpp = False; self.wide_store = set(); self.isdma = False
        self.defs = set(); self.uses = set()
        if not t or t.endswith(':') or t.startswith('.'):
            self.op = None; self.cls = 'none'; self.ops = []; self.states = 0
            if t.endswith(':'): self.cls = 'label'
            return
        p = t.split(None, 1)
        op = p[0]; rest = p[1] if len(p) > 1 else ''
        base = re.sub(r'_(e32|e64|dpp|sdwa)$', '', op)
        self.op = base
        toks = []; cur = ''; depth = 0
        for ch in rest:
            if ch == '[': depth += 1
            if ch == ']': depth -= 1
            if ch == ',' and depth == 0:
                toks.append(cur.strip()); cur = ''
            else:
                cur += ch
        if cur.strip(): toks.append(cur.strip())
        mods = ''
        if toks:
            last = toks[-1].split()
            if len(last) > 1:
                toks[-1] = last[0]; mods = ' '.join(last[1:])
        self.ops = toks
        R = [regs_of(x) for x in toks]
        allr = set().union(*R) if R else set()
        if base.startswith('v_mfma'):
            self.cls = 'mfma'
            self.passes = 8 if '32x32' in base else 4
            self.defs = R[0]; self.abops = R[1] | R[2]; self.cops = R[3]
            self.uses = self.abops | self.cops
        elif base.startswith('v_'):
            self.cls = 'trans' if base in TRANS else 'valu'
            if 'row_' in mods or 'quad_perm' in mods or op.endswith('_dpp') or 'wave_' in mods: self.dpp = True
            if base.startswith('v_cmp'):
                self.defs = R[0]; self.uses = set().union(*R[1:])
                if base.startswith('v_cmpx'): self.defs = self.defs | {('s', 'exec')}
            elif base.startswith('v_permlane') and 'swap' in base:
                self.defs = R[0] | R[1]; self.uses = R[0] | R[1]
            elif base in ('v_add_co_u32', 'v_sub_co_u32', 'v_subrev_co_u32'):
                self.defs = R[0] | R[1]; self.uses = set().union(*R[2:])
            elif base in ('v_addc_co_u32', 'v_subb_co_u32'):
                self.defs = R[0] | R[1]; self.uses = set().union(*R[2:])
            elif base in ('v_nop',):
                pass
            else:
                self.defs = R[0]; self.uses = set().union(*R[1:]) if len(R) > 1 else set()
                if base in ('v_fmac_f32', 'v_dot2c_f32_bf16', 'v_pk_fmac_f16', 'v_fmaak_f32_', 'v_writelane_b32') or self.dpp:
                    self.uses = self.uses | R[0]
                if base == 'v_cndmask_b32' and len(toks) == 3: self.uses = self.uses | {('s', 'vcc')}
        elif base.startswith('ds_'):
            self.cls = 'ds'
            if base.startswith('ds_read') or base in ('ds_bpermute_b32', 'ds_permute_b32', 'ds_swizzle_b32') or '_rtn' in base:
                self.defs = R[0]; self.uses = set().union(*R[1:])
            else:
                self.uses = allr
        elif base.startswith('buffer_') or base.startswith('global_') or base.startswith('flat_'):
            self.cls = 'vmem'
            isdma = (' lds' in ' ' + mods + ' ' or mods.endswith('lds') or 'load_lds' in base)
            self.isdma = isdma
            if base in ('buffer_wbl2', 'buffer_inv'):
                pass
            elif 'load' in base and not isdma:
                self.defs = R[0]; self.uses = set().union(*R[1:])
            elif 'atomic' in base and ('sc0' in mods.split()):
                self.defs = R[0]; self.uses = allr
            else:
                self.uses = allr
                if 'store' in base and ('x4' in base or 'x3' in base):
                    self.wide_store = R[0] if base.startswith('buffer_') else R[1]
            if isdma: self.uses = self.uses | {('s', 'm0')}
        elif base.startswith('s_'):
            self.cls = 'salu'
            if base == 's_nop':
                self.cls = 'nop'; self.states = int(toks[0], 0) + 1
            elif base in ('s_waitcnt', 's_barrier', 's_setprio', 's_endpgm', 's_sleep', 's_branch') or base.startswith('s_cbranch'):
                self.cls = 'ctl'
            elif base.startswith('s_cmp') or base.startswith('s_bitcmp'):
                self.uses = allr
            elif base.startswith('s_load') or base in ('s_memtime', 's_memrealtime') or base.startswith('s_buffer_load'):
                self.cls = 'smem'; self.defs = R[0]; self.uses = set().union(*R[1:]) if len(R) > 1 else set()
            else:
                self.defs = R[0]; self.uses = set().union(*R[1:]) if len(R) > 1 else set()
                if 'saveexec' in base: self.defs = self.defs | {('s', 'exec')}
        else:
            raise ValueError('unknown instr: ' + text)

def vonly(s): return {r for r in s if r[0] in 'va'}
def sonly(s): return {r for r in s if r[0] == 's'}

def need(prev, cur):
    n = 0
    pv = prev.cls in ('valu', 'trans')
    cv = cur.cls in ('valu', 'trans')
    if pv:
        d = vonly(prev.defs)
        if cur.cls == 'mfma' and d & cur.uses: n = max(n, 2)
        if cv and cur.op.startswith('v_permlane') and d & cur.uses: n = max(n, 2)
        if cv and cur.dpp and d & cur.uses: n = max(n, 2)
        if cv and cur.op in ('v_readfirstlane_b32', 'v_readlane_b32') and d & cur.uses: n = max(n, 1)
        if prev.cls == 'trans' and cv and cur.cls != 'trans' and d & cur.uses: n = max(n, 1)
        if prev.cls == 'trans' and cur.cls == 'trans' and d & cur.uses: n = max(n, 1)
        if prev.cls == 'trans' and cur.cls in ('vmem', 'ds') and d & cur.uses: n = max(n, 1)
        sd = sonly(prev.defs)
        if sd:
            if cv and sd & cur.uses: n = max(n, 2)
            if cur.cls == 'vmem' and sd & cur.uses: n = max(n, 5)
            if cur.cls in ('salu', 'smem') and sd & cur.uses: n = max(n, 1)
            if ('s', 'exec') in sd and cur.cls == 'mfma': n = max(n, 4)
            if ('s', 'exec') in sd and cur.dpp: n = max(n, 5)
    if prev.cls == 'mfma':
        d = prev.defs
        big = prev.passes == 8
        if cur.cls == 'mfma':
            if d & cur.abops: n = max(n, 12 if big else 8)
            if d & cur.cops:
                if not (cur.cops == d and cur.passes == prev.passes): n = max(n, 10 if big else 6)
            if (d & cur.defs) and not (d & cur.cops): n = max(n, 10 if big else 6)
        elif cv or cur.cls in ('vmem', 'ds'):
            if d & (cur.uses | cur.defs): n = max(n, 12 if big else 8)
        if cv and (prev.cops & cur.defs): n = max(n, 7 if big else 3)
    if prev.cls == 'salu' and ('s', 'm0') in prev.defs and cur.isdma: n = max(n, 1)
    if prev.wide_store:
        if cv and prev.wide_store & cur.defs: n = max(n, 2)
        elif prev.wide_store & cur.defs: n = max(n, 1)
    return n

class Asm:
    def __init__(self):
        self.items = []
        self.uid = 0
    def __call__(self, text):
        for ln in text.split('\n'):
            ln = ln.strip()
            if ln: self.items.append(Ins(ln))
    def raw(self, text):
        i = Ins(''); i.text = text; self.items.append(i)
    def label(self, name): self('%s:' % name)
    def newlabel(self, p='L'):
        self.uid += 1; return '%s_%d' % (p, self.uid)

    def fix_hazards(self, window=24, verbose=False):
        items = self.items
        labels = {}
        out = []
        ninserted = 0
        for ins in items:
            if ins.states == 0:
                out.append(ins); continue
            req = 0; dist = 0
            for prev in reversed(out):
                if prev.states == 0: continue
                if dist >= window: break
                r = need(prev, ins)
                if r - dist > req: req = r - dist
                dist += prev.states
            if req > 0:
                out.append(Ins('s_nop %d' % (req - 1))); ninserted += 1
                if verbose: print('nop %d before %s' % (req, ins.text))
            out.append(ins)
        self.items = out
        changed = True
        while changed:
            changed = False
            items = self.items
            lab = {i.text.strip()[:-1]: k for k, i in enumerate(items) if i.cls == 'label'}
            for k, ins in enumerate(items):
                if ins.op and (ins.op == 's_branch' or ins.op.startswith('s_cbranch')):
                    tgt = ins.ops[0]
                    if tgt not in lab: continue
                    tail = [x for x in items[max(0, k - 3 * window):k + 1] if x.states][-window:]
                    head = [x for x in items[lab[tgt]:lab[tgt] + 3 * window] if x.states][:window]
                    dh = 0
                    for hi, h in enumerate(head):
                        dist = dh
                        for prev in reversed(tail):
                            r = need(prev, h)
                            if r - dist > 0:
                                pos = lab[tgt] + 1
                                items.insert(pos, Ins('s_nop %d' % (r - dist - 1)))
                                ninserted += 1; changed = True
                                if verbose: print('branch nop %d: %s -> %s' % (r - dist, prev.text, h.text))
                                break
                            dist += prev.states
                            if dist >= window: break
                        if changed: break
                        dh += h.states
                    if changed: break
        return ninserted
    def check_protected(self, sregs):
        prot = {('s', r) for r in sregs}
        for i in self.items:
            if i.cls != 'smem' and i.defs & prot:
                raise ValueError('write to protected pointer register: ' + i.text)
    align_labels = ()
    def text(self):
        o = []
        for i in self.items:
            if i.cls == 'label' and i.text.strip()[:-1] in self.align_labels: o.append('.p2align 6')
            if i.cls == 'label' or i.text.startswith('.') or i.text.startswith(';'): o.append(i.text)
            else: o.append('    ' + i.text)
        return '\n'.join(o) + '\n'

def interleave(main, fill, start=0, per=None):
    n = len(main) - start
    out = list(main[:start])
    if n <= 0: return out + list(fill)
    k = 0
    for i in range(n):
        out.append(main[start + i])
        tgt = ((i + 1) * len(fill) + n - 1) // n if per is None else min(len(fill), (i + 1) * per)
        while k < tgt:
            out.append(fill[k]); k += 1
    out += fill[k:]
    return out
```

```python
S = 2048; D = 512
WS_QKV  = 0x0000000
WS_H1   = 0x0600000
WS_Z2N  = 0x0A00000
WS_A3   = 0x0E00000
WS_STAT = 0x1400000
WS_G    = 0x1480000
WS_END  = 0x1500000
KA_X, KA_WQKV, KA_WO, KA_BX, KA_WIN, KA_WSP, KA_BSP, KA_WOUT, KA_GATE, KA_OUT, KA_DBG, KA_WS = [8*i for i in range(12)]
import math
LOG2E = 1.4426950408889634
def f2u(x):
    import struct
    return struct.unpack('<I', struct.pack('<f', x))[0]
GELU_C0 = -2.0*math.sqrt(2.0/math.pi)*LOG2E
GELU_C1 = GELU_C0*0.044715
QSCALE = 0.25*LOG2E

def kernel_header(name):
    return f""".globl {name}
.p2align 8
.type {name},@function
{name}:
"""
def kernel_desc(name, vgpr, agpr=0, sgpr=102):
    acc = (vgpr + 3)//4*4
    return f""".amdhsa_kernel {name}
  .amdhsa_next_free_vgpr {acc + agpr}
  .amdhsa_next_free_sgpr {sgpr}
  .amdhsa_accum_offset {acc}
  .amdhsa_group_segment_fixed_size 0
  .amdhsa_kernarg_size 96
  .amdhsa_user_sgpr_count 2
  .amdhsa_user_sgpr_kernarg_segment_ptr 1
  .amdhsa_system_sgpr_workgroup_id_x 1
  .amdhsa_float_denorm_mode_32 3
.end_amdhsa_kernel
"""
def srd(a, s, ptr, nbytes, add=None):
    if add is None:
        a(f"s_mov_b32 s{s}, s{ptr}")
        a(f"s_mov_b32 s{s+1}, s{ptr+1}")
    else:
        a(f"s_add_u32 s{s}, s{ptr}, {add}")
        a(f"s_addc_u32 s{s+1}, s{ptr+1}, 0")
    a(f"s_mov_b32 s{s+2}, {nbytes}")
    a(f"s_mov_b32 s{s+3}, 0x20000")

WS_TS = 0x1600000
class Stamper:
    def __init__(self, a, cfg, kidx):
        self.a = a; self.on = cfg.get('ts', False); self.k = kidx; self.n = 0
    def init(self):
        if self.on: self.a("s_mov_b32 s63, 0")
    def role(self, r):
        if self.on: self.a(f"s_mov_b32 s63, {32*r}")
    def __call__(self, idx):
        if self.on: self.a(f"{'s_memtime' if self.on == 2 else 's_memrealtime'} s[{64+2*idx}:{65+2*idx}]")
    def flush(self, wave_sgpr='s20', nst=8):
        if not self.on: return
        a = self.a
        lab = 'TS_k%d' % self.k
        a(f"s_cmp_eq_u32 {wave_sgpr}, 0")
        a(f"s_cbranch_scc0 {lab}")
        a("s_waitcnt lgkmcnt(0)")
        a(f"s_load_dwordx2 s[96:97], s[0:1], {KA_WS}")
        a("s_lshl_b32 s98, s2, 6")
        a(f"s_add_u32 s98, s98, {WS_TS + self.k*32768}")
        a("s_add_u32 s98, s98, s63")
        a("s_waitcnt lgkmcnt(0)")
        a("s_add_u32 s96, s96, s98")
        a("s_addc_u32 s97, s97, 0")
        a("v_mov_b32 v250, 0")
        for i in range(nst):
            a(f"v_mov_b32 v251, s{64+2*i}")
            a(f"global_store_dword v250, v251, s[96:97] offset:{4*i}")
        a("s_cmp_eq_u32 s63, 0")
        a(f"s_cbranch_scc1 {lab}")
        a("s_waitcnt vmcnt(0)")
        a("v_mov_b32 v251, s62")
        a("global_store_dword v250, v251, s[96:97] offset:28")
        a.label(lab)
```

```python
from asmlib import *
from common import *

NAME = 'gm_k1_kernel'
SLOT = 32768
NSLOT = 4
EP = NSLOT*SLOT
LDS_BYTES = EP + 1024 + 16384
GRID = 256
BLOCK = 512
VGPRS = 256
HUGE = 0x7ff00000
SENT = 0xffffffff

ACC = 16
X = [128, 144]
W = [160, 176]
XA = [216, 217]
WA = [218+i for i in range(7)]
PK = 192
VX = [16+i for i in range(4)]
VW = [[20+i for i in range(4)], [24+i for i in range(4)]]
def acc(n, tt): return ACC + (n*4+tt)*4
def r4(b): return f"v[{b}:{b+3}]"
def r2(b): return f"v[{b}:{b+1}]"

def gelu_pairs(a, regs, t0, cpair0, cpair1, one, G=4):
    for k in range(0, len(regs), G):
        grp = regs[k:k+G]
        T = [t0 + 2*i for i in range(len(grp))]
        for x, t in zip(grp, T): a(f"v_pk_mul_f32 {r2(t)}, {r2(x)}, {r2(x)}")
        for x, t in zip(grp, T): a(f"v_pk_fma_f32 {r2(t)}, {r2(t)}, {r2(cpair1)}, {r2(cpair0)}")
        for x, t in zip(grp, T): a(f"v_pk_mul_f32 {r2(t)}, {r2(t)}, {r2(x)}")
        for x, t in zip(grp, T):
            a(f"v_exp_f32 v{t}, v{t}"); a(f"v_exp_f32 v{t+1}, v{t+1}")
        for x, t in zip(grp, T): a(f"v_pk_add_f32 {r2(t)}, {r2(t)}, {r2(one)}")
        for x, t in zip(grp, T):
            a(f"v_rcp_f32 v{t}, v{t}"); a(f"v_rcp_f32 v{t+1}, v{t+1}")
        for x, t in zip(grp, T): a(f"v_pk_mul_f32 {r2(x)}, {r2(x)}, {r2(t)}")

def build(cfg):
    a = Asm()
    L = lambda s: f"K1_{s}"
    FL = {0: '', 1: 'sc0 sc1', 2: 'sc1'}
    ST = FL[cfg.get('st1', 2)]
    XS = 'sc1'
    a(f"s_cmp_ge_u32 s2, 256")
    a(f"s_cbranch_scc1 {L('end')}")
    ts = Stamper(a, cfg, 0)
    ts.init()
    for i in range(8): ts(i)
    a(f"s_load_dwordx4 s[4:7], s[0:1], {KA_X}")
    a(f"s_load_dwordx4 s[8:11], s[0:1], {KA_WIN}")
    a(f"s_load_dwordx4 s[12:15], s[0:1], {KA_DBG}")
    a(f"s_load_dwordx4 s[56:59], s[0:1], {KA_WOUT}")
    a(f"s_load_dwordx2 s[60:61], s[0:1], {KA_WO}")
    a("v_lshrrev_b32 v2, 6, v0")
    a("v_and_b32 v1, 63, v0")
    a("v_readfirstlane_b32 s20, v2")
    a("s_and_b32 s16, s2, 7")
    a("s_lshr_b32 s17, s2, 3")
    a("s_lshr_b32 s18, s16, 2")
    a("s_lshl_b32 s18, s18, 3")
    a("s_and_b32 s43, s16, 3")
    a("s_mul_i32 s44, s43, 30")
    a("s_add_u32 s44, s44, s17")
    a("s_lshr_b32 s19, s44, 3")
    a("s_and_b32 s44, s44, 7")
    a("s_lshl_b32 s43, s43, 1")
    a("s_add_u32 s43, s43, s17")
    a("s_sub_u32 s43, s43, 30")
    a("s_cmp_ge_u32 s17, 30")
    a("s_cselect_b32 s44, s43, s44")
    a("s_add_u32 s18, s18, s44")
    a("s_cmp_ge_u32 s17, 30")
    a(f"s_cbranch_scc1 {L('spare')}")
    a("s_cmp_ge_u32 s20, 4")
    a(f"s_cbranch_scc1 {L('loader')}")
    a("s_lshr_b32 s21, s20, 1")
    a("s_and_b32 s22, s20, 1")
    a("s_mul_i32 s43, s18, 14")
    a("s_add_u32 s43, s43, s19")
    a("s_lshl_b32 s43, s43, 1")
    a("s_add_u32 s43, s43, s22")
    a("s_lshl_b32 s43, s43, 10")
    a("s_lshl_b32 s44, s21, 9")
    a("s_add_u32 s43, s43, s44")
    a(f"s_add_u32 s62, s43, {WS_STAT}")
    a("v_and_b32 v2, 15, v1")
    a("v_lshrrev_b32 v3, 4, v1")
    a("v_lshrrev_b32 v4, 1, v2")
    a("v_xor_b32 v4, v4, v3")
    a("s_lshl_b32 s43, s21, 6")
    a("v_add_u32 v5, s43, v2")
    a("v_lshlrev_b32 v5, 7, v5")
    a(f"v_lshl_add_u32 v{XA[0]}, v4, 4, v5")
    a(f"v_xor_b32 v{XA[1]}, 64, v{XA[0]}")
    a("v_lshrrev_b32 v4, 2, v1")
    a("v_and_b32 v4, 7, v4")
    a("v_lshrrev_b32 v5, 5, v1")
    a("v_lshlrev_b32 v5, 11, v5")
    a("v_lshl_add_u32 v5, v4, 7, v5")
    a("v_lshrrev_b32 v4, 1, v4")
    a("v_lshl_add_u32 v5, v4, 5, v5")
    a("v_and_b32 v4, 3, v1")
    a("v_lshl_add_u32 v5, v4, 3, v5")
    a("s_and_b32 s48, s19, 1")
    a("s_lshl_b32 s48, s48, 1")
    a("s_mul_i32 s49, s22, 3")
    a("s_add_u32 s48, s48, s49")
    a("s_lshl_b32 s49, s22, 1")
    a("s_lshl_b32 s50, s22, 2")
    for n in range(7):
        if n < 2: a(f"s_add_u32 s43, s49, {n}"); a(f"s_add_u32 s44, s50, {n}")
        elif n < 4: a(f"s_add_u32 s43, s49, {4+n-2}"); a(f"s_add_u32 s44, s50, {n}")
        else: a(f"s_add_u32 s43, s48, {n-4}"); a(f"s_add_u32 s44, s49, {min(n-4,1)}")
        a("s_cmp_eq_u32 s19, 14")
        a("s_cselect_b32 s43, s44, s43")
        a("s_and_b32 s44, s43, 3")
        a("s_lshl_b32 s44, s44, 5")
        a("s_lshr_b32 s43, s43, 2")
        a("s_lshl_b32 s43, s43, 12")
        a("s_add_u32 s43, s43, 16384")
        a(f"v_xor_b32 v{WA[n]}, s44, v5")
        a(f"v_add_u32 v{WA[n]}, s43, v{WA[n]}")
    for r in range(ACC, ACC+112): a(f"v_mov_b32 v{r}, 0")
    def tiles(ph): return range(4) if ph == 0 else range(4, 7)
    def reads(ph, ks, buf):
        out = []
        for tt in range(4):
            out.append(f"ds_read_b128 {r4(X[buf]+4*tt)}, v{XA[ks]} offset:{tt*2048}")
        for q, n in enumerate(tiles(ph)):
            for s in range(2):
                out.append(f"ds_read_b64_tr_b16 {r2(W[buf]+4*q+2*s)}, v{WA[n]} offset:{ks*8192+s*1024}")
        return out
    def mfmas(ph, buf):
        return [f"v_mfma_f32_16x16x32_bf16 {r4(acc(n,tt))}, {r4(W[buf]+4*q)}, {r4(X[buf]+4*tt)}, {r4(acc(n,tt))}"
                for q, n in enumerate(tiles(ph)) for tt in range(4)]
    a("s_mov_b32 s40, 0")
    a("s_mov_b32 s41, 0")
    a("s_waitcnt lgkmcnt(0)")
    srd(a, 32, 14, WS_END)
    ts(1)
    a("s_barrier")
    ts(2)
    for t in reads(0, 0, 0): a(t)
    def adv_addr(regs):
        return [f"v_add_u32 v{r}, s51, v{r}" for r in regs]
    def loop(ph):
        lab = L(f'loop{ph}')
        a("s_waitcnt lgkmcnt(0)")
        a.label(lab)
        sal = ["s_cmp_eq_u32 s41, %d" % (NSLOT-1), f"s_mov_b32 s51, {SLOT}", f"s_cselect_b32 s51, {(-(NSLOT-1)*SLOT) & 0xffffffff}, s51",
               "s_add_u32 s41, s41, 1", f"s_and_b32 s41, s41, {NSLOT-1}", "s_add_u32 s40, s40, 1"]
        for t in interleave(mfmas(ph, 0), reads(ph, 1, 1) + sal): a(t)
        a("s_waitcnt lgkmcnt(0)")
        a("s_barrier")
        rd = reads(ph, 0, 0)
        nW = len(list(tiles(ph)))
        fill = [f"v_add_u32 v{XA[0]}, s51, v{XA[0]}"] + rd[:4] + [f"v_add_u32 v{XA[1]}, s51, v{XA[1]}"]
        cur = list(tiles(ph)); oth = [n for n in range(7) if n not in cur]
        for q, n in enumerate(cur):
            fill.append(f"v_add_u32 v{WA[n]}, s51, v{WA[n]}")
            fill += rd[4+2*q:6+2*q]
        fill += adv_addr([WA[n] for n in oth])
        fill += ["s_cmp_lt_u32 s40, 8"]
        for t in interleave(mfmas(ph, 1), fill): a(t)
        if ph == 0:
            pass
        a("s_waitcnt lgkmcnt(0)")
        a(f"s_cbranch_scc1 {lab}")
    loop(0)
    ts(3)
    a("v_and_b32 v2, 15, v1")
    a("v_lshrrev_b32 v3, 4, v1")
    for t in reads(1, 0, 0): a(t)
    a("s_cmp_eq_u32 s19, 14")
    a(f"s_cbranch_scc1 {L('pure_mid')}")
    a("s_lshl_b32 s43, s18, 2")
    a("v_mov_b32 v10, s43")
    a("global_load_dword v11, v10, s[12:13] sc1")
    CP0, CP1, ONE = 226, 228, 230
    for r in (CP0, CP0+1): a(f"v_mov_b32 v{r}, {hex(f2u(GELU_C0))}")
    for r in (CP1, CP1+1): a(f"v_mov_b32 v{r}, {hex(f2u(GELU_C1))}")
    for r in (ONE, ONE+1): a(f"v_mov_b32 v{r}, 1.0")
    zregs = [acc(n, tt) + 2*h for n in range(2) for tt in range(4) for h in range(2)]
    gelu_pairs(a, zregs, PK, CP0, CP1, ONE)
    T = PK
    for tt in range(4):
        z = [acc(0, tt), acc(0, tt)+2, acc(1, tt), acc(1, tt)+2]
        t = T + 6*tt
        a(f"v_pk_add_f32 {r2(t)}, {r2(z[0])}, {r2(z[1])}")
        a(f"v_pk_mul_f32 {r2(t+2)}, {r2(z[0])}, {r2(z[0])}")
        a(f"v_pk_add_f32 {r2(t+4)}, {r2(z[2])}, {r2(z[3])}")
        a(f"v_pk_fma_f32 {r2(t+2)}, {r2(z[1])}, {r2(z[1])}, {r2(t+2)}")
        a(f"v_pk_add_f32 {r2(t)}, {r2(t)}, {r2(t+4)}")
        a(f"v_pk_fma_f32 {r2(t+2)}, {r2(z[2])}, {r2(z[2])}, {r2(t+2)}")
        a(f"v_pk_fma_f32 {r2(t+2)}, {r2(z[3])}, {r2(z[3])}, {r2(t+2)}")
        a(f"v_add_f32 v{t}, v{t}, v{t+1}")
        a(f"v_add_f32 v{t+1}, v{t+2}, v{t+3}")
    V = lambda tt, c: T + 6*tt + c
    for c in range(2):
        a(f"v_permlane32_swap_b32 v{V(0,c)}, v{V(2,c)}")
        a(f"v_permlane32_swap_b32 v{V(1,c)}, v{V(3,c)}")
    for c in range(2):
        a(f"v_add_f32 v{V(0,c)}, v{V(0,c)}, v{V(2,c)}")
        a(f"v_add_f32 v{V(1,c)}, v{V(1,c)}, v{V(3,c)}")
    for c in range(2): a(f"v_permlane16_swap_b32 v{V(0,c)}, v{V(1,c)}")
    a(f"v_add_f32 v4, v{V(0,0)}, v{V(1,0)}")
    a(f"v_add_f32 v5, v{V(0,1)}, v{V(1,1)}")
    a("v_lshlrev_b32 v6, 3, v1")
    a("s_mov_b32 s88, 0")
    a.label(L('fchk'))
    a("s_waitcnt vmcnt(0)")
    a("v_readfirstlane_b32 s43, v11")
    a("s_cmp_lg_u32 s43, 0")
    a(f"s_cbranch_scc1 {L('fok')}")
    a("s_add_u32 s88, s88, 1")
    a("s_cmp_ge_u32 s88, 0x40000")
    a(f"s_cbranch_scc1 {L('fok')}")
    a("global_load_dword v11, v10, s[12:13] sc1")
    a(f"s_branch {L('fchk')}")
    a.label(L('fok'))
    a(f"buffer_store_dwordx2 v[4:5], v6, s[32:35], s62 offen {XS}")
    ts(4)
    a("s_lshl_b32 s43, s18, 2")
    a("s_lshl_b32 s44, s21, 1")
    a("s_add_u32 s43, s43, s44")
    a("s_mul_i32 s43, s43, 56")
    a("s_lshl_b32 s44, s19, 2")
    a("s_add_u32 s43, s43, s44")
    a("s_lshl_b32 s44, s22, 1")
    a("s_add_u32 s43, s43, s44")
    a("s_lshl_b32 s43, s43, 10")
    a(f"s_add_u32 s54, s43, {WS_H1}")
    a("v_lshlrev_b32 v5, 4, v1")
    for tp in range(2):
        for k, n in enumerate((2, 3)):
            t = PK + 8*tp + 4*k
            for e in range(2):
                c = acc(n, 2*tp+e)
                a(f"v_cvt_pk_bf16_f32 v{t+2*e}, v{c}, v{c+1}")
                a(f"v_cvt_pk_bf16_f32 v{t+2*e+1}, v{c+2}, v{c+3}")
            if k == 0: a(f"s_add_u32 s43, s54, {tp*56*1024}")
            a(f"buffer_store_dwordx4 {r4(t)}, v5, s[32:35], s43 offen offset:{k*1024} {FL[cfg.get('sth1', 2)]}")
    a(f"s_branch {L('phase1')}")
    a.label(L('pure_mid'))
    def vq():
        a("s_lshl_b32 s43, s18, 7")
        a("s_lshl_b32 s44, s21, 6")
        a("s_add_u32 s43, s43, s44")
        a("v_add_u32 v4, s43, v2")
        a("v_lshlrev_b32 v4, 5, v4")
        a("v_lshl_add_u32 v4, v3, 3, v4")
    def qkv_out(n, ct_sgpr_expr, T2):
        a("s_cmp_lt_u32 s45, 32")
        a(f"s_cselect_b32 s44, {hex(f2u(QSCALE))}, 1.0")
        a("s_lshl_b32 s43, s45, 16")
        if WS_QKV: a(f"s_add_u32 s43, s43, {WS_QKV}")
        a(f"v_mov_b32 v8, s44")
        a(f"v_mov_b32 v9, s44")
        for tt in range(4):
            c = acc(n, tt); t = T2 + 2*tt
            a(f"v_pk_mul_f32 {r2(c)}, {r2(c)}, v[8:9]")
            a(f"v_pk_mul_f32 {r2(c+2)}, {r2(c+2)}, v[8:9]")
            a(f"v_cvt_pk_bf16_f32 v{t}, v{c}, v{c+1}")
            a(f"v_cvt_pk_bf16_f32 v{t+1}, v{c+2}, v{c+3}")
            a(f"buffer_store_dwordx2 {r2(t)}, v4, s[32:35], s43 offen offset:{tt*512} {ST}")
    vq()
    for n in range(4):
        a("s_lshl_b32 s45, s22, 2")
        a(f"s_add_u32 s45, s45, {84+n}")
        qkv_out(n, None, PK + 8*(n % 3))
    a.label(L('phase1'))
    a("s_mov_b32 s40, 0")
    loop(1)
    ts(5)
    a("v_and_b32 v2, 15, v1")
    a("v_lshrrev_b32 v3, 4, v1")
    vq()
    a("s_cmp_eq_u32 s19, 14")
    a(f"s_cbranch_scc1 {L('pure_tail')}")
    a("s_lshl_b32 s43, s21, 6")
    a("v_add_u32 v6, s43, v2")
    a("v_lshlrev_b32 v6, 3, v6")
    a(f"v_add_u32 v6, {EP}, v6")
    for tt in range(4): a(f"ds_read_b64 {r2(X[1]+2*tt)}, v6 offset:{tt*128}")
    a("s_lshl_b32 s47, s20, 12")
    a(f"s_add_u32 s47, s47, {EP+1024}")
    a("v_lshlrev_b32 v6, 5, v2")
    a("v_lshl_add_u32 v6, v3, 3, v6")
    a("v_add_u32 v6, s47, v6")
    a("s_waitcnt lgkmcnt(0)")
    for n in range(2):
        for tt in range(4):
            c = acc(n, tt); mr, r = X[1]+2*tt, X[1]+2*tt+1
            for i in range(4): a(f"v_fma_f32 v{c+i}, v{c+i}, v{r}, v{mr}")
            t = PK + 2*(n*4+tt)
            a(f"v_cvt_pk_bf16_f32 v{t}, v{c}, v{c+1}")
            a(f"v_cvt_pk_bf16_f32 v{t+1}, v{c+2}, v{c+3}")
            a(f"ds_write_b64 v6, {r2(t)} offset:{n*2048+tt*512}")
    a("v_lshlrev_b32 v6, 3, v2")
    a("v_lshl_add_u32 v6, v3, 8, v6")
    a("v_add_u32 v6, s47, v6")
    a("s_lshl_b32 s43, s19, 2")
    a("s_lshl_b32 s44, s22, 1")
    a("s_add_u32 s43, s43, s44")
    a("s_lshl_b32 s43, s43, 16")
    a("s_lshl_b32 s44, s18, 2")
    a("s_lshl_b32 s45, s21, 1")
    a("s_add_u32 s44, s44, s45")
    a("s_lshl_b32 s44, s44, 10")
    a("s_add_u32 s43, s43, s44")
    a(f"s_add_u32 s46, s43, {WS_Z2N}")
    a("s_add_u32 s47, s46, 65536")
    a("v_lshlrev_b32 v7, 4, v1")
    a("s_waitcnt lgkmcnt(0)")
    for n in range(2):
        for kk in range(2):
            for s in range(2):
                a(f"ds_read_b64_tr_b16 {r2(X[0]+4*(n*2+kk)+2*s)}, v6 offset:{n*2048+kk*1024+s*128}")
    a("s_mul_i32 s55, s19, 6")
    a("s_mul_i32 s44, s22, 3")
    a("s_add_u32 s55, s55, s44")
    a(f"s_add_u32 s45, s55, 0")
    qkv_out(4, None, W[0])
    a("s_waitcnt lgkmcnt(0)")
    for n in range(2):
        for kk in range(2):
            a(f"buffer_store_dwordx4 {r4(X[0]+4*(n*2+kk))}, v7, s[32:35], {'s46' if n==0 else 's47'} offen offset:{kk*1024} {ST}")
    for k in (1, 2):
        a(f"s_add_u32 s45, s55, {k}")
        qkv_out(4+k, None, W[0] + 8*k)
    a(f"s_branch {L('fin')}")
    a.label(L('pure_tail'))
    for k in range(2):
        a("s_lshl_b32 s45, s22, 1")
        a(f"s_add_u32 s45, s45, {92+k}")
        qkv_out(4+k, None, W[0] + 8*k)
    a(f"s_branch {L('fin')}")
    a.label(L('loader'))
    a("s_sub_u32 s20, s20, 4")
    ts.role(1)
    a("s_lshr_b32 s21, s20, 1")
    a("s_and_b32 s22, s20, 1")
    a("s_lshl_b32 s43, s19, 7")
    a("s_cmp_eq_u32 s21, 0")
    a("s_cselect_b32 s44, 1792, 0")
    a("s_add_u32 s43, s43, s44")
    a("s_lshl_b32 s44, s21, 7")
    a("s_add_u32 s44, s44, 2688")
    a("s_mul_i32 s45, s19, 3")
    a("s_lshr_b32 s45, s45, 1")
    a("s_add_u32 s45, s45, s21")
    a("s_lshl_b32 s45, s45, 7")
    a("s_cmp_eq_u32 s19, 14")
    a("s_cselect_b32 s43, s44, s43")
    a("s_cselect_b32 s45, 2944, s45")
    a("s_movk_i32 s36, 3584")
    a("s_cselect_b32 s36, 3072, s36")
    a("s_cselect_b32 s46, 0, 1")
    a("v_lshrrev_b32 v2, 3, v1")
    a("v_and_b32 v3, 7, v1")
    a("v_lshrrev_b32 v4, 1, v2")
    a("s_lshl_b32 s44, s18, 7")
    a("s_lshl_b32 s47, s20, 5")
    a("s_add_u32 s44, s44, s47")
    a("v_add_u32 v5, s44, v2")
    a("v_lshlrev_b32 v5, 10, v5")
    a("v_xor_b32 v6, v3, v4")
    a("v_xor_b32 v7, 4, v6")
    a("v_lshl_add_u32 v6, v6, 4, v5")
    a("v_lshl_add_u32 v7, v7, 4, v5")
    a(f"v_mov_b32 v{VX[0]}, v6")
    a(f"v_add_u32 v{VX[1]}, 7168, v7")
    a(f"v_add_u32 v{VX[2]}, {2*7168}, v6")
    a(f"v_add_u32 v{VX[3]}, {3*7168}, v7")
    a("v_and_b32 v5, 3, v2")
    a("v_lshrrev_b32 v6, 2, v2")
    a("v_lshl_add_u32 v5, v6, 3, v5")
    a("v_lshlrev_b32 v6, 1, v4")
    a("v_xor_b32 v6, v3, v6")
    a("v_lshlrev_b32 v6, 4, v6")
    a("s_lshl_b32 s48, s22, 5")
    a("v_add_u32 v5, s48, v5")
    for ph in range(2):
        st = 's36' if ph == 0 else 's37'
        if ph == 1: a("s_movk_i32 s37, 3072")
        a(f"v_mul_lo_u32 v7, v5, {st}")
        a("v_add_u32 v7, v7, v6")
        for b in range(4):
            h, s = b >> 1, b & 1
            a(f"s_mul_i32 s44, {st}, {16*h+4*s}")
            a(f"s_sub_u32 s44, s44, {b*1024}")
            a(f"v_add_u32 v{VW[ph][b]}, s44, v7")
    a("s_lshl_b32 s47, s20, 12")
    a("s_lshl_b32 s48, s22, 13")
    a("s_lshl_b32 s49, s21, 12")
    a("s_add_u32 s48, s48, s49")
    a("s_add_u32 s48, s48, 16384")
    a("s_cmp_eq_u32 s46, 1")
    a("s_waitcnt lgkmcnt(0)")
    a("s_cselect_b32 s28, s8, s6")
    a("s_cselect_b32 s29, s9, s7")
    a("s_add_u32 s28, s28, s43")
    a("s_addc_u32 s29, s29, 0")
    a("s_lshl_b32 s30, s36, 9")
    a("s_sub_u32 s30, s30, s43")
    a("s_mov_b32 s31, 0x20000")
    a("s_add_u32 s24, s6, s45")
    a("s_addc_u32 s25, s7, 0")
    a(f"s_mov_b32 s26, {512*3072}")
    a("s_sub_u32 s26, s26, s45")
    a("s_mov_b32 s27, 0x20000")
    srd(a, 84, 4, 2048*1024)
    srd(a, 32, 14, WS_END)
    LD = cfg.get('ld1', '')
    def issue_step(ph):
        a("s_add_u32 s45, s50, s23")
        a("s_and_b32 s45, s45, 7")
        a("s_lshl_b32 s46, s45, 7")
        a(f"s_lshl_b32 s44, {'s36' if ph == 0 else 's37'}, 6")
        a("s_mul_i32 s44, s44, s45")
        a("s_add_u32 m0, s51, s47")
        for i in range(4): a(f"buffer_load_dwordx4 v{VX[i]}, s[84:87], s46 offen offset:{i*1024} {LD} lds")
        a("s_add_u32 m0, s51, s48")
        S = 's[28:31]' if ph == 0 else 's[24:27]'
        for b in range(4): a(f"buffer_load_dwordx4 v{VW[ph][b]}, {S}, s44 offen offset:{b*1024} {LD} lds")
        a("s_add_u32 s50, s50, 1")
        a(f"s_add_u32 s51, s51, {SLOT}")
        a(f"s_and_b32 s51, s51, {NSLOT*SLOT-1}")
    a("s_mov_b32 s50, 0")
    a("s_mov_b32 s51, 0")
    rot = cfg.get('k1rot', 1)
    if rot == 0: a("s_mov_b32 s23, 0")
    elif rot == 1: a("s_and_b32 s23, s18, 7")
    elif rot == 2: a("s_and_b32 s23, s18, 1"); a("s_lshl_b32 s23, s23, 2")
    elif rot == 3: a("s_and_b32 s23, s18, 3"); a("s_lshl_b32 s23, s23, 1")
    issue_step(0); issue_step(0)
    ts(1)
    a("s_waitcnt vmcnt(8)")
    a("s_barrier")
    ts(2)
    issue_step(0); issue_step(0)
    a.label(L('lloop0'))
    a("s_waitcnt vmcnt(16)")
    a("s_barrier")
    issue_step(0)
    a("s_cmp_lt_u32 s50, 8")
    a(f"s_cbranch_scc1 {L('lloop0')}")
    a.label(L('lloop1'))
    a("s_waitcnt vmcnt(16)")
    a("s_barrier")
    issue_step(1)
    a("s_cmp_lt_u32 s50, 12")
    a(f"s_cbranch_scc1 {L('lloop1')}")
    PFM = 16 if cfg.get('pf', 1) == 1 else 0
    if PFM:
        srd(a, 80, 10, 2048*4096)
        a("s_lshr_b32 s43, s16, 1")
        a("s_lshl_b32 s43, s43, 21")
        a("s_lshl_b32 s44, s17, 16")
        a("s_add_u32 s43, s43, s44")
        a("s_lshl_b32 s44, s20, 14")
        a("s_add_u32 s43, s43, s44")
        a("v_lshlrev_b32 v8, 4, v1")
        for q in range(PFM):
            a(f"buffer_load_dwordx4 {r4(64+4*(q%8))}, v8, s[80:83], s43 offen offset:{(q%4)*1024}")
            if q % 4 == 3: a("s_add_u32 s43, s43, 4096")
    a.label(L('lloop2'))
    a(f"s_waitcnt vmcnt({16+PFM})")
    a("s_barrier")
    issue_step(1)
    a("s_cmp_lt_u32 s50, 15")
    a(f"s_cbranch_scc1 {L('lloop2')}")
    a("s_waitcnt vmcnt(16)")
    a("s_barrier")
    issue_step(1)
    a("s_cmp_lt_u32 s20, 2")
    a("s_cselect_b32 s46, 1, 0")
    a("s_cmp_eq_u32 s19, 14")
    a("s_cselect_b32 s46, 0, s46")
    a("s_cmp_eq_u32 s46, 1")
    a(f"s_cbranch_scc1 {L('lx')}")
    PFN = 8 if cfg.get('pf', 1) == 2 else 0
    if PFN:
        srd(a, 80, 10, 2048*4096)
        a("s_lshr_b32 s43, s16, 1")
        a("s_lshl_b32 s43, s43, 21")
        a("s_lshl_b32 s44, s17, 16")
        a("s_add_u32 s43, s43, s44")
        a("s_and_b32 s44, s20, 1")
        a("s_lshl_b32 s44, s44, 15")
        a("s_add_u32 s43, s43, s44")
        a("v_lshlrev_b32 v8, 4, v1")
    def pf_batch():
        for q in range(PFN):
            a(f"buffer_load_dwordx4 {r4(64+4*q)}, v8, s[80:83], s43 offen offset:{(q%4)*1024}")
            if q % 4 == 3: a("s_add_u32 s43, s43, 4096")
    a("s_waitcnt vmcnt(16)")
    a("s_barrier")
    pf_batch()
    a(f"s_waitcnt vmcnt({8+PFN})")
    a("s_barrier")
    pf_batch()
    a(f"s_waitcnt vmcnt({2*PFN})")
    a("s_barrier")
    pf_batch()
    a("s_barrier")
    pf_batch()
    if cfg.get('pfwait', 1): a("s_waitcnt vmcnt(0)")
    a(f"s_branch {L('fin2') if not cfg.get('pfwait', 1) else L('fin')}")
    a.label(L('lx'))
    a("s_lshl_b32 s43, s20, 6")
    a("v_add_u32 v9, s43, v1")
    a("v_lshlrev_b32 v7, 3, v9")
    a("s_mul_i32 s54, s18, 28672")
    a(f"s_add_u32 s54, s54, {WS_STAT}")
    a("s_mov_b32 s88, 0")
    P = 64
    def poll_loads():
        a("s_mov_b32 s43, s54")
        for q in range(28):
            if q % 4 == 0 and q: a("s_add_u32 s43, s43, 4096")
            a(f"buffer_load_dwordx2 {r2(P+2*q)}, v7, s[32:35], s43 offen offset:{(q%4)*1024} {XS}")
    poll_loads()
    a("s_waitcnt vmcnt(44)")
    a("s_barrier")
    a("s_waitcnt vmcnt(36)")
    a("s_barrier")
    ts(3)
    a.label(L('pchk'))
    a("s_waitcnt vmcnt(0)")
    a(f"v_max_u32 v10, v{P}, v{P+1}")
    for q in range(2, 56, 2): a(f"v_max3_u32 v10, v10, v{P+q}, v{P+q+1}")
    a("v_cmp_eq_u32 vcc, -1, v10")
    a("s_add_u32 s88, s88, 1")
    a("s_cmp_ge_u32 s88, 0x20000")
    a(f"s_cbranch_scc1 {L('polled')}")
    a(f"s_cbranch_vccz {L('polled')}")
    poll_loads()
    a(f"s_branch {L('pchk')}")
    a.label(L('polled'))
    ts(5)
    if ts.on: a("s_mov_b32 s62, s88")
    for q in range(1, 28): a(f"v_pk_add_f32 {r2(P)}, {r2(P)}, {r2(P+2*q)}")
    m, e2 = P, P+1
    a(f"v_mul_f32 v{m}, {hex(f2u(1.0/896))}, v{m}")
    a(f"v_mul_f32 v{e2}, {hex(f2u(1.0/896))}, v{e2}")
    a(f"v_fma_f32 v{e2}, -v{m}, v{m}, v{e2}")
    a(f"v_max_f32 v{e2}, 0, v{e2}")
    a(f"v_add_f32 v{e2}, {hex(f2u(1e-5))}, v{e2}")
    a(f"v_rsq_f32 v{e2}, v{e2}")
    a(f"v_mul_f32 v{m}, v{m}, v{e2}")
    a(f"v_sub_f32 v{m}, 0, v{m}")
    a(f"v_add_u32 v7, {EP}, v7")
    a(f"ds_write_b64 v7, {r2(m)}")
    a("s_waitcnt vmcnt(0) lgkmcnt(0)")
    a("s_barrier")
    a("s_barrier")
    a(f"s_branch {L('fin')}")
    a.label(L('spare'))
    a("s_waitcnt lgkmcnt(0)")
    srd(a, 32, 14, WS_END)
    a("s_mul_i32 s43, s18, 28672")
    a("s_lshl_b32 s44, s20, 10")
    a("s_add_u32 s43, s43, s44")
    a(f"s_add_u32 s43, s43, {WS_STAT}")
    a("v_lshlrev_b32 v2, 4, v1")
    for r in range(4, 8): a(f"v_mov_b32 v{r}, -1")
    for q in range(3):
        a("buffer_store_dwordx4 v[4:7], v2, s[32:35], s43 offen sc1")
        a("s_add_u32 s43, s43, 8192")
    a("s_cmp_lt_u32 s20, 4")
    a(f"s_cbranch_scc0 {L('rs3')}")
    a("buffer_store_dwordx4 v[4:7], v2, s[32:35], s43 offen sc1")
    a.label(L('rs3'))
    a("s_waitcnt vmcnt(0)")
    a("s_barrier")
    a("s_cmp_eq_u32 s20, 0")
    a(f"s_cbranch_scc0 {L('rs4')}")
    a("s_lshl_b32 s43, s18, 2")
    a("v_mov_b32 v2, s43")
    a("v_mov_b32 v3, 1")
    a("s_mov_b64 s[52:53], exec")
    a("s_mov_b64 exec, 1")
    a("global_store_dword v2, v3, s[12:13] sc1")
    a("s_mov_b64 exec, s[52:53]")
    a.label(L('rs4'))
    a("s_lshl_b32 s18, s18, 7")
    a("s_lshl_b32 s43, s20, 4")
    a("s_add_u32 s18, s18, s43")
    srd(a, 24, 4, 2048*1024)
    srd(a, 28, 58, 1024)
    srd(a, 32, 14, WS_END)
    a("v_and_b32 v2, 15, v1")
    a("v_lshrrev_b32 v3, 4, v1")
    a("v_lshlrev_b32 v4, 4, v2")
    for q in range(4): a(f"buffer_load_dwordx4 {r4(16+4*q)}, v4, s[28:31], 0 offen offset:{256*q}")
    a("v_add_u32 v5, s18, v3")
    a("v_lshl_add_u32 v5, v5, 10, v4")
    for it in range(4):
        for q in range(4): a(f"buffer_load_dwordx4 {r4(64+16*it+4*q)}, v5, s[24:27], 0 offen offset:{256*q}")
        a("v_add_u32 v5, 4096, v5")
    a("v_add_u32 v6, s18, v3")
    a("v_lshlrev_b32 v6, 2, v6")
    npf2 = 0
    for it in range(4):
        a(f"s_waitcnt vmcnt({4*(3-it)+npf2})")
        b = 64+16*it
        a(f"v_dot2_f32_bf16 v8, v{b}, v16, 0")
        for r in range(1, 16): a(f"v_dot2_f32_bf16 v8, v{b+r}, v{16+r}, v8")
        a("s_nop 2")
        for sh in ('row_shr:8', 'row_shr:4', 'row_shr:2', 'row_shr:1'):
            a(f"v_add_f32_dpp v8, v8, v8 {sh} row_mask:0xf bank_mask:0xf bound_ctrl:1")
        a(f"v_mul_f32 v8, {hex(f2u(-LOG2E))}, v8")
        a("v_exp_f32 v8, v8")
        a("v_add_f32 v8, 1.0, v8")
        a("v_rcp_f32 v8, v8")
        a(f"v_mov_b32 v{32+it}, v8")
    a("v_cmp_eq_u32 s[52:53], 15, v2")
    a("s_mov_b64 s[54:55], exec")
    a("s_and_b64 exec, exec, s[52:53]")
    a(f"s_mov_b32 s51, {WS_G}")
    for it in range(4):
        a(f"buffer_store_dword v{32+it}, v6, s[32:35], s51 offen offset:{16*it}")
    a("s_mov_b64 exec, s[54:55]")
    if cfg.get('pf', 1):
        a("s_lshr_b32 s48, s18, 4")
        a("v_lshlrev_b32 v9, 4, v1")
        srd(a, 36, 60, 512*1024)
        srd(a, 44, 56, 896*1024)
        a("s_lshl_b32 s49, s48, 12")
        for q in range(4): a(f"buffer_load_dwordx4 {r4(128+4*q)}, v9, s[36:39], s49 offen offset:{q*1024}")
        a("s_mul_i32 s49, s48, 7168")
        for q in range(7):
            if q == 4: a("s_add_u32 s49, s49, 4096")
            a(f"buffer_load_dwordx4 {r4(144+4*q)}, v9, s[44:47], s49 offen offset:{(q%4)*1024}")
        srd(a, 80, 10, 2048*4096)
        a("s_lshr_b32 s43, s16, 1")
        a("s_lshl_b32 s43, s43, 21")
        a("s_lshl_b32 s44, s17, 16")
        a("s_add_u32 s43, s43, s44")
        a("s_lshl_b32 s44, s20, 13")
        a("s_add_u32 s43, s43, s44")
        for q in range(8):
            a(f"buffer_load_dwordx4 {r4(64+4*q)}, v9, s[80:83], s43 offen offset:{(q%4)*1024}")
            if q == 3: a("s_add_u32 s43, s43, 4096")
        a("s_waitcnt vmcnt(0)")
    a.label(L('fin'))
    if ts.on: a("s_waitcnt vmcnt(0)")
    ts(7)
    ts.flush()
    a.label(L('fin2'))
    a.label(L('end'))
    a("s_endpgm")
    a.check_protected(list(range(4, 16)) + list(range(56, 62)))
    n = a.fix_hazards()
    return a, n
```

```python
import sys, importlib
sys.path.insert(0, 'gen')
from common import *
import k1
def make(cfg=None, kernels=('k1','k2','k3')):
    base = dict(k2U=4, prio_attn=2, prio_attn_after=0, prio_gemm=1, k1rot=3, pf=2)
    base.update(cfg or {})
    cfg = base
    mods = []
    for k in kernels:
        mods.append(importlib.import_module(k))
    hdr = open('gated_mix__sliding_block__mixer_gmlp__prompt.s.ref').read().split('\n')
    top = [l for l in hdr if l.startswith(';') and '@launch' not in l and 'Override launch' not in l and 'grid=ceil' not in l]
    top = top[:14]
    out = '\n'.join(top) + '\n'
    for m in mods:
        out += f"; @launch kernel={m.NAME} grid=({m.GRID},1,1) block=({m.BLOCK},1,1) lds={m.LDS_BYTES}\n"
    out += '.amdgcn_target "amdgcn-amd-amdhsa--gfx950"\n.text\n'
    descs = ''
    for m in mods:
        a, n = m.build(cfg)
        out += kernel_header(m.NAME) + a.text()
        descs += '.p2align 6\n' + kernel_desc(m.NAME, m.VGPRS, getattr(m, 'AGPRS', 0))
    out += 'gm_code_end:\n    s_endpgm\n'
    out += '.section .rodata,"a"\n' + descs
    return out
if __name__ == '__main__':
    ks = sys.argv[2].split(',') if len(sys.argv) > 2 else ('k1','k2','k3')
    cfg = {}
    for kv in sys.argv[3:]:
        k, v = kv.split('='); cfg[k] = int(v)
    txt = make(cfg, ks)
    path = sys.argv[1] if len(sys.argv) > 1 else 'gated_mix__sliding_block__mixer_gmlp__prompt.s'
    open(path, 'w').write(txt)
    print('wrote', path, len(txt), 'bytes')
```

```python
S = 2048; D = 512
import os as _os
WS_BASE = int(_os.environ.get('WSBASE', '0'), 0)
WS_QKV  = WS_BASE + 0x0000000
WS_H1   = WS_BASE + 0x0600000
WS_Z2N  = WS_BASE + 0x0A00000
WS_A3   = WS_BASE + 0x0E00000
WS_STAT = WS_BASE + 0x1400000
WS_G    = WS_BASE + 0x1480000
WS_END  = WS_BASE + 0x1500000
KA_X, KA_WQKV, KA_WO, KA_BX, KA_WIN, KA_WSP, KA_BSP, KA_WOUT, KA_GATE, KA_OUT, KA_DBG, KA_WS = [8*i for i in range(12)]
import math
LOG2E = 1.4426950408889634
def f2u(x):
    import struct
    return struct.unpack('<I', struct.pack('<f', x))[0]
GELU_C0 = -2.0*math.sqrt(2.0/math.pi)*LOG2E
GELU_C1 = GELU_C0*0.044715
QSCALE = 0.25*LOG2E

def kernel_header(name):
    return f""".globl {name}
.p2align 8
.type {name},@function
{name}:
"""
def kernel_desc(name, vgpr, agpr=0, sgpr=102):
    acc = (vgpr + 3)//4*4
    return f""".amdhsa_kernel {name}
  .amdhsa_next_free_vgpr {acc + agpr}
  .amdhsa_next_free_sgpr {sgpr}
  .amdhsa_accum_offset {acc}
  .amdhsa_group_segment_fixed_size 0
  .amdhsa_kernarg_size 96
  .amdhsa_user_sgpr_count 2
  .amdhsa_user_sgpr_kernarg_segment_ptr 1
  .amdhsa_system_sgpr_workgroup_id_x 1
  .amdhsa_float_denorm_mode_32 3
.end_amdhsa_kernel
"""
def srd(a, s, ptr, nbytes, add=None):
    if add is None:
        a(f"s_mov_b32 s{s}, s{ptr}")
        a(f"s_mov_b32 s{s+1}, s{ptr+1}")
    else:
        a(f"s_add_u32 s{s}, s{ptr}, {add}")
        a(f"s_addc_u32 s{s+1}, s{ptr+1}, 0")
    a(f"s_mov_b32 s{s+2}, {nbytes}")
    a(f"s_mov_b32 s{s+3}, 0x20000")

WS_TS = WS_BASE + 0x1600000
class Stamper:
    def __init__(self, a, cfg, kidx):
        self.a = a; self.on = cfg.get('ts', False); self.k = kidx; self.n = 0
    def init(self):
        if self.on: self.a("s_mov_b32 s63, 0")
    def role(self, r):
        if self.on: self.a(f"s_mov_b32 s63, {32*r}")
    def __call__(self, idx):
        if self.on: self.a(f"{'s_memtime' if self.on == 2 else 's_memrealtime'} s[{64+2*idx}:{65+2*idx}]")
    def flush(self, wave_sgpr='s20', nst=8):
        if not self.on: return
        a = self.a
        lab = 'TS_k%d' % self.k
        a(f"s_cmp_eq_u32 {wave_sgpr}, 0")
        a(f"s_cbranch_scc0 {lab}")
        a("s_waitcnt lgkmcnt(0)")
        a(f"s_load_dwordx2 s[96:97], s[0:1], {KA_WS}")
        a("s_lshl_b32 s98, s2, 6")
        a(f"s_add_u32 s98, s98, {WS_TS + self.k*32768}")
        a("s_add_u32 s98, s98, s63")
        a("s_waitcnt lgkmcnt(0)")
        a("s_add_u32 s96, s96, s98")
        a("s_addc_u32 s97, s97, 0")
        a("v_mov_b32 v250, 0")
        for i in range(nst):
            a(f"v_mov_b32 v251, s{64+2*i}")
            a(f"global_store_dword v250, v251, s[96:97] offset:{4*i}")
        a("s_cmp_eq_u32 s63, 0")
        a(f"s_cbranch_scc1 {lab}")
        a("s_waitcnt vmcnt(0)")
        a("v_mov_b32 v251, s62")
        a("global_store_dword v250, v251, s[96:97] offset:28")
        a.label(lab)
```

```python
S = 2048; D = 512
import os as _os
WS_BASE = int(_os.environ.get('WSBASE', '0'), 0)
WS_QKV  = WS_BASE + 0x0000000
WS_H1   = WS_BASE + 0x0600000
WS_Z2N  = WS_BASE + 0x0A00000
WS_A3   = WS_BASE + 0x0E00000
WS_STAT = WS_BASE + 0x1400000
WS_G    = WS_BASE + 0x1480000
WS_FLAG = WS_BASE + 0x1490000
WS_END  = WS_BASE + 0x1500000
KA_X, KA_WQKV, KA_WO, KA_BX, KA_WIN, KA_WSP, KA_BSP, KA_WOUT, KA_GATE, KA_OUT, KA_DBG, KA_WS = [8*i for i in range(12)]
import math
LOG2E = 1.4426950408889634
def f2u(x):
    import struct
    return struct.unpack('<I', struct.pack('<f', x))[0]
GELU_C0 = -2.0*math.sqrt(2.0/math.pi)*LOG2E
GELU_C1 = GELU_C0*0.044715
QSCALE = 0.25*LOG2E

def kernel_header(name):
    return f""".globl {name}
.p2align 8
.type {name},@function
{name}:
"""
def kernel_desc(name, vgpr, agpr=0, sgpr=102):
    acc = (vgpr + 3)//4*4
    return f""".amdhsa_kernel {name}
  .amdhsa_next_free_vgpr {acc + agpr}
  .amdhsa_next_free_sgpr {sgpr}
  .amdhsa_accum_offset {acc}
  .amdhsa_group_segment_fixed_size 0
  .amdhsa_kernarg_size 96
  .amdhsa_user_sgpr_count 2
  .amdhsa_user_sgpr_kernarg_segment_ptr 1
  .amdhsa_system_sgpr_workgroup_id_x 1
  .amdhsa_float_denorm_mode_32 3
.end_amdhsa_kernel
"""
def srd(a, s, ptr, nbytes, add=None):
    if add is None:
        a(f"s_mov_b32 s{s}, s{ptr}")
        a(f"s_mov_b32 s{s+1}, s{ptr+1}")
    else:
        a(f"s_add_u32 s{s}, s{ptr}, {add}")
        a(f"s_addc_u32 s{s+1}, s{ptr+1}, 0")
    a(f"s_mov_b32 s{s+2}, {nbytes}")
    a(f"s_mov_b32 s{s+3}, 0x20000")

WS_TS = WS_BASE + 0x1600000
class Stamper:
    def __init__(self, a, cfg, kidx):
        self.a = a; self.on = cfg.get('ts', False); self.k = kidx; self.n = 0
    def init(self):
        if self.on: self.a("s_mov_b32 s63, 0")
    def role(self, r):
        if self.on: self.a(f"s_mov_b32 s63, {32*r}")
    def __call__(self, idx):
        if self.on == 3 and idx not in (0, 7): return
        if self.on: self.a(f"{'s_memtime' if self.on == 2 else 's_memrealtime'} s[{64+2*idx}:{65+2*idx}]")
    def flush(self, wave_sgpr='s20', nst=8):
        if not self.on: return
        a = self.a
        lab = 'TS_k%d' % self.k
        a(f"s_cmp_eq_u32 {wave_sgpr}, 0")
        a(f"s_cbranch_scc0 {lab}")
        a("s_waitcnt lgkmcnt(0)")
        a(f"s_load_dwordx2 s[96:97], s[0:1], {KA_WS}")
        a("s_lshl_b32 s98, s2, 6")
        a(f"s_add_u32 s98, s98, {WS_TS + self.k*32768}")
        a("s_add_u32 s98, s98, s63")
        a("s_waitcnt lgkmcnt(0)")
        a("s_add_u32 s96, s96, s98")
        a("s_addc_u32 s97, s97, 0")
        a("v_mov_b32 v250, 0")
        for i in range(nst):
            a(f"v_mov_b32 v251, s{64+2*i}")
            a(f"global_store_dword v250, v251, s[96:97] offset:{4*i}")
        a("s_cmp_eq_u32 s63, 0")
        a(f"s_cbranch_scc1 {lab}")
        a("s_waitcnt vmcnt(0)")
        a("v_mov_b32 v251, s62")
        a("global_store_dword v250, v251, s[96:97] offset:28")
        a.label(lab)

def code_prefetch(a, first_label, last_label, idx_sgpr, nper, uid, vtmp=96, dst=None):
    lab = f"PC_{uid}"
    a("s_getpc_b64 s[92:93]")
    a.label(lab)
    a(f"s_mov_b32 s94, {first_label}-{lab}")
    a("s_ashr_i32 s95, s94, 31")
    a("s_add_u32 s92, s92, s94")
    a("s_addc_u32 s93, s93, s95")
    a(f"s_mov_b32 s94, {last_label}-{first_label}")
    a("s_mov_b32 s95, 0x20000")
    a(f"s_mul_i32 s91, {idx_sgpr}, {nper*1024}")
    a(f"v_lshlrev_b32 v{vtmp}, 4, v1")
    for q in range(nper):
        if dst is None: a(f"buffer_load_dwordx4 v[{vtmp+4+4*q}:{vtmp+7+4*q}], v{vtmp}, s[92:95], s91 offen offset:{(q%4)*1024}")
        else: a(f"buffer_load_dword v{dst}, v{vtmp}, s[92:95], s91 offen offset:{(q%4)*1024}")
        if q % 4 == 3: a("s_add_u32 s91, s91, 4096")
```

```python
from asmlib import *
from common import *

NAME = 'gm_k1_kernel'
SLOT = 32768
NSLOT = 4
EP = NSLOT*SLOT
LDS_BYTES = EP + 1024 + 16384
GRID = 256
BLOCK = 512
VGPRS = 256
HUGE = 0x7ff00000
SENT = 0xffffffff

ACC = 16
X = [128, 144]
W = [160, 176]
XA = [216, 217]
WA = [218+i for i in range(7)]
PK = 192
VX = [16+i for i in range(4)]
VW = [[20+i for i in range(4)], [24+i for i in range(4)]]
def acc(n, tt): return ACC + (n*4+tt)*4
def r4(b): return f"v[{b}:{b+3}]"
def r2(b): return f"v[{b}:{b+1}]"

def gelu_pairs(a, regs, t0, cpair0, cpair1, one, G=4):
    for k in range(0, len(regs), G):
        grp = regs[k:k+G]
        T = [t0 + 2*i for i in range(len(grp))]
        for x, t in zip(grp, T): a(f"v_pk_mul_f32 {r2(t)}, {r2(x)}, {r2(x)}")
        for x, t in zip(grp, T): a(f"v_pk_fma_f32 {r2(t)}, {r2(t)}, {r2(cpair1)}, {r2(cpair0)}")
        for x, t in zip(grp, T): a(f"v_pk_mul_f32 {r2(t)}, {r2(t)}, {r2(x)}")
        for x, t in zip(grp, T):
            a(f"v_exp_f32 v{t}, v{t}"); a(f"v_exp_f32 v{t+1}, v{t+1}")
        for x, t in zip(grp, T): a(f"v_pk_add_f32 {r2(t)}, {r2(t)}, {r2(one)}")
        for x, t in zip(grp, T):
            a(f"v_rcp_f32 v{t}, v{t}"); a(f"v_rcp_f32 v{t+1}, v{t+1}")
        for x, t in zip(grp, T): a(f"v_pk_mul_f32 {r2(x)}, {r2(x)}, {r2(t)}")

def build(cfg):
    a = Asm()
    L = lambda s: f"K1_{s}"
    FL = {0: '', 1: 'sc0 sc1', 2: 'sc1'}
    ST = FL[cfg.get('st1', 2)]
    XS = 'sc1'
    a(f"s_cmp_ge_u32 s2, 256")
    a(f"s_cbranch_scc1 {L('end')}")
    ts = Stamper(a, cfg, 0)
    ts.init()
    for i in range(8): ts(i)
    a(f"s_load_dwordx4 s[4:7], s[0:1], {KA_X}")
    a(f"s_load_dwordx4 s[8:11], s[0:1], {KA_WIN}")
    a(f"s_load_dwordx4 s[12:15], s[0:1], {KA_DBG}")
    a(f"s_load_dwordx4 s[56:59], s[0:1], {KA_WOUT}")
    a(f"s_load_dwordx2 s[60:61], s[0:1], {KA_WO}")
    a("v_lshrrev_b32 v2, 6, v0")
    a("v_and_b32 v1, 63, v0")
    a("v_readfirstlane_b32 s20, v2")
    a("s_and_b32 s16, s2, 7")
    a("s_lshr_b32 s17, s2, 3")
    a("s_lshr_b32 s18, s16, 2")
    a("s_lshl_b32 s18, s18, 3")
    a("s_and_b32 s43, s16, 3")
    a("s_mul_i32 s44, s43, 30")
    a("s_add_u32 s44, s44, s17")
    a("s_lshr_b32 s19, s44, 3")
    a("s_and_b32 s44, s44, 7")
    a("s_lshl_b32 s43, s43, 1")
    a("s_add_u32 s43, s43, s17")
    a("s_sub_u32 s43, s43, 30")
    a("s_cmp_ge_u32 s17, 30")
    a("s_cselect_b32 s44, s43, s44")
    a("s_add_u32 s18, s18, s44")
    a("s_cmp_ge_u32 s17, 30")
    a(f"s_cbranch_scc1 {L('spare')}")
    a("s_cmp_ge_u32 s20, 4")
    a(f"s_cbranch_scc1 {L('loader')}")
    a("s_lshr_b32 s21, s20, 1")
    a("s_and_b32 s22, s20, 1")
    a("s_mul_i32 s43, s18, 14")
    a("s_add_u32 s43, s43, s19")
    a("s_lshl_b32 s43, s43, 1")
    a("s_add_u32 s43, s43, s22")
    a("s_lshl_b32 s43, s43, 10")
    a("s_lshl_b32 s44, s21, 9")
    a("s_add_u32 s43, s43, s44")
    a(f"s_add_u32 s62, s43, {WS_STAT}")
    a("v_and_b32 v2, 15, v1")
    a("v_lshrrev_b32 v3, 4, v1")
    a("v_lshrrev_b32 v4, 1, v2")
    a("v_xor_b32 v4, v4, v3")
    a("s_lshl_b32 s43, s21, 6")
    a("v_add_u32 v5, s43, v2")
    a("v_lshlrev_b32 v5, 7, v5")
    a(f"v_lshl_add_u32 v{XA[0]}, v4, 4, v5")
    a(f"v_xor_b32 v{XA[1]}, 64, v{XA[0]}")
    a("v_lshrrev_b32 v4, 2, v1")
    a("v_and_b32 v4, 7, v4")
    a("v_lshrrev_b32 v5, 5, v1")
    a("v_lshlrev_b32 v5, 11, v5")
    a("v_lshl_add_u32 v5, v4, 7, v5")
    a("v_lshrrev_b32 v4, 1, v4")
    a("v_lshl_add_u32 v5, v4, 5, v5")
    a("v_and_b32 v4, 3, v1")
    a("v_lshl_add_u32 v5, v4, 3, v5")
    a("s_and_b32 s48, s19, 1")
    a("s_lshl_b32 s48, s48, 1")
    a("s_mul_i32 s49, s22, 3")
    a("s_add_u32 s48, s48, s49")
    a("s_lshl_b32 s49, s22, 1")
    a("s_lshl_b32 s50, s22, 2")
    for n in range(7):
        if n < 2: a(f"s_add_u32 s43, s49, {n}"); a(f"s_add_u32 s44, s50, {n}")
        elif n < 4: a(f"s_add_u32 s43, s49, {4+n-2}"); a(f"s_add_u32 s44, s50, {n}")
        else: a(f"s_add_u32 s43, s48, {n-4}"); a(f"s_add_u32 s44, s49, {min(n-4,1)}")
        a("s_cmp_eq_u32 s19, 14")
        a("s_cselect_b32 s43, s44, s43")
        a("s_and_b32 s44, s43, 3")
        a("s_lshl_b32 s44, s44, 5")
        a("s_lshr_b32 s43, s43, 2")
        a("s_lshl_b32 s43, s43, 12")
        a("s_add_u32 s43, s43, 16384")
        a(f"v_xor_b32 v{WA[n]}, s44, v5")
        a(f"v_add_u32 v{WA[n]}, s43, v{WA[n]}")
    for r in range(ACC, ACC+112): a(f"v_mov_b32 v{r}, 0")
    def tiles(ph): return range(4) if ph == 0 else range(4, 7)
    def reads(ph, ks, buf):
        out = []
        for tt in range(4):
            out.append(f"ds_read_b128 {r4(X[buf]+4*tt)}, v{XA[ks]} offset:{tt*2048}")
        for q, n in enumerate(tiles(ph)):
            for s in range(2):
                out.append(f"ds_read_b64_tr_b16 {r2(W[buf]+4*q+2*s)}, v{WA[n]} offset:{ks*8192+s*1024}")
        return out
    def mfmas(ph, buf):
        return [f"v_mfma_f32_16x16x32_bf16 {r4(acc(n,tt))}, {r4(W[buf]+4*q)}, {r4(X[buf]+4*tt)}, {r4(acc(n,tt))}"
                for q, n in enumerate(tiles(ph)) for tt in range(4)]
    a("s_mov_b32 s40, 0")
    a("s_mov_b32 s41, 0")
    a("s_waitcnt lgkmcnt(0)")
    srd(a, 32, 14, WS_END)
    ts(1)
    a("s_barrier")
    ts(2)
    for t in reads(0, 0, 0): a(t)
    def adv_addr(regs):
        return [f"v_add_u32 v{r}, s51, v{r}" for r in regs]
    def loop(ph):
        lab = L(f'loop{ph}')
        a("s_waitcnt lgkmcnt(0)")
        a.label(lab)
        sal = ["s_cmp_eq_u32 s41, %d" % (NSLOT-1), f"s_mov_b32 s51, {SLOT}", f"s_cselect_b32 s51, {(-(NSLOT-1)*SLOT) & 0xffffffff}, s51",
               "s_add_u32 s41, s41, 1", f"s_and_b32 s41, s41, {NSLOT-1}", "s_add_u32 s40, s40, 1"]
        for t in interleave(mfmas(ph, 0), reads(ph, 1, 1) + sal): a(t)
        a("s_waitcnt lgkmcnt(0)")
        a("s_barrier")
        rd = reads(ph, 0, 0)
        nW = len(list(tiles(ph)))
        fill = [f"v_add_u32 v{XA[0]}, s51, v{XA[0]}"] + rd[:4] + [f"v_add_u32 v{XA[1]}, s51, v{XA[1]}"]
        cur = list(tiles(ph)); oth = [n for n in range(7) if n not in cur]
        for q, n in enumerate(cur):
            fill.append(f"v_add_u32 v{WA[n]}, s51, v{WA[n]}")
            fill += rd[4+2*q:6+2*q]
        fill += adv_addr([WA[n] for n in oth])
        fill += ["s_cmp_lt_u32 s40, 8"]
        for t in interleave(mfmas(ph, 1), fill): a(t)
        if ph == 0:
            pass
        a("s_waitcnt lgkmcnt(0)")
        a(f"s_cbranch_scc1 {lab}")
    loop(0)
    ts(3)
    a("v_and_b32 v2, 15, v1")
    a("v_lshrrev_b32 v3, 4, v1")
    for t in reads(1, 0, 0): a(t)
    a("s_cmp_eq_u32 s19, 14")
    a(f"s_cbranch_scc1 {L('pure_mid')}")
    a("s_lshl_b32 s43, s18, 2")
    a("v_mov_b32 v10, s43")
    a("global_load_dword v11, v10, s[12:13] sc1")
    CP0, CP1, ONE = 226, 228, 230
    for r in (CP0, CP0+1): a(f"v_mov_b32 v{r}, {hex(f2u(GELU_C0))}")
    for r in (CP1, CP1+1): a(f"v_mov_b32 v{r}, {hex(f2u(GELU_C1))}")
    for r in (ONE, ONE+1): a(f"v_mov_b32 v{r}, 1.0")
    zregs = [acc(n, tt) + 2*h for n in range(2) for tt in range(4) for h in range(2)]
    gelu_pairs(a, zregs, PK, CP0, CP1, ONE)
    T = PK
    for tt in range(4):
        z = [acc(0, tt), acc(0, tt)+2, acc(1, tt), acc(1, tt)+2]
        t = T + 6*tt
        a(f"v_pk_add_f32 {r2(t)}, {r2(z[0])}, {r2(z[1])}")
        a(f"v_pk_mul_f32 {r2(t+2)}, {r2(z[0])}, {r2(z[0])}")
        a(f"v_pk_add_f32 {r2(t+4)}, {r2(z[2])}, {r2(z[3])}")
        a(f"v_pk_fma_f32 {r2(t+2)}, {r2(z[1])}, {r2(z[1])}, {r2(t+2)}")
        a(f"v_pk_add_f32 {r2(t)}, {r2(t)}, {r2(t+4)}")
        a(f"v_pk_fma_f32 {r2(t+2)}, {r2(z[2])}, {r2(z[2])}, {r2(t+2)}")
        a(f"v_pk_fma_f32 {r2(t+2)}, {r2(z[3])}, {r2(z[3])}, {r2(t+2)}")
        a(f"v_add_f32 v{t}, v{t}, v{t+1}")
        a(f"v_add_f32 v{t+1}, v{t+2}, v{t+3}")
    V = lambda tt, c: T + 6*tt + c
    for c in range(2):
        a(f"v_permlane32_swap_b32 v{V(0,c)}, v{V(2,c)}")
        a(f"v_permlane32_swap_b32 v{V(1,c)}, v{V(3,c)}")
    for c in range(2):
        a(f"v_add_f32 v{V(0,c)}, v{V(0,c)}, v{V(2,c)}")
        a(f"v_add_f32 v{V(1,c)}, v{V(1,c)}, v{V(3,c)}")
    for c in range(2): a(f"v_permlane16_swap_b32 v{V(0,c)}, v{V(1,c)}")
    a(f"v_add_f32 v4, v{V(0,0)}, v{V(1,0)}")
    a(f"v_add_f32 v5, v{V(0,1)}, v{V(1,1)}")
    a("v_lshlrev_b32 v6, 3, v1")
    a("s_mov_b32 s88, 0")
    a.label(L('fchk'))
    a("s_waitcnt vmcnt(0)")
    a("v_readfirstlane_b32 s43, v11")
    a("s_cmp_lg_u32 s43, 0")
    a(f"s_cbranch_scc1 {L('fok')}")
    a("s_add_u32 s88, s88, 1")
    a("s_cmp_ge_u32 s88, 0x40000")
    a(f"s_cbranch_scc1 {L('fok')}")
    a("global_load_dword v11, v10, s[12:13] sc1")
    a(f"s_branch {L('fchk')}")
    a.label(L('fok'))
    a(f"buffer_store_dwordx2 v[4:5], v6, s[32:35], s62 offen {XS}")
    ts(4)
    a("s_lshl_b32 s43, s18, 2")
    a("s_lshl_b32 s44, s21, 1")
    a("s_add_u32 s43, s43, s44")
    a("s_mul_i32 s43, s43, 56")
    a("s_lshl_b32 s44, s19, 2")
    a("s_add_u32 s43, s43, s44")
    a("s_lshl_b32 s44, s22, 1")
    a("s_add_u32 s43, s43, s44")
    a("s_lshl_b32 s43, s43, 10")
    a(f"s_add_u32 s54, s43, {WS_H1}")
    a("v_lshlrev_b32 v5, 4, v1")
    for tp in range(2):
        for k, n in enumerate((2, 3)):
            t = PK + 8*tp + 4*k
            for e in range(2):
                c = acc(n, 2*tp+e)
                a(f"v_cvt_pk_bf16_f32 v{t+2*e}, v{c}, v{c+1}")
                a(f"v_cvt_pk_bf16_f32 v{t+2*e+1}, v{c+2}, v{c+3}")
            if k == 0: a(f"s_add_u32 s43, s54, {tp*56*1024}")
            a(f"buffer_store_dwordx4 {r4(t)}, v5, s[32:35], s43 offen offset:{k*1024} {FL[cfg.get('sth1', 2)]}")
    a(f"s_branch {L('phase1')}")
    a.label(L('pure_mid'))
    def vq():
        a("s_lshl_b32 s43, s18, 7")
        a("s_lshl_b32 s44, s21, 6")
        a("s_add_u32 s43, s43, s44")
        a("v_add_u32 v4, s43, v2")
        a("v_lshlrev_b32 v4, 5, v4")
        a("v_lshl_add_u32 v4, v3, 3, v4")
    def qkv_out(n, ct_sgpr_expr, T2):
        a("s_cmp_lt_u32 s45, 32")
        a(f"s_cselect_b32 s44, {hex(f2u(QSCALE))}, 1.0")
        a("s_lshl_b32 s43, s45, 16")
        if WS_QKV: a(f"s_add_u32 s43, s43, {WS_QKV}")
        a(f"v_mov_b32 v8, s44")
        a(f"v_mov_b32 v9, s44")
        for tt in range(4):
            c = acc(n, tt); t = T2 + 2*tt
            a(f"v_pk_mul_f32 {r2(c)}, {r2(c)}, v[8:9]")
            a(f"v_pk_mul_f32 {r2(c+2)}, {r2(c+2)}, v[8:9]")
            a(f"v_cvt_pk_bf16_f32 v{t}, v{c}, v{c+1}")
            a(f"v_cvt_pk_bf16_f32 v{t+1}, v{c+2}, v{c+3}")
            a(f"buffer_store_dwordx2 {r2(t)}, v4, s[32:35], s43 offen offset:{tt*512} {ST}")
    vq()
    for n in range(4):
        a("s_lshl_b32 s45, s22, 2")
        a(f"s_add_u32 s45, s45, {84+n}")
        qkv_out(n, None, PK + 8*(n % 3))
    a.label(L('phase1'))
    a("s_mov_b32 s40, 0")
    loop(1)
    ts(5)
    a("v_and_b32 v2, 15, v1")
    a("v_lshrrev_b32 v3, 4, v1")
    vq()
    a("s_cmp_eq_u32 s19, 14")
    a(f"s_cbranch_scc1 {L('pure_tail')}")
    a("s_lshl_b32 s43, s21, 6")
    a("v_add_u32 v6, s43, v2")
    a("v_lshlrev_b32 v6, 3, v6")
    a(f"v_add_u32 v6, {EP}, v6")
    for tt in range(4): a(f"ds_read_b64 {r2(X[1]+2*tt)}, v6 offset:{tt*128}")
    a("s_lshl_b32 s47, s20, 12")
    a(f"s_add_u32 s47, s47, {EP+1024}")
    a("v_lshlrev_b32 v6, 5, v2")
    a("v_lshl_add_u32 v6, v3, 3, v6")
    a("v_add_u32 v6, s47, v6")
    a("s_waitcnt lgkmcnt(0)")
    for n in range(2):
        for tt in range(4):
            c = acc(n, tt); mr, r = X[1]+2*tt, X[1]+2*tt+1
            for i in range(4): a(f"v_fma_f32 v{c+i}, v{c+i}, v{r}, v{mr}")
            t = PK + 2*(n*4+tt)
            a(f"v_cvt_pk_bf16_f32 v{t}, v{c}, v{c+1}")
            a(f"v_cvt_pk_bf16_f32 v{t+1}, v{c+2}, v{c+3}")
            a(f"ds_write_b64 v6, {r2(t)} offset:{n*2048+tt*512}")
    a("v_lshlrev_b32 v6, 3, v2")
    a("v_lshl_add_u32 v6, v3, 8, v6")
    a("v_add_u32 v6, s47, v6")
    a("s_lshl_b32 s43, s19, 2")
    a("s_lshl_b32 s44, s22, 1")
    a("s_add_u32 s43, s43, s44")
    a("s_lshl_b32 s43, s43, 16")
    a("s_lshl_b32 s44, s18, 2")
    a("s_lshl_b32 s45, s21, 1")
    a("s_add_u32 s44, s44, s45")
    a("s_lshl_b32 s44, s44, 10")
    a("s_add_u32 s43, s43, s44")
    a(f"s_add_u32 s46, s43, {WS_Z2N}")
    a("s_add_u32 s47, s46, 65536")
    a("v_lshlrev_b32 v7, 4, v1")
    a("s_waitcnt lgkmcnt(0)")
    for n in range(2):
        for kk in range(2):
            for s in range(2):
                a(f"ds_read_b64_tr_b16 {r2(X[0]+4*(n*2+kk)+2*s)}, v6 offset:{n*2048+kk*1024+s*128}")
    a("s_mul_i32 s55, s19, 6")
    a("s_mul_i32 s44, s22, 3")
    a("s_add_u32 s55, s55, s44")
    a(f"s_add_u32 s45, s55, 0")
    qkv_out(4, None, W[0])
    a("s_waitcnt lgkmcnt(0)")
    for n in range(2):
        for kk in range(2):
            a(f"buffer_store_dwordx4 {r4(X[0]+4*(n*2+kk))}, v7, s[32:35], {'s46' if n==0 else 's47'} offen offset:{kk*1024} {ST}")
    for k in (1, 2):
        a(f"s_add_u32 s45, s55, {k}")
        qkv_out(4+k, None, W[0] + 8*k)
    a(f"s_branch {L('fin')}")
    a.label(L('pure_tail'))
    for k in range(2):
        a("s_lshl_b32 s45, s22, 1")
        a(f"s_add_u32 s45, s45, {92+k}")
        qkv_out(4+k, None, W[0] + 8*k)
    a(f"s_branch {L('fin')}")
    a.label(L('loader'))
    a("s_sub_u32 s20, s20, 4")
    ts.role(1)
    a("s_lshr_b32 s21, s20, 1")
    a("s_and_b32 s22, s20, 1")
    a("s_lshl_b32 s43, s19, 7")
    a("s_cmp_eq_u32 s21, 0")
    a("s_cselect_b32 s44, 1792, 0")
    a("s_add_u32 s43, s43, s44")
    a("s_lshl_b32 s44, s21, 7")
    a("s_add_u32 s44, s44, 2688")
    a("s_mul_i32 s45, s19, 3")
    a("s_lshr_b32 s45, s45, 1")
    a("s_add_u32 s45, s45, s21")
    a("s_lshl_b32 s45, s45, 7")
    a("s_cmp_eq_u32 s19, 14")
    a("s_cselect_b32 s43, s44, s43")
    a("s_cselect_b32 s45, 2944, s45")
    a("s_movk_i32 s36, 3584")
    a("s_cselect_b32 s36, 3072, s36")
    a("s_cselect_b32 s46, 0, 1")
    a("v_lshrrev_b32 v2, 3, v1")
    a("v_and_b32 v3, 7, v1")
    a("v_lshrrev_b32 v4, 1, v2")
    a("s_lshl_b32 s44, s18, 7")
    a("s_lshl_b32 s47, s20, 5")
    a("s_add_u32 s44, s44, s47")
    a("v_add_u32 v5, s44, v2")
    a("v_lshlrev_b32 v5, 10, v5")
    a("v_xor_b32 v6, v3, v4")
    a("v_xor_b32 v7, 4, v6")
    a("v_lshl_add_u32 v6, v6, 4, v5")
    a("v_lshl_add_u32 v7, v7, 4, v5")
    a(f"v_mov_b32 v{VX[0]}, v6")
    a(f"v_add_u32 v{VX[1]}, 7168, v7")
    a(f"v_add_u32 v{VX[2]}, {2*7168}, v6")
    a(f"v_add_u32 v{VX[3]}, {3*7168}, v7")
    a("v_and_b32 v5, 3, v2")
    a("v_lshrrev_b32 v6, 2, v2")
    a("v_lshl_add_u32 v5, v6, 3, v5")
    a("v_lshlrev_b32 v6, 1, v4")
    a("v_xor_b32 v6, v3, v6")
    a("v_lshlrev_b32 v6, 4, v6")
    a("s_lshl_b32 s48, s22, 5")
    a("v_add_u32 v5, s48, v5")
    for ph in range(2):
        st = 's36' if ph == 0 else 's37'
        if ph == 1: a("s_movk_i32 s37, 3072")
        a(f"v_mul_lo_u32 v7, v5, {st}")
        a("v_add_u32 v7, v7, v6")
        for b in range(4):
            h, s = b >> 1, b & 1
            a(f"s_mul_i32 s44, {st}, {16*h+4*s}")
            a(f"s_sub_u32 s44, s44, {b*1024}")
            a(f"v_add_u32 v{VW[ph][b]}, s44, v7")
    a("s_lshl_b32 s47, s20, 12")
    a("s_lshl_b32 s48, s22, 13")
    a("s_lshl_b32 s49, s21, 12")
    a("s_add_u32 s48, s48, s49")
    a("s_add_u32 s48, s48, 16384")
    a("s_cmp_eq_u32 s46, 1")
    a("s_waitcnt lgkmcnt(0)")
    a("s_cselect_b32 s28, s8, s6")
    a("s_cselect_b32 s29, s9, s7")
    a("s_add_u32 s28, s28, s43")
    a("s_addc_u32 s29, s29, 0")
    a("s_lshl_b32 s30, s36, 9")
    a("s_sub_u32 s30, s30, s43")
    a("s_mov_b32 s31, 0x20000")
    a("s_add_u32 s24, s6, s45")
    a("s_addc_u32 s25, s7, 0")
    a(f"s_mov_b32 s26, {512*3072}")
    a("s_sub_u32 s26, s26, s45")
    a("s_mov_b32 s27, 0x20000")
    srd(a, 84, 4, 2048*1024)
    srd(a, 32, 14, WS_END)
    LD = cfg.get('ld1', '')
    def issue_step(ph):
        a("s_add_u32 s45, s50, s23")
        a("s_and_b32 s45, s45, 7")
        a("s_lshl_b32 s46, s45, 7")
        a(f"s_lshl_b32 s44, {'s36' if ph == 0 else 's37'}, 6")
        a("s_mul_i32 s44, s44, s45")
        a("s_add_u32 m0, s51, s47")
        for i in range(4): a(f"buffer_load_dwordx4 v{VX[i]}, s[84:87], s46 offen offset:{i*1024} {LD} lds")
        a("s_add_u32 m0, s51, s48")
        S = 's[28:31]' if ph == 0 else 's[24:27]'
        for b in range(4): a(f"buffer_load_dwordx4 v{VW[ph][b]}, {S}, s44 offen offset:{b*1024} {LD} lds")
        a("s_add_u32 s50, s50, 1")
        a(f"s_add_u32 s51, s51, {SLOT}")
        a(f"s_and_b32 s51, s51, {NSLOT*SLOT-1}")
    a("s_mov_b32 s50, 0")
    a("s_mov_b32 s51, 0")
    rot = cfg.get('k1rot', 1)
    if rot == 0: a("s_mov_b32 s23, 0")
    elif rot == 1: a("s_and_b32 s23, s18, 7")
    elif rot == 2: a("s_and_b32 s23, s18, 1"); a("s_lshl_b32 s23, s23, 2")
    elif rot == 3: a("s_and_b32 s23, s18, 3"); a("s_lshl_b32 s23, s23, 1")
    issue_step(0); issue_step(0)
    ts(1)
    a("s_waitcnt vmcnt(8)")
    a("s_barrier")
    ts(2)
    issue_step(0); issue_step(0)
    a.label(L('lloop0'))
    a("s_waitcnt vmcnt(16)")
    a("s_barrier")
    issue_step(0)
    a("s_cmp_lt_u32 s50, 8")
    a(f"s_cbranch_scc1 {L('lloop0')}")
    a.label(L('lloop1'))
    a("s_waitcnt vmcnt(16)")
    a("s_barrier")
    issue_step(1)
    a("s_cmp_lt_u32 s50, 12")
    a(f"s_cbranch_scc1 {L('lloop1')}")
    PFM = 16 if cfg.get('pf', 1) == 1 else 0
    if PFM:
        srd(a, 80, 10, 2048*4096)
        a("s_lshr_b32 s43, s16, 1")
        a("s_lshl_b32 s43, s43, 21")
        a("s_lshl_b32 s44, s17, 16")
        a("s_add_u32 s43, s43, s44")
        a("s_lshl_b32 s44, s20, 14")
        a("s_add_u32 s43, s43, s44")
        a("v_lshlrev_b32 v8, 4, v1")
        for q in range(PFM):
            a(f"buffer_load_dwordx4 {r4(64+4*(q%8))}, v8, s[80:83], s43 offen offset:{(q%4)*1024}")
            if q % 4 == 3: a("s_add_u32 s43, s43, 4096")
    a.label(L('lloop2'))
    a(f"s_waitcnt vmcnt({16+PFM})")
    a("s_barrier")
    issue_step(1)
    a("s_cmp_lt_u32 s50, 15")
    a(f"s_cbranch_scc1 {L('lloop2')}")
    a("s_waitcnt vmcnt(16)")
    a("s_barrier")
    issue_step(1)
    a("s_cmp_lt_u32 s20, 2")
    a("s_cselect_b32 s46, 1, 0")
    a("s_cmp_eq_u32 s19, 14")
    a("s_cselect_b32 s46, 0, s46")
    a("s_cmp_eq_u32 s46, 1")
    a(f"s_cbranch_scc1 {L('lx')}")
    PFN = 8 if cfg.get('pf', 1) == 2 else 0
    if PFN:
        srd(a, 80, 10, 2048*4096)
        a("s_lshr_b32 s43, s16, 1")
        a("s_lshl_b32 s43, s43, 21")
        a("s_lshl_b32 s44, s17, 16")
        a("s_add_u32 s43, s43, s44")
        a("s_and_b32 s44, s20, 1")
        a("s_lshl_b32 s44, s44, 15")
        a("s_add_u32 s43, s43, s44")
        a("v_lshlrev_b32 v8, 4, v1")
    def pf_batch():
        for q in range(PFN):
            a(f"buffer_load_dwordx4 {r4(64+4*q)}, v8, s[80:83], s43 offen offset:{(q%4)*1024}")
            if q % 4 == 3: a("s_add_u32 s43, s43, 4096")
    a("s_waitcnt vmcnt(16)")
    a("s_barrier")
    pf_batch()
    a(f"s_waitcnt vmcnt({8+PFN})")
    a("s_barrier")
    pf_batch()
    a(f"s_waitcnt vmcnt({2*PFN})")
    a("s_barrier")
    pf_batch()
    a("s_barrier")
    pf_batch()
    if cfg.get('pfwait', 1): a("s_waitcnt vmcnt(0)")
    a(f"s_branch {L('fin2') if not cfg.get('pfwait', 1) else L('fin')}")
    a.label(L('lx'))
    a("s_lshl_b32 s43, s20, 6")
    a("v_add_u32 v9, s43, v1")
    a("v_lshlrev_b32 v7, 3, v9")
    a("s_mul_i32 s54, s18, 28672")
    a(f"s_add_u32 s54, s54, {WS_STAT}")
    a("s_mov_b32 s88, 0")
    P = 64
    def poll_loads():
        a("s_mov_b32 s43, s54")
        for q in range(28):
            if q % 4 == 0 and q: a("s_add_u32 s43, s43, 4096")
            a(f"buffer_load_dwordx2 {r2(P+2*q)}, v7, s[32:35], s43 offen offset:{(q%4)*1024} {XS}")
    poll_loads()
    a("s_waitcnt vmcnt(44)")
    a("s_barrier")
    a("s_waitcnt vmcnt(36)")
    a("s_barrier")
    ts(3)
    a.label(L('pchk'))
    a("s_waitcnt vmcnt(0)")
    a(f"v_max_u32 v10, v{P}, v{P+1}")
    for q in range(2, 56, 2): a(f"v_max3_u32 v10, v10, v{P+q}, v{P+q+1}")
    a("v_cmp_eq_u32 vcc, -1, v10")
    a("s_add_u32 s88, s88, 1")
    a("s_cmp_ge_u32 s88, 0x20000")
    a(f"s_cbranch_scc1 {L('polled')}")
    a(f"s_cbranch_vccz {L('polled')}")
    poll_loads()
    a(f"s_branch {L('pchk')}")
    a.label(L('polled'))
    ts(5)
    if ts.on: a("s_mov_b32 s62, s88")
    for q in range(1, 28): a(f"v_pk_add_f32 {r2(P)}, {r2(P)}, {r2(P+2*q)}")
    m, e2 = P, P+1
    a(f"v_mul_f32 v{m}, {hex(f2u(1.0/896))}, v{m}")
    a(f"v_mul_f32 v{e2}, {hex(f2u(1.0/896))}, v{e2}")
    a(f"v_fma_f32 v{e2}, -v{m}, v{m}, v{e2}")
    a(f"v_max_f32 v{e2}, 0, v{e2}")
    a(f"v_add_f32 v{e2}, {hex(f2u(1e-5))}, v{e2}")
    a(f"v_rsq_f32 v{e2}, v{e2}")
    a(f"v_mul_f32 v{m}, v{m}, v{e2}")
    a(f"v_sub_f32 v{m}, 0, v{m}")
    a(f"v_add_u32 v7, {EP}, v7")
    a(f"ds_write_b64 v7, {r2(m)}")
    a("s_waitcnt vmcnt(0) lgkmcnt(0)")
    a("s_barrier")
    a("s_barrier")
    a(f"s_branch {L('fin')}")
    a.label(L('spare'))
    a("s_waitcnt lgkmcnt(0)")
    srd(a, 32, 14, WS_END)
    a("s_mul_i32 s43, s18, 28672")
    a("s_lshl_b32 s44, s20, 10")
    a("s_add_u32 s43, s43, s44")
    a(f"s_add_u32 s43, s43, {WS_STAT}")
    a("v_lshlrev_b32 v2, 4, v1")
    for r in range(4, 8): a(f"v_mov_b32 v{r}, -1")
    for q in range(3):
        a("buffer_store_dwordx4 v[4:7], v2, s[32:35], s43 offen sc1")
        a("s_add_u32 s43, s43, 8192")
    a("s_cmp_lt_u32 s20, 4")
    a(f"s_cbranch_scc0 {L('rs3')}")
    a("buffer_store_dwordx4 v[4:7], v2, s[32:35], s43 offen sc1")
    a.label(L('rs3'))
    a("s_waitcnt vmcnt(0)")
    a("s_barrier")
    a("s_cmp_eq_u32 s20, 0")
    a(f"s_cbranch_scc0 {L('rs4')}")
    a("s_lshl_b32 s43, s18, 2")
    a("v_mov_b32 v2, s43")
    a("v_mov_b32 v3, 1")
    a("s_mov_b64 s[52:53], exec")
    a("s_mov_b64 exec, 1")
    a("global_store_dword v2, v3, s[12:13] sc1")
    a("s_mov_b64 exec, s[52:53]")
    a.label(L('rs4'))
    if cfg.get('cpf', 1):
        a("s_and_b32 s43, s17, 1")
        a("s_lshl_b32 s43, s43, 3")
        a("s_add_u32 s43, s43, s20")
        code_prefetch(a, 'gm_k1_kernel', 'gm_code_end', 's43', 3, 'k1', vtmp=200)
    a("s_lshl_b32 s18, s18, 7")
    a("s_lshl_b32 s43, s20, 4")
    a("s_add_u32 s18, s18, s43")
    srd(a, 24, 4, 2048*1024)
    srd(a, 28, 58, 1024)
    srd(a, 32, 14, WS_END)
    a("v_and_b32 v2, 15, v1")
    a("v_lshrrev_b32 v3, 4, v1")
    a("v_lshlrev_b32 v4, 4, v2")
    for q in range(4): a(f"buffer_load_dwordx4 {r4(16+4*q)}, v4, s[28:31], 0 offen offset:{256*q}")
    a("v_add_u32 v5, s18, v3")
    a("v_lshl_add_u32 v5, v5, 10, v4")
    for it in range(4):
        for q in range(4): a(f"buffer_load_dwordx4 {r4(64+16*it+4*q)}, v5, s[24:27], 0 offen offset:{256*q}")
        a("v_add_u32 v5, 4096, v5")
    a("v_add_u32 v6, s18, v3")
    a("v_lshlrev_b32 v6, 2, v6")
    npf2 = 0
    for it in range(4):
        a(f"s_waitcnt vmcnt({4*(3-it)+npf2})")
        b = 64+16*it
        a(f"v_dot2_f32_bf16 v8, v{b}, v16, 0")
        for r in range(1, 16): a(f"v_dot2_f32_bf16 v8, v{b+r}, v{16+r}, v8")
        a("s_nop 2")
        for sh in ('row_shr:8', 'row_shr:4', 'row_shr:2', 'row_shr:1'):
            a(f"v_add_f32_dpp v8, v8, v8 {sh} row_mask:0xf bank_mask:0xf bound_ctrl:1")
        a(f"v_mul_f32 v8, {hex(f2u(-LOG2E))}, v8")
        a("v_exp_f32 v8, v8")
        a("v_add_f32 v8, 1.0, v8")
        a("v_rcp_f32 v8, v8")
        a(f"v_mov_b32 v{32+it}, v8")
    a("v_cmp_eq_u32 s[52:53], 15, v2")
    a("s_mov_b64 s[54:55], exec")
    a("s_and_b64 exec, exec, s[52:53]")
    a(f"s_mov_b32 s51, {WS_G}")
    for it in range(4):
        a(f"buffer_store_dword v{32+it}, v6, s[32:35], s51 offen offset:{16*it}")
    a("s_mov_b64 exec, s[54:55]")
    if cfg.get('pf', 1):
        a("s_lshr_b32 s48, s18, 4")
        a("v_lshlrev_b32 v9, 4, v1")
        srd(a, 36, 60, 512*1024)
        srd(a, 44, 56, 896*1024)
        a("s_lshl_b32 s49, s48, 12")
        for q in range(4): a(f"buffer_load_dwordx4 {r4(128+4*q)}, v9, s[36:39], s49 offen offset:{q*1024}")
        a("s_mul_i32 s49, s48, 7168")
        for q in range(7):
            if q == 4: a("s_add_u32 s49, s49, 4096")
            a(f"buffer_load_dwordx4 {r4(144+4*q)}, v9, s[44:47], s49 offen offset:{(q%4)*1024}")
        srd(a, 80, 10, 2048*4096)
        a("s_lshr_b32 s43, s16, 1")
        a("s_lshl_b32 s43, s43, 21")
        a("s_lshl_b32 s44, s17, 16")
        a("s_add_u32 s43, s43, s44")
        a("s_lshl_b32 s44, s20, 13")
        a("s_add_u32 s43, s43, s44")
        for q in range(8):
            a(f"buffer_load_dwordx4 {r4(64+4*q)}, v9, s[80:83], s43 offen offset:{(q%4)*1024}")
            if q == 3: a("s_add_u32 s43, s43, 4096")
        a("s_waitcnt vmcnt(0)")
    a.label(L('fin'))
    if ts.on: a("s_waitcnt vmcnt(0)")
    ts(7)
    ts.flush()
    a.label(L('fin2'))
    a.label(L('end'))
    a("s_endpgm")
    a.check_protected(list(range(4, 16)) + list(range(56, 62)))
    n = a.fix_hazards()
    return a, n
```

```python
import sys, importlib
sys.path.insert(0, 'gen')
from common import *
import k1
def make(cfg=None, kernels=('k1','k2','k3')):
    base = dict(k2U=4, prio_attn=0, prio_attn_after=0, prio_gemm=1, k1rot=1, pf=6, k2hide=0, st1=0, pstep=10, h1it=-1, z1k1=0, fast=1, k2rotmode=5, glstep=-1, ant=0, hnt=0, l2w=0, prio_attn_loop=1, prio_k3=1, inplace=0, ppoll=0, skew=0)
    base.update(cfg or {})
    cfg = base
    mods = []
    for k in kernels:
        mods.append(importlib.import_module(k))
    hdr = open('gated_mix__sliding_block__mixer_gmlp__prompt.s.ref').read().split('\n')
    top = [l for l in hdr if l.startswith(';') and '@launch' not in l and 'Override launch' not in l and 'grid=ceil' not in l]
    top = top[:14]
    out = '\n'.join(top) + '\n'
    for m in mods:
        out += f"; @launch kernel={m.NAME} grid=({m.GRID},1,1) block=({m.BLOCK},1,1) lds={m.LDS_BYTES}\n"
    out += '.amdgcn_target "amdgcn-amd-amdhsa--gfx950"\n.text\n'
    descs = ''
    seen = set()
    for m in mods:
        if m.NAME in seen: continue
        seen.add(m.NAME)
        a, n = m.build(cfg)
        out += kernel_header(m.NAME) + a.text()
        descs += '.p2align 6\n' + kernel_desc(m.NAME, m.VGPRS, getattr(m, 'AGPRS', 0))
    out += 'gm_code_end:\n    s_endpgm\n'
    out += '.section .rodata,"a"\n' + descs
    return out
if __name__ == '__main__':
    ks = sys.argv[2].split(',') if len(sys.argv) > 2 else ('k1','k2')
    cfg = {}
    if 'k3' in ks: cfg['fuse'] = 0
    for kv in sys.argv[3:]:
        k, v = kv.split('='); cfg[k] = int(v)
    txt = make(cfg, ks)
    path = sys.argv[1] if len(sys.argv) > 1 else 'gated_mix__sliding_block__mixer_gmlp__prompt.s'
    open(path, 'w').write(txt)
    print('wrote', path, len(txt), 'bytes')
```

```python
from asmlib import *
from common import *

NAME = 'gm_k1_kernel'
SLOT = 32768
NSLOT = 4
EP = NSLOT*SLOT
LDS_BYTES = EP + 1024 + 16384
GRID = 256
BLOCK = 512
VGPRS = 256
HUGE = 0x7ff00000
SENT = 0xffffffff

ACC = 16
X = [128, 144]
W = [160, 176]
XA = [216, 217]
WA = [218+i for i in range(7)]
PK = 192
VX = [16+i for i in range(4)]
VW = [[20+i for i in range(4)], [24+i for i in range(4)]]
def acc(n, tt): return ACC + (n*4+tt)*4
def r4(b): return f"v[{b}:{b+3}]"
def r2(b): return f"v[{b}:{b+1}]"

def gelu_pairs(a, regs, t0, cpair0, cpair1, one, G=4):
    for k in range(0, len(regs), G):
        grp = regs[k:k+G]
        T = [t0 + 2*i for i in range(len(grp))]
        for x, t in zip(grp, T): a(f"v_pk_mul_f32 {r2(t)}, {r2(x)}, {r2(x)}")
        for x, t in zip(grp, T): a(f"v_pk_fma_f32 {r2(t)}, {r2(t)}, {r2(cpair1)}, {r2(cpair0)}")
        for x, t in zip(grp, T): a(f"v_pk_mul_f32 {r2(t)}, {r2(t)}, {r2(x)}")
        for x, t in zip(grp, T):
            a(f"v_exp_f32 v{t}, v{t}"); a(f"v_exp_f32 v{t+1}, v{t+1}")
        for x, t in zip(grp, T): a(f"v_pk_add_f32 {r2(t)}, {r2(t)}, {r2(one)}")
        for x, t in zip(grp, T):
            a(f"v_rcp_f32 v{t}, v{t}"); a(f"v_rcp_f32 v{t+1}, v{t+1}")
        for x, t in zip(grp, T): a(f"v_pk_mul_f32 {r2(x)}, {r2(x)}, {r2(t)}")

def build(cfg):
    a = Asm()
    L = lambda s: f"K1_{s}"
    FL = {0: '', 1: 'sc0 sc1', 2: 'sc1'}
    ST = FL[cfg.get('st1', 2)]
    XS = 'sc1'
    a(f"s_cmp_ge_u32 s2, 256")
    a(f"s_cbranch_scc1 {L('end')}")
    ts = Stamper(a, cfg, 0)
    ts.init()
    for i in range(8): ts(i)
    a(f"s_load_dwordx4 s[4:7], s[0:1], {KA_X}")
    a(f"s_load_dwordx4 s[8:11], s[0:1], {KA_WIN}")
    a(f"s_load_dwordx4 s[12:15], s[0:1], {KA_DBG}")
    a(f"s_load_dwordx4 s[56:59], s[0:1], {KA_WOUT}")
    a(f"s_load_dwordx2 s[60:61], s[0:1], {KA_WO}")
    a("v_lshrrev_b32 v2, 6, v0")
    a("v_and_b32 v1, 63, v0")
    a("v_readfirstlane_b32 s20, v2")
    a("s_and_b32 s16, s2, 7")
    a("s_lshr_b32 s17, s2, 3")
    a("s_lshr_b32 s18, s16, 2")
    a("s_lshl_b32 s18, s18, 3")
    a("s_and_b32 s43, s16, 3")
    a("s_mul_i32 s44, s43, 30")
    a("s_add_u32 s44, s44, s17")
    a("s_lshr_b32 s19, s44, 3")
    a("s_and_b32 s44, s44, 7")
    a("s_lshl_b32 s43, s43, 1")
    a("s_add_u32 s43, s43, s17")
    a("s_sub_u32 s43, s43, 30")
    a("s_cmp_ge_u32 s17, 30")
    a("s_cselect_b32 s44, s43, s44")
    a("s_add_u32 s18, s18, s44")
    a("s_cmp_ge_u32 s17, 30")
    a(f"s_cbranch_scc1 {L('spare')}")
    a("s_cmp_ge_u32 s20, 4")
    a(f"s_cbranch_scc1 {L('loader')}")
    a("s_lshr_b32 s21, s20, 1")
    a("s_and_b32 s22, s20, 1")
    a("s_mul_i32 s43, s18, 14")
    a("s_add_u32 s43, s43, s19")
    a("s_lshl_b32 s43, s43, 1")
    a("s_add_u32 s43, s43, s22")
    a("s_lshl_b32 s43, s43, 10")
    a("s_lshl_b32 s44, s21, 9")
    a("s_add_u32 s43, s43, s44")
    a(f"s_add_u32 s62, s43, {WS_STAT}")
    a("v_and_b32 v2, 15, v1")
    a("v_lshrrev_b32 v3, 4, v1")
    a("v_lshrrev_b32 v4, 1, v2")
    a("v_xor_b32 v4, v4, v3")
    a("s_lshl_b32 s43, s21, 6")
    a("v_add_u32 v5, s43, v2")
    a("v_lshlrev_b32 v5, 7, v5")
    a(f"v_lshl_add_u32 v{XA[0]}, v4, 4, v5")
    a(f"v_xor_b32 v{XA[1]}, 64, v{XA[0]}")
    a("v_lshrrev_b32 v4, 2, v1")
    a("v_and_b32 v4, 7, v4")
    a("v_lshrrev_b32 v5, 5, v1")
    a("v_lshlrev_b32 v5, 11, v5")
    a("v_lshl_add_u32 v5, v4, 7, v5")
    a("v_lshrrev_b32 v4, 1, v4")
    a("v_lshl_add_u32 v5, v4, 5, v5")
    a("v_and_b32 v4, 3, v1")
    a("v_lshl_add_u32 v5, v4, 3, v5")
    a("s_and_b32 s48, s19, 1")
    a("s_lshl_b32 s48, s48, 1")
    a("s_mul_i32 s49, s22, 3")
    a("s_add_u32 s48, s48, s49")
    a("s_lshl_b32 s49, s22, 1")
    a("s_lshl_b32 s50, s22, 2")
    for n in range(7):
        if n < 2: a(f"s_add_u32 s43, s49, {n}"); a(f"s_add_u32 s44, s50, {n}")
        elif n < 4: a(f"s_add_u32 s43, s49, {4+n-2}"); a(f"s_add_u32 s44, s50, {n}")
        else: a(f"s_add_u32 s43, s48, {n-4}"); a(f"s_add_u32 s44, s49, {min(n-4,1)}")
        a("s_cmp_eq_u32 s19, 14")
        a("s_cselect_b32 s43, s44, s43")
        a("s_and_b32 s44, s43, 3")
        a("s_lshl_b32 s44, s44, 5")
        a("s_lshr_b32 s43, s43, 2")
        a("s_lshl_b32 s43, s43, 12")
        a("s_add_u32 s43, s43, 16384")
        a(f"v_xor_b32 v{WA[n]}, s44, v5")
        a(f"v_add_u32 v{WA[n]}, s43, v{WA[n]}")
    for r in range(ACC, ACC+112): a(f"v_mov_b32 v{r}, 0")
    def tiles(ph): return range(4) if ph == 0 else range(4, 7)
    def reads(ph, ks, buf):
        out = []
        for tt in range(4):
            out.append(f"ds_read_b128 {r4(X[buf]+4*tt)}, v{XA[ks]} offset:{tt*2048}")
        for q, n in enumerate(tiles(ph)):
            for s in range(2):
                out.append(f"ds_read_b64_tr_b16 {r2(W[buf]+4*q+2*s)}, v{WA[n]} offset:{ks*8192+s*1024}")
        return out
    def mfmas(ph, buf):
        return [f"v_mfma_f32_16x16x32_bf16 {r4(acc(n,tt))}, {r4(W[buf]+4*q)}, {r4(X[buf]+4*tt)}, {r4(acc(n,tt))}"
                for q, n in enumerate(tiles(ph)) for tt in range(4)]
    a("s_mov_b32 s40, 0")
    a("s_mov_b32 s41, 0")
    a("s_waitcnt lgkmcnt(0)")
    srd(a, 32, 14, WS_END)
    ts(1)
    a("s_barrier")
    ts(2)
    for t in reads(0, 0, 0): a(t)
    def adv_addr(regs):
        return [f"v_add_u32 v{r}, s51, v{r}" for r in regs]
    def loop(ph):
        lab = L(f'loop{ph}')
        a("s_waitcnt lgkmcnt(0)")
        a.label(lab)
        sal = ["s_cmp_eq_u32 s41, %d" % (NSLOT-1), f"s_mov_b32 s51, {SLOT}", f"s_cselect_b32 s51, {(-(NSLOT-1)*SLOT) & 0xffffffff}, s51",
               "s_add_u32 s41, s41, 1", f"s_and_b32 s41, s41, {NSLOT-1}", "s_add_u32 s40, s40, 1"]
        for t in interleave(mfmas(ph, 0), reads(ph, 1, 1) + sal): a(t)
        a("s_waitcnt lgkmcnt(0)")
        a("s_barrier")
        rd = reads(ph, 0, 0)
        nW = len(list(tiles(ph)))
        fill = [f"v_add_u32 v{XA[0]}, s51, v{XA[0]}"] + rd[:4] + [f"v_add_u32 v{XA[1]}, s51, v{XA[1]}"]
        cur = list(tiles(ph)); oth = [n for n in range(7) if n not in cur]
        for q, n in enumerate(cur):
            fill.append(f"v_add_u32 v{WA[n]}, s51, v{WA[n]}")
            fill += rd[4+2*q:6+2*q]
        fill += adv_addr([WA[n] for n in oth])
        fill += ["s_cmp_lt_u32 s40, 8"]
        for t in interleave(mfmas(ph, 1), fill): a(t)
        if ph == 0:
            pass
        a("s_waitcnt lgkmcnt(0)")
        a(f"s_cbranch_scc1 {lab}")
    loop(0)
    ts(3)
    a("v_and_b32 v2, 15, v1")
    a("v_lshrrev_b32 v3, 4, v1")
    for t in reads(1, 0, 0): a(t)
    a("s_cmp_eq_u32 s19, 14")
    a(f"s_cbranch_scc1 {L('pure_mid')}")
    a("s_lshl_b32 s43, s18, 2")
    a("v_mov_b32 v10, s43")
    a("global_load_dword v11, v10, s[12:13] sc1")
    CP0, CP1, ONE = 226, 228, 230
    for r in (CP0, CP0+1): a(f"v_mov_b32 v{r}, {hex(f2u(GELU_C0))}")
    for r in (CP1, CP1+1): a(f"v_mov_b32 v{r}, {hex(f2u(GELU_C1))}")
    for r in (ONE, ONE+1): a(f"v_mov_b32 v{r}, 1.0")
    zregs = [acc(n, tt) + 2*h for n in range(2) for tt in range(4) for h in range(2)]
    gelu_pairs(a, zregs, PK, CP0, CP1, ONE)
    T = PK
    for tt in range(4):
        z = [acc(0, tt), acc(0, tt)+2, acc(1, tt), acc(1, tt)+2]
        t = T + 6*tt
        a(f"v_pk_add_f32 {r2(t)}, {r2(z[0])}, {r2(z[1])}")
        a(f"v_pk_mul_f32 {r2(t+2)}, {r2(z[0])}, {r2(z[0])}")
        a(f"v_pk_add_f32 {r2(t+4)}, {r2(z[2])}, {r2(z[3])}")
        a(f"v_pk_fma_f32 {r2(t+2)}, {r2(z[1])}, {r2(z[1])}, {r2(t+2)}")
        a(f"v_pk_add_f32 {r2(t)}, {r2(t)}, {r2(t+4)}")
        a(f"v_pk_fma_f32 {r2(t+2)}, {r2(z[2])}, {r2(z[2])}, {r2(t+2)}")
        a(f"v_pk_fma_f32 {r2(t+2)}, {r2(z[3])}, {r2(z[3])}, {r2(t+2)}")
        a(f"v_add_f32 v{t}, v{t}, v{t+1}")
        a(f"v_add_f32 v{t+1}, v{t+2}, v{t+3}")
    V = lambda tt, c: T + 6*tt + c
    for c in range(2):
        a(f"v_permlane32_swap_b32 v{V(0,c)}, v{V(2,c)}")
        a(f"v_permlane32_swap_b32 v{V(1,c)}, v{V(3,c)}")
    for c in range(2):
        a(f"v_add_f32 v{V(0,c)}, v{V(0,c)}, v{V(2,c)}")
        a(f"v_add_f32 v{V(1,c)}, v{V(1,c)}, v{V(3,c)}")
    for c in range(2): a(f"v_permlane16_swap_b32 v{V(0,c)}, v{V(1,c)}")
    a(f"v_add_f32 v4, v{V(0,0)}, v{V(1,0)}")
    a(f"v_add_f32 v5, v{V(0,1)}, v{V(1,1)}")
    a("v_lshlrev_b32 v6, 3, v1")
    a("s_mov_b32 s88, 0")
    a.label(L('fchk'))
    a("s_waitcnt vmcnt(0)")
    a("v_readfirstlane_b32 s43, v11")
    a("s_cmp_lg_u32 s43, 0")
    a(f"s_cbranch_scc1 {L('fok')}")
    a("s_add_u32 s88, s88, 1")
    a("s_cmp_ge_u32 s88, 0x40000")
    a(f"s_cbranch_scc1 {L('fok')}")
    a("global_load_dword v11, v10, s[12:13] sc1")
    a(f"s_branch {L('fchk')}")
    a.label(L('fok'))
    a(f"buffer_store_dwordx2 v[4:5], v6, s[32:35], s62 offen {XS}")
    ts(4)
    a("s_lshl_b32 s43, s18, 2")
    a("s_lshl_b32 s44, s21, 1")
    a("s_add_u32 s43, s43, s44")
    a("s_mul_i32 s43, s43, 56")
    a("s_lshl_b32 s44, s19, 2")
    a("s_add_u32 s43, s43, s44")
    a("s_lshl_b32 s44, s22, 1")
    a("s_add_u32 s43, s43, s44")
    a("s_lshl_b32 s43, s43, 10")
    a(f"s_add_u32 s54, s43, {WS_H1}")
    a("v_lshlrev_b32 v5, 4, v1")
    for tp in range(2):
        for k, n in enumerate((2, 3)):
            t = PK + 8*tp + 4*k
            for e in range(2):
                c = acc(n, 2*tp+e)
                a(f"v_cvt_pk_bf16_f32 v{t+2*e}, v{c}, v{c+1}")
                a(f"v_cvt_pk_bf16_f32 v{t+2*e+1}, v{c+2}, v{c+3}")
            if k == 0: a(f"s_add_u32 s43, s54, {tp*56*1024}")
            a(f"buffer_store_dwordx4 {r4(t)}, v5, s[32:35], s43 offen offset:{k*1024} {FL[cfg.get('sth1', 2)]}")
    a(f"s_branch {L('phase1')}")
    a.label(L('pure_mid'))
    def vq():
        a("s_lshl_b32 s43, s18, 7")
        a("s_lshl_b32 s44, s21, 6")
        a("s_add_u32 s43, s43, s44")
        a("v_add_u32 v4, s43, v2")
        a("v_lshlrev_b32 v4, 5, v4")
        a("v_lshl_add_u32 v4, v3, 3, v4")
    def qkv_out(n, ct_sgpr_expr, T2):
        a("s_cmp_lt_u32 s45, 32")
        a(f"s_cselect_b32 s44, {hex(f2u(QSCALE))}, 1.0")
        a("s_lshl_b32 s43, s45, 16")
        if WS_QKV: a(f"s_add_u32 s43, s43, {WS_QKV}")
        a(f"v_mov_b32 v8, s44")
        a(f"v_mov_b32 v9, s44")
        for tt in range(4):
            c = acc(n, tt); t = T2 + 2*tt
            a(f"v_pk_mul_f32 {r2(c)}, {r2(c)}, v[8:9]")
            a(f"v_pk_mul_f32 {r2(c+2)}, {r2(c+2)}, v[8:9]")
            a(f"v_cvt_pk_bf16_f32 v{t}, v{c}, v{c+1}")
            a(f"v_cvt_pk_bf16_f32 v{t+1}, v{c+2}, v{c+3}")
            a(f"buffer_store_dwordx2 {r2(t)}, v4, s[32:35], s43 offen offset:{tt*512} {ST}")
    vq()
    for n in range(4):
        a("s_lshl_b32 s45, s22, 2")
        a(f"s_add_u32 s45, s45, {84+n}")
        qkv_out(n, None, PK + 8*(n % 3))
    a.label(L('phase1'))
    a("s_mov_b32 s40, 0")
    loop(1)
    ts(5)
    a("v_and_b32 v2, 15, v1")
    a("v_lshrrev_b32 v3, 4, v1")
    vq()
    a("s_cmp_eq_u32 s19, 14")
    a(f"s_cbranch_scc1 {L('pure_tail')}")
    a("s_lshl_b32 s43, s21, 6")
    a("v_add_u32 v6, s43, v2")
    a("v_lshlrev_b32 v6, 3, v6")
    a(f"v_add_u32 v6, {EP}, v6")
    for tt in range(4): a(f"ds_read_b64 {r2(X[1]+2*tt)}, v6 offset:{tt*128}")
    a("s_lshl_b32 s47, s20, 12")
    a(f"s_add_u32 s47, s47, {EP+1024}")
    a("v_lshlrev_b32 v6, 5, v2")
    a("v_lshl_add_u32 v6, v3, 3, v6")
    a("v_add_u32 v6, s47, v6")
    a("s_waitcnt lgkmcnt(0)")
    for n in range(2):
        for tt in range(4):
            c = acc(n, tt); mr, r = X[1]+2*tt, X[1]+2*tt+1
            for i in range(4): a(f"v_fma_f32 v{c+i}, v{c+i}, v{r}, v{mr}")
            t = PK + 2*(n*4+tt)
            a(f"v_cvt_pk_bf16_f32 v{t}, v{c}, v{c+1}")
            a(f"v_cvt_pk_bf16_f32 v{t+1}, v{c+2}, v{c+3}")
            a(f"ds_write_b64 v6, {r2(t)} offset:{n*2048+tt*512}")
    a("v_lshlrev_b32 v6, 3, v2")
    a("v_lshl_add_u32 v6, v3, 8, v6")
    a("v_add_u32 v6, s47, v6")
    a("s_lshl_b32 s43, s19, 2")
    a("s_lshl_b32 s44, s22, 1")
    a("s_add_u32 s43, s43, s44")
    a("s_lshl_b32 s43, s43, 16")
    a("s_lshl_b32 s44, s18, 2")
    a("s_lshl_b32 s45, s21, 1")
    a("s_add_u32 s44, s44, s45")
    a("s_lshl_b32 s44, s44, 10")
    a("s_add_u32 s43, s43, s44")
    a(f"s_add_u32 s46, s43, {WS_Z2N}")
    a("s_add_u32 s47, s46, 65536")
    a("v_lshlrev_b32 v7, 4, v1")
    a("s_waitcnt lgkmcnt(0)")
    for n in range(2):
        for kk in range(2):
            for s in range(2):
                a(f"ds_read_b64_tr_b16 {r2(X[0]+4*(n*2+kk)+2*s)}, v6 offset:{n*2048+kk*1024+s*128}")
    a("s_mul_i32 s55, s19, 6")
    a("s_mul_i32 s44, s22, 3")
    a("s_add_u32 s55, s55, s44")
    a(f"s_add_u32 s45, s55, 0")
    qkv_out(4, None, W[0])
    a("s_waitcnt lgkmcnt(0)")
    for n in range(2):
        for kk in range(2):
            a(f"buffer_store_dwordx4 {r4(X[0]+4*(n*2+kk))}, v7, s[32:35], {'s46' if n==0 else 's47'} offen offset:{kk*1024} {ST}")
    for k in (1, 2):
        a(f"s_add_u32 s45, s55, {k}")
        qkv_out(4+k, None, W[0] + 8*k)
    a(f"s_branch {L('fin')}")
    a.label(L('pure_tail'))
    for k in range(2):
        a("s_lshl_b32 s45, s22, 1")
        a(f"s_add_u32 s45, s45, {92+k}")
        qkv_out(4+k, None, W[0] + 8*k)
    a(f"s_branch {L('fin')}")
    a.label(L('loader'))
    a("s_sub_u32 s20, s20, 4")
    ts.role(1)
    a("s_lshr_b32 s21, s20, 1")
    a("s_and_b32 s22, s20, 1")
    a("s_lshl_b32 s43, s19, 7")
    a("s_cmp_eq_u32 s21, 0")
    a("s_cselect_b32 s44, 1792, 0")
    a("s_add_u32 s43, s43, s44")
    a("s_lshl_b32 s44, s21, 7")
    a("s_add_u32 s44, s44, 2688")
    a("s_mul_i32 s45, s19, 3")
    a("s_lshr_b32 s45, s45, 1")
    a("s_add_u32 s45, s45, s21")
    a("s_lshl_b32 s45, s45, 7")
    a("s_cmp_eq_u32 s19, 14")
    a("s_cselect_b32 s43, s44, s43")
    a("s_cselect_b32 s45, 2944, s45")
    a("s_movk_i32 s36, 3584")
    a("s_cselect_b32 s36, 3072, s36")
    a("s_cselect_b32 s46, 0, 1")
    a("v_lshrrev_b32 v2, 3, v1")
    a("v_and_b32 v3, 7, v1")
    a("v_lshrrev_b32 v4, 1, v2")
    a("s_lshl_b32 s44, s18, 7")
    a("s_lshl_b32 s47, s20, 5")
    a("s_add_u32 s44, s44, s47")
    a("v_add_u32 v5, s44, v2")
    a("v_lshlrev_b32 v5, 10, v5")
    a("v_xor_b32 v6, v3, v4")
    a("v_xor_b32 v7, 4, v6")
    a("v_lshl_add_u32 v6, v6, 4, v5")
    a("v_lshl_add_u32 v7, v7, 4, v5")
    a(f"v_mov_b32 v{VX[0]}, v6")
    a(f"v_add_u32 v{VX[1]}, 7168, v7")
    a(f"v_add_u32 v{VX[2]}, {2*7168}, v6")
    a(f"v_add_u32 v{VX[3]}, {3*7168}, v7")
    a("v_and_b32 v5, 3, v2")
    a("v_lshrrev_b32 v6, 2, v2")
    a("v_lshl_add_u32 v5, v6, 3, v5")
    a("v_lshlrev_b32 v6, 1, v4")
    a("v_xor_b32 v6, v3, v6")
    a("v_lshlrev_b32 v6, 4, v6")
    a("s_lshl_b32 s48, s22, 5")
    a("v_add_u32 v5, s48, v5")
    for ph in range(2):
        st = 's36' if ph == 0 else 's37'
        if ph == 1: a("s_movk_i32 s37, 3072")
        a(f"v_mul_lo_u32 v7, v5, {st}")
        a("v_add_u32 v7, v7, v6")
        for b in range(4):
            h, s = b >> 1, b & 1
            a(f"s_mul_i32 s44, {st}, {16*h+4*s}")
            a(f"s_sub_u32 s44, s44, {b*1024}")
            a(f"v_add_u32 v{VW[ph][b]}, s44, v7")
    a("s_lshl_b32 s47, s20, 12")
    a("s_lshl_b32 s48, s22, 13")
    a("s_lshl_b32 s49, s21, 12")
    a("s_add_u32 s48, s48, s49")
    a("s_add_u32 s48, s48, 16384")
    a("s_cmp_eq_u32 s46, 1")
    a("s_waitcnt lgkmcnt(0)")
    a("s_cselect_b32 s28, s8, s6")
    a("s_cselect_b32 s29, s9, s7")
    a("s_add_u32 s28, s28, s43")
    a("s_addc_u32 s29, s29, 0")
    a("s_lshl_b32 s30, s36, 9")
    a("s_sub_u32 s30, s30, s43")
    a("s_mov_b32 s31, 0x20000")
    a("s_add_u32 s24, s6, s45")
    a("s_addc_u32 s25, s7, 0")
    a(f"s_mov_b32 s26, {512*3072}")
    a("s_sub_u32 s26, s26, s45")
    a("s_mov_b32 s27, 0x20000")
    srd(a, 84, 4, 2048*1024)
    srd(a, 32, 14, WS_END)
    LD = cfg.get('ld1', '')
    def issue_step(ph):
        a("s_add_u32 s45, s50, s23")
        a("s_and_b32 s45, s45, 7")
        a("s_lshl_b32 s46, s45, 7")
        a(f"s_lshl_b32 s44, {'s36' if ph == 0 else 's37'}, 6")
        a("s_mul_i32 s44, s44, s45")
        a("s_add_u32 m0, s51, s47")
        for i in range(4): a(f"buffer_load_dwordx4 v{VX[i]}, s[84:87], s46 offen offset:{i*1024} {LD} lds")
        a("s_add_u32 m0, s51, s48")
        S = 's[28:31]' if ph == 0 else 's[24:27]'
        for b in range(4): a(f"buffer_load_dwordx4 v{VW[ph][b]}, {S}, s44 offen offset:{b*1024} {LD} lds")
        a("s_add_u32 s50, s50, 1")
        a(f"s_add_u32 s51, s51, {SLOT}")
        a(f"s_and_b32 s51, s51, {NSLOT*SLOT-1}")
    a("s_mov_b32 s50, 0")
    a("s_mov_b32 s51, 0")
    rot = cfg.get('k1rot', 1)
    if rot == 0: a("s_mov_b32 s23, 0")
    elif rot == 1: a("s_and_b32 s23, s18, 7")
    elif rot == 2: a("s_and_b32 s23, s18, 1"); a("s_lshl_b32 s23, s23, 2")
    elif rot == 3: a("s_and_b32 s23, s18, 3"); a("s_lshl_b32 s23, s23, 1")
    issue_step(0); issue_step(0)
    ts(1)
    a("s_waitcnt vmcnt(8)")
    a("s_barrier")
    ts(2)
    issue_step(0); issue_step(0)
    a.label(L('lloop0'))
    a("s_waitcnt vmcnt(16)")
    a("s_barrier")
    issue_step(0)
    a("s_cmp_lt_u32 s50, 8")
    a(f"s_cbranch_scc1 {L('lloop0')}")
    a.label(L('lloop1'))
    a("s_waitcnt vmcnt(16)")
    a("s_barrier")
    issue_step(1)
    a("s_cmp_lt_u32 s50, 12")
    a(f"s_cbranch_scc1 {L('lloop1')}")
    PFM = 16 if cfg.get('pf', 1) == 1 else 0
    if PFM:
        srd(a, 80, 10, 2048*4096)
        a("s_lshr_b32 s43, s16, 1")
        a("s_lshl_b32 s43, s43, 21")
        a("s_lshl_b32 s44, s17, 16")
        a("s_add_u32 s43, s43, s44")
        a("s_lshl_b32 s44, s20, 14")
        a("s_add_u32 s43, s43, s44")
        a("v_lshlrev_b32 v8, 4, v1")
        for q in range(PFM):
            a(f"buffer_load_dwordx4 {r4(64+4*(q%8))}, v8, s[80:83], s43 offen offset:{(q%4)*1024}")
            if q % 4 == 3: a("s_add_u32 s43, s43, 4096")
    a.label(L('lloop2'))
    a(f"s_waitcnt vmcnt({16+PFM})")
    a("s_barrier")
    issue_step(1)
    a("s_cmp_lt_u32 s50, 15")
    a(f"s_cbranch_scc1 {L('lloop2')}")
    a("s_waitcnt vmcnt(16)")
    a("s_barrier")
    issue_step(1)
    a("s_cmp_lt_u32 s20, 2")
    a("s_cselect_b32 s46, 1, 0")
    a("s_cmp_eq_u32 s19, 14")
    a("s_cselect_b32 s46, 0, s46")
    a("s_cmp_eq_u32 s46, 1")
    a(f"s_cbranch_scc1 {L('lx')}")
    PFN = 8 if cfg.get('pf', 1) == 2 else 0
    if PFN:
        srd(a, 80, 10, 2048*4096)
        a("s_lshr_b32 s43, s16, 1")
        a("s_lshl_b32 s43, s43, 21")
        a("s_lshl_b32 s44, s17, 16")
        a("s_add_u32 s43, s43, s44")
        a("s_and_b32 s44, s20, 1")
        a("s_lshl_b32 s44, s44, 15")
        a("s_add_u32 s43, s43, s44")
        a("v_lshlrev_b32 v8, 4, v1")
    def pf_batch():
        for q in range(PFN):
            a(f"buffer_load_dwordx4 {r4(64+4*q)}, v8, s[80:83], s43 offen offset:{(q%4)*1024}")
            if q % 4 == 3: a("s_add_u32 s43, s43, 4096")
    a("s_waitcnt vmcnt(16)")
    a("s_barrier")
    pf_batch()
    a(f"s_waitcnt vmcnt({8+PFN})")
    a("s_barrier")
    pf_batch()
    a(f"s_waitcnt vmcnt({2*PFN})")
    a("s_barrier")
    pf_batch()
    a("s_barrier")
    pf_batch()
    if cfg.get('pfwait', 1): a("s_waitcnt vmcnt(0)")
    a(f"s_branch {L('fin2') if not cfg.get('pfwait', 1) else L('fin')}")
    a.label(L('lx'))
    a("s_lshl_b32 s43, s20, 6")
    a("v_add_u32 v9, s43, v1")
    a("v_lshlrev_b32 v7, 3, v9")
    a("s_mul_i32 s54, s18, 28672")
    a(f"s_add_u32 s54, s54, {WS_STAT}")
    a("s_mov_b32 s88, 0")
    P = 64
    def poll_loads():
        a("s_mov_b32 s43, s54")
        for q in range(28):
            if q % 4 == 0 and q: a("s_add_u32 s43, s43, 4096")
            a(f"buffer_load_dwordx2 {r2(P+2*q)}, v7, s[32:35], s43 offen offset:{(q%4)*1024} {XS}")
    poll_loads()
    a("s_waitcnt vmcnt(44)")
    a("s_barrier")
    a("s_waitcnt vmcnt(36)")
    a("s_barrier")
    ts(3)
    a.label(L('pchk'))
    a("s_waitcnt vmcnt(0)")
    a(f"v_max_u32 v10, v{P}, v{P+1}")
    for q in range(2, 56, 2): a(f"v_max3_u32 v10, v10, v{P+q}, v{P+q+1}")
    a("v_cmp_eq_u32 vcc, -1, v10")
    a("s_add_u32 s88, s88, 1")
    a("s_cmp_ge_u32 s88, 0x20000")
    a(f"s_cbranch_scc1 {L('polled')}")
    a(f"s_cbranch_vccz {L('polled')}")
    poll_loads()
    a(f"s_branch {L('pchk')}")
    a.label(L('polled'))
    ts(5)
    if ts.on: a("s_mov_b32 s62, s88")
    for q in range(1, 28): a(f"v_pk_add_f32 {r2(P)}, {r2(P)}, {r2(P+2*q)}")
    m, e2 = P, P+1
    a(f"v_mul_f32 v{m}, {hex(f2u(1.0/896))}, v{m}")
    a(f"v_mul_f32 v{e2}, {hex(f2u(1.0/896))}, v{e2}")
    a(f"v_fma_f32 v{e2}, -v{m}, v{m}, v{e2}")
    a(f"v_max_f32 v{e2}, 0, v{e2}")
    a(f"v_add_f32 v{e2}, {hex(f2u(1e-5))}, v{e2}")
    a(f"v_rsq_f32 v{e2}, v{e2}")
    a(f"v_mul_f32 v{m}, v{m}, v{e2}")
    a(f"v_sub_f32 v{m}, 0, v{m}")
    a(f"v_add_u32 v7, {EP}, v7")
    a(f"ds_write_b64 v7, {r2(m)}")
    a("s_waitcnt vmcnt(0) lgkmcnt(0)")
    a("s_barrier")
    a("s_barrier")
    a(f"s_branch {L('fin')}")
    a.label(L('spare'))
    a("s_waitcnt lgkmcnt(0)")
    srd(a, 32, 14, WS_END)
    a("s_mul_i32 s43, s18, 28672")
    a("s_lshl_b32 s44, s20, 10")
    a("s_add_u32 s43, s43, s44")
    a(f"s_add_u32 s43, s43, {WS_STAT}")
    a("v_lshlrev_b32 v2, 4, v1")
    for r in range(4, 8): a(f"v_mov_b32 v{r}, -1")
    for q in range(3):
        a("buffer_store_dwordx4 v[4:7], v2, s[32:35], s43 offen sc1")
        a("s_add_u32 s43, s43, 8192")
    a("s_cmp_lt_u32 s20, 4")
    a(f"s_cbranch_scc0 {L('rs3')}")
    a("buffer_store_dwordx4 v[4:7], v2, s[32:35], s43 offen sc1")
    a.label(L('rs3'))
    if cfg.get('fuse', 1):
        lab = L('zf')
        a("s_cmp_eq_u32 s18, 0")
        a(f"s_cbranch_scc0 {lab}")
        a("s_cmp_ge_u32 s20, 6")
        a(f"s_cbranch_scc0 {lab}")
        a("s_and_b32 s43, s20, 1")
        a("s_lshl_b32 s43, s43, 10")
        a(f"s_add_u32 s43, s43, {WS_FLAG}")
        for r in range(4, 8): a(f"v_mov_b32 v{r}, 0")
        a("buffer_store_dwordx4 v[4:7], v2, s[32:35], s43 offen sc1")
        a.label(lab)
    a("s_waitcnt vmcnt(0)")
    a("s_barrier")
    a("s_cmp_eq_u32 s20, 0")
    a(f"s_cbranch_scc0 {L('rs4')}")
    a("s_lshl_b32 s43, s18, 2")
    a("v_mov_b32 v2, s43")
    a("v_mov_b32 v3, 1")
    a("s_mov_b64 s[52:53], exec")
    a("s_mov_b64 exec, 1")
    a("global_store_dword v2, v3, s[12:13] sc1")
    a("s_mov_b64 exec, s[52:53]")
    a.label(L('rs4'))
    if cfg.get('cpf', 1):
        a("s_and_b32 s43, s17, 1")
        a("s_lshl_b32 s43, s43, 3")
        a("s_add_u32 s43, s43, s20")
        code_prefetch(a, 'gm_k1_kernel', 'gm_code_end', 's43', 3, 'k1', vtmp=200)
    a("s_lshl_b32 s18, s18, 7")
    a("s_lshl_b32 s43, s20, 4")
    a("s_add_u32 s18, s18, s43")
    srd(a, 24, 4, 2048*1024)
    srd(a, 28, 58, 1024)
    srd(a, 32, 14, WS_END)
    a("v_and_b32 v2, 15, v1")
    a("v_lshrrev_b32 v3, 4, v1")
    a("v_lshlrev_b32 v4, 4, v2")
    for q in range(4): a(f"buffer_load_dwordx4 {r4(16+4*q)}, v4, s[28:31], 0 offen offset:{256*q}")
    a("v_add_u32 v5, s18, v3")
    a("v_lshl_add_u32 v5, v5, 10, v4")
    for it in range(4):
        for q in range(4): a(f"buffer_load_dwordx4 {r4(64+16*it+4*q)}, v5, s[24:27], 0 offen offset:{256*q}")
        a("v_add_u32 v5, 4096, v5")
    a("v_add_u32 v6, s18, v3")
    a("v_lshlrev_b32 v6, 2, v6")
    npf2 = 0
    for it in range(4):
        a(f"s_waitcnt vmcnt({4*(3-it)+npf2})")
        b = 64+16*it
        a(f"v_dot2_f32_bf16 v8, v{b}, v16, 0")
        for r in range(1, 16): a(f"v_dot2_f32_bf16 v8, v{b+r}, v{16+r}, v8")
        a("s_nop 2")
        for sh in ('row_shr:8', 'row_shr:4', 'row_shr:2', 'row_shr:1'):
            a(f"v_add_f32_dpp v8, v8, v8 {sh} row_mask:0xf bank_mask:0xf bound_ctrl:1")
        a(f"v_mul_f32 v8, {hex(f2u(-LOG2E))}, v8")
        a("v_exp_f32 v8, v8")
        a("v_add_f32 v8, 1.0, v8")
        a("v_rcp_f32 v8, v8")
        a(f"v_mov_b32 v{32+it}, v8")
    a("v_cmp_eq_u32 s[52:53], 15, v2")
    a("s_mov_b64 s[54:55], exec")
    a("s_and_b64 exec, exec, s[52:53]")
    a(f"s_mov_b32 s51, {WS_G}")
    for it in range(4):
        a(f"buffer_store_dword v{32+it}, v6, s[32:35], s51 offen offset:{16*it}")
    a("s_mov_b64 exec, s[54:55]")
    if cfg.get('pf', 1):
        a("s_lshr_b32 s48, s18, 4")
        a("v_lshlrev_b32 v9, 4, v1")
        srd(a, 36, 60, 512*1024)
        srd(a, 44, 56, 896*1024)
        a("s_lshl_b32 s49, s48, 12")
        for q in range(4): a(f"buffer_load_dwordx4 {r4(128+4*q)}, v9, s[36:39], s49 offen offset:{q*1024}")
        a("s_mul_i32 s49, s48, 7168")
        for q in range(7):
            if q == 4: a("s_add_u32 s49, s49, 4096")
            a(f"buffer_load_dwordx4 {r4(144+4*q)}, v9, s[44:47], s49 offen offset:{(q%4)*1024}")
        srd(a, 80, 10, 2048*4096)
        a("s_lshr_b32 s43, s16, 1")
        a("s_lshl_b32 s43, s43, 21")
        a("s_lshl_b32 s44, s17, 16")
        a("s_add_u32 s43, s43, s44")
        a("s_lshl_b32 s44, s20, 13")
        a("s_add_u32 s43, s43, s44")
        for q in range(8):
            a(f"buffer_load_dwordx4 {r4(64+4*q)}, v9, s[80:83], s43 offen offset:{(q%4)*1024}")
            if q == 3: a("s_add_u32 s43, s43, 4096")
        a("s_waitcnt vmcnt(0)")
    a.label(L('fin'))
    if ts.on: a("s_waitcnt vmcnt(0)")
    ts(7)
    ts.flush()
    a.label(L('fin2'))
    a.label(L('end'))
    a("s_endpgm")
    a.check_protected(list(range(4, 16)) + list(range(56, 62)))
    n = a.fix_hazards()
    return a, n
```

```python
from asmlib import *
from common import *

NAME = 'gm_k1_kernel'
SLOT = 32768
NSLOT = 4
EP = NSLOT*SLOT
LDS_BYTES = EP + 1024 + 16384
GRID = 256
BLOCK = 512
VGPRS = 256
HUGE = 0x7ff00000
SENT = 0xffffffff

ACC = 16
X = [128, 144]
W = [160, 176]
XA = [216, 217]
WA = [218+i for i in range(7)]
PK = 192
VX = [16+i for i in range(4)]
VW = [[20+i for i in range(4)], [24+i for i in range(4)]]
def acc(n, tt): return ACC + (n*4+tt)*4
def r4(b): return f"v[{b}:{b+3}]"
def r2(b): return f"v[{b}:{b+1}]"

def gelu_pairs(a, regs, t0, cpair0, cpair1, one, G=4):
    for k in range(0, len(regs), G):
        grp = regs[k:k+G]
        T = [t0 + 2*i for i in range(len(grp))]
        for x, t in zip(grp, T): a(f"v_pk_mul_f32 {r2(t)}, {r2(x)}, {r2(x)}")
        for x, t in zip(grp, T): a(f"v_pk_fma_f32 {r2(t)}, {r2(t)}, {r2(cpair1)}, {r2(cpair0)}")
        for x, t in zip(grp, T): a(f"v_pk_mul_f32 {r2(t)}, {r2(t)}, {r2(x)}")
        for x, t in zip(grp, T):
            a(f"v_exp_f32 v{t}, v{t}"); a(f"v_exp_f32 v{t+1}, v{t+1}")
        for x, t in zip(grp, T): a(f"v_pk_add_f32 {r2(t)}, {r2(t)}, {r2(one)}")
        for x, t in zip(grp, T):
            a(f"v_rcp_f32 v{t}, v{t}"); a(f"v_rcp_f32 v{t+1}, v{t+1}")
        for x, t in zip(grp, T): a(f"v_pk_mul_f32 {r2(x)}, {r2(x)}, {r2(t)}")

def build(cfg):
    a = Asm()
    L = lambda s: f"K1_{s}"
    FL = {0: '', 1: 'sc0 sc1', 2: 'sc1'}
    ST = FL[cfg.get('st1', 2)]
    XS = 'sc1'
    a(f"s_cmp_ge_u32 s2, 256")
    a(f"s_cbranch_scc1 {L('end')}")
    ts = Stamper(a, cfg, 0)
    ts.init()
    for i in range(8): ts(i)
    a(f"s_load_dwordx4 s[4:7], s[0:1], {KA_X}")
    a(f"s_load_dwordx4 s[8:11], s[0:1], {KA_WIN}")
    a(f"s_load_dwordx4 s[12:15], s[0:1], {KA_DBG}")
    a(f"s_load_dwordx4 s[56:59], s[0:1], {KA_WOUT}")
    a(f"s_load_dwordx2 s[60:61], s[0:1], {KA_WO}")
    a("v_lshrrev_b32 v2, 6, v0")
    a("v_and_b32 v1, 63, v0")
    a("v_readfirstlane_b32 s20, v2")
    a("s_and_b32 s16, s2, 7")
    a("s_lshr_b32 s17, s2, 3")
    a("s_lshr_b32 s18, s16, 2")
    a("s_lshl_b32 s18, s18, 3")
    a("s_and_b32 s43, s16, 3")
    a("s_mul_i32 s44, s43, 30")
    a("s_add_u32 s44, s44, s17")
    a("s_lshr_b32 s19, s44, 3")
    a("s_and_b32 s44, s44, 7")
    a("s_lshl_b32 s43, s43, 1")
    a("s_add_u32 s43, s43, s17")
    a("s_sub_u32 s43, s43, 30")
    a("s_cmp_ge_u32 s17, 30")
    a("s_cselect_b32 s44, s43, s44")
    a("s_add_u32 s18, s18, s44")
    a("s_cmp_ge_u32 s17, 30")
    a(f"s_cbranch_scc1 {L('spare')}")
    a("s_cmp_ge_u32 s20, 4")
    a(f"s_cbranch_scc1 {L('loader')}")
    a("s_lshr_b32 s21, s20, 1")
    a("s_and_b32 s22, s20, 1")
    a("s_mul_i32 s43, s18, 14")
    a("s_add_u32 s43, s43, s19")
    a("s_lshl_b32 s43, s43, 1")
    a("s_add_u32 s43, s43, s22")
    a("s_lshl_b32 s43, s43, 10")
    a("s_lshl_b32 s44, s21, 9")
    a("s_add_u32 s43, s43, s44")
    a(f"s_add_u32 s62, s43, {WS_STAT}")
    a("v_and_b32 v2, 15, v1")
    a("v_lshrrev_b32 v3, 4, v1")
    a("v_lshrrev_b32 v4, 1, v2")
    a("v_xor_b32 v4, v4, v3")
    a("s_lshl_b32 s43, s21, 6")
    a("v_add_u32 v5, s43, v2")
    a("v_lshlrev_b32 v5, 7, v5")
    a(f"v_lshl_add_u32 v{XA[0]}, v4, 4, v5")
    a(f"v_xor_b32 v{XA[1]}, 64, v{XA[0]}")
    a("v_lshrrev_b32 v4, 2, v1")
    a("v_and_b32 v4, 7, v4")
    a("v_lshrrev_b32 v5, 5, v1")
    a("v_lshlrev_b32 v5, 11, v5")
    a("v_lshl_add_u32 v5, v4, 7, v5")
    a("v_lshrrev_b32 v4, 1, v4")
    a("v_lshl_add_u32 v5, v4, 5, v5")
    a("v_and_b32 v4, 3, v1")
    a("v_lshl_add_u32 v5, v4, 3, v5")
    a("s_and_b32 s48, s19, 1")
    a("s_lshl_b32 s48, s48, 1")
    a("s_mul_i32 s49, s22, 3")
    a("s_add_u32 s48, s48, s49")
    a("s_lshl_b32 s49, s22, 1")
    a("s_lshl_b32 s50, s22, 2")
    for n in range(7):
        if n < 2: a(f"s_add_u32 s43, s49, {n}"); a(f"s_add_u32 s44, s50, {n}")
        elif n < 4: a(f"s_add_u32 s43, s49, {4+n-2}"); a(f"s_add_u32 s44, s50, {n}")
        else: a(f"s_add_u32 s43, s48, {n-4}"); a(f"s_add_u32 s44, s49, {min(n-4,1)}")
        a("s_cmp_eq_u32 s19, 14")
        a("s_cselect_b32 s43, s44, s43")
        a("s_and_b32 s44, s43, 3")
        a("s_lshl_b32 s44, s44, 5")
        a("s_lshr_b32 s43, s43, 2")
        a("s_lshl_b32 s43, s43, 12")
        a("s_add_u32 s43, s43, 16384")
        a(f"v_xor_b32 v{WA[n]}, s44, v5")
        a(f"v_add_u32 v{WA[n]}, s43, v{WA[n]}")
    for r in range(ACC, ACC+112): a(f"v_mov_b32 v{r}, 0")
    def tiles(ph): return range(4) if ph == 0 else range(4, 7)
    def reads(ph, ks, buf):
        out = []
        for tt in range(4):
            out.append(f"ds_read_b128 {r4(X[buf]+4*tt)}, v{XA[ks]} offset:{tt*2048}")
        for q, n in enumerate(tiles(ph)):
            for s in range(2):
                out.append(f"ds_read_b64_tr_b16 {r2(W[buf]+4*q+2*s)}, v{WA[n]} offset:{ks*8192+s*1024}")
        return out
    def mfmas(ph, buf):
        return [f"v_mfma_f32_16x16x32_bf16 {r4(acc(n,tt))}, {r4(W[buf]+4*q)}, {r4(X[buf]+4*tt)}, {r4(acc(n,tt))}"
                for q, n in enumerate(tiles(ph)) for tt in range(4)]
    a("s_mov_b32 s40, 0")
    a("s_mov_b32 s41, 0")
    a("s_waitcnt lgkmcnt(0)")
    srd(a, 32, 14, WS_END)
    ts(1)
    a("s_barrier")
    ts(2)
    for t in reads(0, 0, 0): a(t)
    def adv_addr(regs):
        return [f"v_add_u32 v{r}, s51, v{r}" for r in regs]
    def loop(ph):
        lab = L(f'loop{ph}')
        a("s_waitcnt lgkmcnt(0)")
        a.label(lab)
        sal = ["s_cmp_eq_u32 s41, %d" % (NSLOT-1), f"s_mov_b32 s51, {SLOT}", f"s_cselect_b32 s51, {(-(NSLOT-1)*SLOT) & 0xffffffff}, s51",
               "s_add_u32 s41, s41, 1", f"s_and_b32 s41, s41, {NSLOT-1}", "s_add_u32 s40, s40, 1"]
        for t in interleave(mfmas(ph, 0), reads(ph, 1, 1) + sal): a(t)
        a("s_waitcnt lgkmcnt(0)")
        a("s_barrier")
        rd = reads(ph, 0, 0)
        nW = len(list(tiles(ph)))
        fill = [f"v_add_u32 v{XA[0]}, s51, v{XA[0]}"] + rd[:4] + [f"v_add_u32 v{XA[1]}, s51, v{XA[1]}"]
        cur = list(tiles(ph)); oth = [n for n in range(7) if n not in cur]
        for q, n in enumerate(cur):
            fill.append(f"v_add_u32 v{WA[n]}, s51, v{WA[n]}")
            fill += rd[4+2*q:6+2*q]
        fill += adv_addr([WA[n] for n in oth])
        fill += ["s_cmp_lt_u32 s40, 8"]
        for t in interleave(mfmas(ph, 1), fill): a(t)
        if ph == 0:
            pass
        a("s_waitcnt lgkmcnt(0)")
        a(f"s_cbranch_scc1 {lab}")
    loop(0)
    ts(3)
    a("v_and_b32 v2, 15, v1")
    a("v_lshrrev_b32 v3, 4, v1")
    for t in reads(1, 0, 0): a(t)
    a("s_cmp_eq_u32 s19, 14")
    a(f"s_cbranch_scc1 {L('pure_mid')}")
    a("s_lshl_b32 s43, s18, 2")
    a("v_mov_b32 v10, s43")
    a("global_load_dword v11, v10, s[12:13] sc1")
    CP0, CP1, ONE = 226, 228, 230
    for r in (CP0, CP0+1): a(f"v_mov_b32 v{r}, {hex(f2u(GELU_C0))}")
    for r in (CP1, CP1+1): a(f"v_mov_b32 v{r}, {hex(f2u(GELU_C1))}")
    for r in (ONE, ONE+1): a(f"v_mov_b32 v{r}, 1.0")
    zregs = [acc(n, tt) + 2*h for n in range(2) for tt in range(4) for h in range(2)]
    gelu_pairs(a, zregs, PK, CP0, CP1, ONE)
    T = PK
    for tt in range(4):
        z = [acc(0, tt), acc(0, tt)+2, acc(1, tt), acc(1, tt)+2]
        t = T + 6*tt
        a(f"v_pk_add_f32 {r2(t)}, {r2(z[0])}, {r2(z[1])}")
        a(f"v_pk_mul_f32 {r2(t+2)}, {r2(z[0])}, {r2(z[0])}")
        a(f"v_pk_add_f32 {r2(t+4)}, {r2(z[2])}, {r2(z[3])}")
        a(f"v_pk_fma_f32 {r2(t+2)}, {r2(z[1])}, {r2(z[1])}, {r2(t+2)}")
        a(f"v_pk_add_f32 {r2(t)}, {r2(t)}, {r2(t+4)}")
        a(f"v_pk_fma_f32 {r2(t+2)}, {r2(z[2])}, {r2(z[2])}, {r2(t+2)}")
        a(f"v_pk_fma_f32 {r2(t+2)}, {r2(z[3])}, {r2(z[3])}, {r2(t+2)}")
        a(f"v_add_f32 v{t}, v{t}, v{t+1}")
        a(f"v_add_f32 v{t+1}, v{t+2}, v{t+3}")
    V = lambda tt, c: T + 6*tt + c
    for c in range(2):
        a(f"v_permlane32_swap_b32 v{V(0,c)}, v{V(2,c)}")
        a(f"v_permlane32_swap_b32 v{V(1,c)}, v{V(3,c)}")
    for c in range(2):
        a(f"v_add_f32 v{V(0,c)}, v{V(0,c)}, v{V(2,c)}")
        a(f"v_add_f32 v{V(1,c)}, v{V(1,c)}, v{V(3,c)}")
    for c in range(2): a(f"v_permlane16_swap_b32 v{V(0,c)}, v{V(1,c)}")
    a(f"v_add_f32 v4, v{V(0,0)}, v{V(1,0)}")
    a(f"v_add_f32 v5, v{V(0,1)}, v{V(1,1)}")
    a("v_lshlrev_b32 v6, 3, v1")
    a("s_mov_b32 s88, 0")
    a.label(L('fchk'))
    a("s_waitcnt vmcnt(0)")
    a("v_readfirstlane_b32 s43, v11")
    a("s_cmp_lg_u32 s43, 0")
    a(f"s_cbranch_scc1 {L('fok')}")
    a("s_add_u32 s88, s88, 1")
    a("s_cmp_ge_u32 s88, 0x40000")
    a(f"s_cbranch_scc1 {L('fok')}")
    a("global_load_dword v11, v10, s[12:13] sc1")
    a(f"s_branch {L('fchk')}")
    a.label(L('fok'))
    a(f"buffer_store_dwordx2 v[4:5], v6, s[32:35], s62 offen {XS}")
    ts(4)
    a("s_lshl_b32 s43, s18, 2")
    a("s_lshl_b32 s44, s21, 1")
    a("s_add_u32 s43, s43, s44")
    a("s_mul_i32 s43, s43, 56")
    a("s_lshl_b32 s44, s19, 2")
    a("s_add_u32 s43, s43, s44")
    a("s_lshl_b32 s44, s22, 1")
    a("s_add_u32 s43, s43, s44")
    a("s_lshl_b32 s43, s43, 10")
    a(f"s_add_u32 s54, s43, {WS_H1}")
    a("v_lshlrev_b32 v5, 4, v1")
    for tp in range(2):
        for k, n in enumerate((2, 3)):
            t = PK + 8*tp + 4*k
            for e in range(2):
                c = acc(n, 2*tp+e)
                a(f"v_cvt_pk_bf16_f32 v{t+2*e}, v{c}, v{c+1}")
                a(f"v_cvt_pk_bf16_f32 v{t+2*e+1}, v{c+2}, v{c+3}")
            if k == 0: a(f"s_add_u32 s43, s54, {tp*56*1024}")
            a(f"buffer_store_dwordx4 {r4(t)}, v5, s[32:35], s43 offen offset:{k*1024} {FL[cfg.get('sth1', 2)]}")
    a(f"s_branch {L('phase1')}")
    a.label(L('pure_mid'))
    def vq():
        a("s_lshl_b32 s43, s18, 7")
        a("s_lshl_b32 s44, s21, 6")
        a("s_add_u32 s43, s43, s44")
        a("v_add_u32 v4, s43, v2")
        a("v_lshlrev_b32 v4, 5, v4")
        a("v_lshl_add_u32 v4, v3, 3, v4")
    def qkv_out(n, ct_sgpr_expr, T2):
        a("s_cmp_lt_u32 s45, 32")
        a(f"s_cselect_b32 s44, {hex(f2u(QSCALE))}, 1.0")
        a("s_lshl_b32 s43, s45, 16")
        if WS_QKV: a(f"s_add_u32 s43, s43, {WS_QKV}")
        a(f"v_mov_b32 v8, s44")
        a(f"v_mov_b32 v9, s44")
        for tt in range(4):
            c = acc(n, tt); t = T2 + 2*tt
            a(f"v_pk_mul_f32 {r2(c)}, {r2(c)}, v[8:9]")
            a(f"v_pk_mul_f32 {r2(c+2)}, {r2(c+2)}, v[8:9]")
            a(f"v_cvt_pk_bf16_f32 v{t}, v{c}, v{c+1}")
            a(f"v_cvt_pk_bf16_f32 v{t+1}, v{c+2}, v{c+3}")
            a(f"buffer_store_dwordx2 {r2(t)}, v4, s[32:35], s43 offen offset:{tt*512} {ST}")
    vq()
    for n in range(4):
        a("s_lshl_b32 s45, s22, 2")
        a(f"s_add_u32 s45, s45, {84+n}")
        qkv_out(n, None, PK + 8*(n % 3))
    a.label(L('phase1'))
    a("s_mov_b32 s40, 0")
    loop(1)
    ts(5)
    a("v_and_b32 v2, 15, v1")
    a("v_lshrrev_b32 v3, 4, v1")
    vq()
    a("s_cmp_eq_u32 s19, 14")
    a(f"s_cbranch_scc1 {L('pure_tail')}")
    a("s_lshl_b32 s43, s21, 6")
    a("v_add_u32 v6, s43, v2")
    a("v_lshlrev_b32 v6, 3, v6")
    a(f"v_add_u32 v6, {EP}, v6")
    for tt in range(4): a(f"ds_read_b64 {r2(X[1]+2*tt)}, v6 offset:{tt*128}")
    a("s_lshl_b32 s47, s20, 12")
    a(f"s_add_u32 s47, s47, {EP+1024}")
    a("v_lshlrev_b32 v6, 5, v2")
    a("v_lshl_add_u32 v6, v3, 3, v6")
    a("v_add_u32 v6, s47, v6")
    a("s_waitcnt lgkmcnt(0)")
    for n in range(2):
        for tt in range(4):
            c = acc(n, tt); mr, r = X[1]+2*tt, X[1]+2*tt+1
            for i in range(4): a(f"v_fma_f32 v{c+i}, v{c+i}, v{r}, v{mr}")
            t = PK + 2*(n*4+tt)
            a(f"v_cvt_pk_bf16_f32 v{t}, v{c}, v{c+1}")
            a(f"v_cvt_pk_bf16_f32 v{t+1}, v{c+2}, v{c+3}")
            a(f"ds_write_b64 v6, {r2(t)} offset:{n*2048+tt*512}")
    a("v_lshlrev_b32 v6, 3, v2")
    a("v_lshl_add_u32 v6, v3, 8, v6")
    a("v_add_u32 v6, s47, v6")
    a("s_lshl_b32 s43, s19, 2")
    a("s_lshl_b32 s44, s22, 1")
    a("s_add_u32 s43, s43, s44")
    a("s_lshl_b32 s43, s43, 16")
    a("s_lshl_b32 s44, s18, 2")
    a("s_lshl_b32 s45, s21, 1")
    a("s_add_u32 s44, s44, s45")
    a("s_lshl_b32 s44, s44, 10")
    a("s_add_u32 s43, s43, s44")
    a(f"s_add_u32 s46, s43, {WS_Z2N}")
    a("s_add_u32 s47, s46, 65536")
    a("v_lshlrev_b32 v7, 4, v1")
    a("s_waitcnt lgkmcnt(0)")
    for n in range(2):
        for kk in range(2):
            for s in range(2):
                a(f"ds_read_b64_tr_b16 {r2(X[0]+4*(n*2+kk)+2*s)}, v6 offset:{n*2048+kk*1024+s*128}")
    a("s_mul_i32 s55, s19, 6")
    a("s_mul_i32 s44, s22, 3")
    a("s_add_u32 s55, s55, s44")
    a(f"s_add_u32 s45, s55, 0")
    qkv_out(4, None, W[0])
    a("s_waitcnt lgkmcnt(0)")
    for n in range(2):
        for kk in range(2):
            a(f"buffer_store_dwordx4 {r4(X[0]+4*(n*2+kk))}, v7, s[32:35], {'s46' if n==0 else 's47'} offen offset:{kk*1024} {ST}")
    for k in (1, 2):
        a(f"s_add_u32 s45, s55, {k}")
        qkv_out(4+k, None, W[0] + 8*k)
    a(f"s_branch {L('fin')}")
    a.label(L('pure_tail'))
    for k in range(2):
        a("s_lshl_b32 s45, s22, 1")
        a(f"s_add_u32 s45, s45, {92+k}")
        qkv_out(4+k, None, W[0] + 8*k)
    a(f"s_branch {L('fin')}")
    a.label(L('loader'))
    a("s_sub_u32 s20, s20, 4")
    ts.role(1)
    a("s_lshr_b32 s21, s20, 1")
    a("s_and_b32 s22, s20, 1")
    a("s_lshl_b32 s43, s19, 7")
    a("s_cmp_eq_u32 s21, 0")
    a("s_cselect_b32 s44, 1792, 0")
    a("s_add_u32 s43, s43, s44")
    a("s_lshl_b32 s44, s21, 7")
    a("s_add_u32 s44, s44, 2688")
    a("s_mul_i32 s45, s19, 3")
    a("s_lshr_b32 s45, s45, 1")
    a("s_add_u32 s45, s45, s21")
    a("s_lshl_b32 s45, s45, 7")
    a("s_cmp_eq_u32 s19, 14")
    a("s_cselect_b32 s43, s44, s43")
    a("s_cselect_b32 s45, 2944, s45")
    a("s_movk_i32 s36, 3584")
    a("s_cselect_b32 s36, 3072, s36")
    a("s_cselect_b32 s46, 0, 1")
    a("v_lshrrev_b32 v2, 3, v1")
    a("v_and_b32 v3, 7, v1")
    a("v_lshrrev_b32 v4, 1, v2")
    a("s_lshl_b32 s44, s18, 7")
    a("s_lshl_b32 s47, s20, 5")
    a("s_add_u32 s44, s44, s47")
    a("v_add_u32 v5, s44, v2")
    a("v_lshlrev_b32 v5, 10, v5")
    a("v_xor_b32 v6, v3, v4")
    a("v_xor_b32 v7, 4, v6")
    a("v_lshl_add_u32 v6, v6, 4, v5")
    a("v_lshl_add_u32 v7, v7, 4, v5")
    a(f"v_mov_b32 v{VX[0]}, v6")
    a(f"v_add_u32 v{VX[1]}, 7168, v7")
    a(f"v_add_u32 v{VX[2]}, {2*7168}, v6")
    a(f"v_add_u32 v{VX[3]}, {3*7168}, v7")
    a("v_and_b32 v5, 3, v2")
    a("v_lshrrev_b32 v6, 2, v2")
    a("v_lshl_add_u32 v5, v6, 3, v5")
    a("v_lshlrev_b32 v6, 1, v4")
    a("v_xor_b32 v6, v3, v6")
    a("v_lshlrev_b32 v6, 4, v6")
    a("s_lshl_b32 s48, s22, 5")
    a("v_add_u32 v5, s48, v5")
    for ph in range(2):
        st = 's36' if ph == 0 else 's37'
        if ph == 1: a("s_movk_i32 s37, 3072")
        a(f"v_mul_lo_u32 v7, v5, {st}")
        a("v_add_u32 v7, v7, v6")
        for b in range(4):
            h, s = b >> 1, b & 1
            a(f"s_mul_i32 s44, {st}, {16*h+4*s}")
            a(f"s_sub_u32 s44, s44, {b*1024}")
            a(f"v_add_u32 v{VW[ph][b]}, s44, v7")
    a("s_lshl_b32 s47, s20, 12")
    a("s_lshl_b32 s48, s22, 13")
    a("s_lshl_b32 s49, s21, 12")
    a("s_add_u32 s48, s48, s49")
    a("s_add_u32 s48, s48, 16384")
    a("s_cmp_eq_u32 s46, 1")
    a("s_waitcnt lgkmcnt(0)")
    a("s_cselect_b32 s28, s8, s6")
    a("s_cselect_b32 s29, s9, s7")
    a("s_add_u32 s28, s28, s43")
    a("s_addc_u32 s29, s29, 0")
    a("s_lshl_b32 s30, s36, 9")
    a("s_sub_u32 s30, s30, s43")
    a("s_mov_b32 s31, 0x20000")
    a("s_add_u32 s24, s6, s45")
    a("s_addc_u32 s25, s7, 0")
    a(f"s_mov_b32 s26, {512*3072}")
    a("s_sub_u32 s26, s26, s45")
    a("s_mov_b32 s27, 0x20000")
    srd(a, 84, 4, 2048*1024)
    srd(a, 32, 14, WS_END)
    LD = cfg.get('ld1', '')
    def issue_step(ph):
        a("s_add_u32 s45, s50, s23")
        a("s_and_b32 s45, s45, 7")
        a("s_lshl_b32 s46, s45, 7")
        a(f"s_lshl_b32 s44, {'s36' if ph == 0 else 's37'}, 6")
        a("s_mul_i32 s44, s44, s45")
        a("s_add_u32 m0, s51, s47")
        for i in range(4): a(f"buffer_load_dwordx4 v{VX[i]}, s[84:87], s46 offen offset:{i*1024} {LD} lds")
        a("s_add_u32 m0, s51, s48")
        S = 's[28:31]' if ph == 0 else 's[24:27]'
        for b in range(4): a(f"buffer_load_dwordx4 v{VW[ph][b]}, {S}, s44 offen offset:{b*1024} {LD} lds")
        a("s_add_u32 s50, s50, 1")
        a(f"s_add_u32 s51, s51, {SLOT}")
        a(f"s_and_b32 s51, s51, {NSLOT*SLOT-1}")
    a("s_mov_b32 s50, 0")
    a("s_mov_b32 s51, 0")
    rot = cfg.get('k1rot', 1)
    if rot == 0: a("s_mov_b32 s23, 0")
    elif rot == 1: a("s_and_b32 s23, s18, 7")
    elif rot == 2: a("s_and_b32 s23, s18, 1"); a("s_lshl_b32 s23, s23, 2")
    elif rot == 3: a("s_and_b32 s23, s18, 3"); a("s_lshl_b32 s23, s23, 1")
    issue_step(0); issue_step(0)
    ts(1)
    a("s_waitcnt vmcnt(8)")
    a("s_barrier")
    ts(2)
    issue_step(0); issue_step(0)
    a.label(L('lloop0'))
    a("s_waitcnt vmcnt(16)")
    a("s_barrier")
    issue_step(0)
    a("s_cmp_lt_u32 s50, 8")
    a(f"s_cbranch_scc1 {L('lloop0')}")
    a.label(L('lloop1'))
    a("s_waitcnt vmcnt(16)")
    a("s_barrier")
    issue_step(1)
    a("s_cmp_lt_u32 s50, 12")
    a(f"s_cbranch_scc1 {L('lloop1')}")
    PFM = 16 if cfg.get('pf', 1) == 1 else 0
    if PFM:
        srd(a, 80, 10, 2048*4096)
        a("s_lshr_b32 s43, s16, 1")
        a("s_lshl_b32 s43, s43, 21")
        a("s_lshl_b32 s44, s17, 16")
        a("s_add_u32 s43, s43, s44")
        a("s_lshl_b32 s44, s20, 14")
        a("s_add_u32 s43, s43, s44")
        a("v_lshlrev_b32 v8, 4, v1")
        for q in range(PFM):
            a(f"buffer_load_dwordx4 {r4(64+4*(q%8))}, v8, s[80:83], s43 offen offset:{(q%4)*1024}")
            if q % 4 == 3: a("s_add_u32 s43, s43, 4096")
    a.label(L('lloop2'))
    a(f"s_waitcnt vmcnt({16+PFM})")
    a("s_barrier")
    issue_step(1)
    a("s_cmp_lt_u32 s50, 15")
    a(f"s_cbranch_scc1 {L('lloop2')}")
    a("s_waitcnt vmcnt(16)")
    a("s_barrier")
    issue_step(1)
    a("s_cmp_lt_u32 s20, 2")
    a("s_cselect_b32 s46, 1, 0")
    a("s_cmp_eq_u32 s19, 14")
    a("s_cselect_b32 s46, 0, s46")
    a("s_cmp_eq_u32 s46, 1")
    a(f"s_cbranch_scc1 {L('lx')}")
    PFN = 8 if cfg.get('pf', 1) == 2 else 0
    if PFN:
        srd(a, 80, 10, 2048*4096)
        a("s_lshr_b32 s43, s16, 1")
        a("s_lshl_b32 s43, s43, 21")
        a("s_lshl_b32 s44, s17, 16")
        a("s_add_u32 s43, s43, s44")
        a("s_and_b32 s44, s20, 1")
        a("s_lshl_b32 s44, s44, 15")
        a("s_add_u32 s43, s43, s44")
        a("v_lshlrev_b32 v8, 4, v1")
    def pf_batch():
        for q in range(PFN):
            a(f"buffer_load_dwordx4 {r4(64+4*q)}, v8, s[80:83], s43 offen offset:{(q%4)*1024}")
            if q % 4 == 3: a("s_add_u32 s43, s43, 4096")
    a("s_waitcnt vmcnt(16)")
    a("s_barrier")
    pf_batch()
    a(f"s_waitcnt vmcnt({8+PFN})")
    a("s_barrier")
    pf_batch()
    a(f"s_waitcnt vmcnt({2*PFN})")
    a("s_barrier")
    pf_batch()
    a("s_barrier")
    pf_batch()
    if cfg.get('xw', 0):
        a(f"s_mul_i32 s43, s2, {cfg['xw']*1024}")
        a(f"s_add_u32 s43, s43, 0x2000000")
        a(f"s_mov_b32 s90, s14"); a("s_mov_b32 s91, s15")
        a("s_mov_b32 s92, 0x8000000"); a("s_mov_b32 s93, 0x20000")
        a("s_mov_b32 s88, s14"); a("s_mov_b32 s89, s15"); a("s_mov_b32 s90, 0x8000000"); a("s_mov_b32 s91, 0x20000")
        a("s_and_b32 s44, s20, 1")
        a(f"s_mul_i32 s44, s44, {cfg['xw']*512}")
        a("s_add_u32 s43, s43, s44")
        for q in range(cfg['xw']//2):
            a(f"buffer_store_dwordx4 v[64:67], v8, s[88:91], s43 offen offset:{(q%4)*1024} {'sc1' if cfg.get('xwsc',1) else ''}")
            if q % 4 == 3: a("s_add_u32 s43, s43, 4096")
    if cfg.get('pfwait', 1): a("s_waitcnt vmcnt(0)")
    a(f"s_branch {L('fin2') if not cfg.get('pfwait', 1) else L('fin')}")
    a.label(L('lx'))
    a("s_lshl_b32 s43, s20, 6")
    a("v_add_u32 v9, s43, v1")
    a("v_lshlrev_b32 v7, 3, v9")
    a("s_mul_i32 s54, s18, 28672")
    a(f"s_add_u32 s54, s54, {WS_STAT}")
    a("s_mov_b32 s88, 0")
    P = 64
    def poll_loads():
        a("s_mov_b32 s43, s54")
        for q in range(28):
            if q % 4 == 0 and q: a("s_add_u32 s43, s43, 4096")
            a(f"buffer_load_dwordx2 {r2(P+2*q)}, v7, s[32:35], s43 offen offset:{(q%4)*1024} {XS}")
    poll_loads()
    a("s_waitcnt vmcnt(44)")
    a("s_barrier")
    a("s_waitcnt vmcnt(36)")
    a("s_barrier")
    ts(3)
    a.label(L('pchk'))
    a("s_waitcnt vmcnt(0)")
    a(f"v_max_u32 v10, v{P}, v{P+1}")
    for q in range(2, 56, 2): a(f"v_max3_u32 v10, v10, v{P+q}, v{P+q+1}")
    a("v_cmp_eq_u32 vcc, -1, v10")
    a("s_add_u32 s88, s88, 1")
    a("s_cmp_ge_u32 s88, 0x20000")
    a(f"s_cbranch_scc1 {L('polled')}")
    a(f"s_cbranch_vccz {L('polled')}")
    poll_loads()
    a(f"s_branch {L('pchk')}")
    a.label(L('polled'))
    ts(5)
    if ts.on: a("s_mov_b32 s62, s88")
    for q in range(1, 28): a(f"v_pk_add_f32 {r2(P)}, {r2(P)}, {r2(P+2*q)}")
    m, e2 = P, P+1
    a(f"v_mul_f32 v{m}, {hex(f2u(1.0/896))}, v{m}")
    a(f"v_mul_f32 v{e2}, {hex(f2u(1.0/896))}, v{e2}")
    a(f"v_fma_f32 v{e2}, -v{m}, v{m}, v{e2}")
    a(f"v_max_f32 v{e2}, 0, v{e2}")
    a(f"v_add_f32 v{e2}, {hex(f2u(1e-5))}, v{e2}")
    a(f"v_rsq_f32 v{e2}, v{e2}")
    a(f"v_mul_f32 v{m}, v{m}, v{e2}")
    a(f"v_sub_f32 v{m}, 0, v{m}")
    a(f"v_add_u32 v7, {EP}, v7")
    a(f"ds_write_b64 v7, {r2(m)}")
    a("s_waitcnt vmcnt(0) lgkmcnt(0)")
    a("s_barrier")
    a("s_barrier")
    a(f"s_branch {L('fin')}")
    a.label(L('spare'))
    a("s_waitcnt lgkmcnt(0)")
    srd(a, 32, 14, WS_END)
    a("s_mul_i32 s43, s18, 28672")
    a("s_lshl_b32 s44, s20, 10")
    a("s_add_u32 s43, s43, s44")
    a(f"s_add_u32 s43, s43, {WS_STAT}")
    a("v_lshlrev_b32 v2, 4, v1")
    for r in range(4, 8): a(f"v_mov_b32 v{r}, -1")
    for q in range(3):
        a("buffer_store_dwordx4 v[4:7], v2, s[32:35], s43 offen sc1")
        a("s_add_u32 s43, s43, 8192")
    a("s_cmp_lt_u32 s20, 4")
    a(f"s_cbranch_scc0 {L('rs3')}")
    a("buffer_store_dwordx4 v[4:7], v2, s[32:35], s43 offen sc1")
    a.label(L('rs3'))
    if cfg.get('fuse', 1):
        lab = L('zf')
        a("s_cmp_eq_u32 s18, 0")
        a(f"s_cbranch_scc0 {lab}")
        a("s_cmp_ge_u32 s20, 6")
        a(f"s_cbranch_scc0 {lab}")
        a("s_and_b32 s43, s20, 1")
        a("s_lshl_b32 s43, s43, 10")
        a(f"s_add_u32 s43, s43, {WS_FLAG}")
        for r in range(4, 8): a(f"v_mov_b32 v{r}, 0")
        a("buffer_store_dwordx4 v[4:7], v2, s[32:35], s43 offen sc1")
        a.label(lab)
    a("s_waitcnt vmcnt(0)")
    a("s_barrier")
    a("s_cmp_eq_u32 s20, 0")
    a(f"s_cbranch_scc0 {L('rs4')}")
    a("s_lshl_b32 s43, s18, 2")
    a("v_mov_b32 v2, s43")
    a("v_mov_b32 v3, 1")
    a("s_mov_b64 s[52:53], exec")
    a("s_mov_b64 exec, 1")
    a("global_store_dword v2, v3, s[12:13] sc1")
    a("s_mov_b64 exec, s[52:53]")
    a.label(L('rs4'))
    if cfg.get('cpf', 1):
        a("s_and_b32 s43, s17, 1")
        a("s_lshl_b32 s43, s43, 3")
        a("s_add_u32 s43, s43, s20")
        code_prefetch(a, 'gm_k1_kernel', 'gm_code_end', 's43', 3, 'k1', vtmp=200)
    a("s_lshl_b32 s18, s18, 7")
    a("s_lshl_b32 s43, s20, 4")
    a("s_add_u32 s18, s18, s43")
    srd(a, 24, 4, 2048*1024)
    srd(a, 28, 58, 1024)
    srd(a, 32, 14, WS_END)
    a("v_and_b32 v2, 15, v1")
    a("v_lshrrev_b32 v3, 4, v1")
    a("v_lshlrev_b32 v4, 4, v2")
    for q in range(4): a(f"buffer_load_dwordx4 {r4(16+4*q)}, v4, s[28:31], 0 offen offset:{256*q}")
    a("v_add_u32 v5, s18, v3")
    a("v_lshl_add_u32 v5, v5, 10, v4")
    for it in range(4):
        for q in range(4): a(f"buffer_load_dwordx4 {r4(64+16*it+4*q)}, v5, s[24:27], 0 offen offset:{256*q}")
        a("v_add_u32 v5, 4096, v5")
    a("v_add_u32 v6, s18, v3")
    a("v_lshlrev_b32 v6, 2, v6")
    npf2 = 0
    for it in range(4):
        a(f"s_waitcnt vmcnt({4*(3-it)+npf2})")
        b = 64+16*it
        a(f"v_dot2_f32_bf16 v8, v{b}, v16, 0")
        for r in range(1, 16): a(f"v_dot2_f32_bf16 v8, v{b+r}, v{16+r}, v8")
        a("s_nop 2")
        for sh in ('row_shr:8', 'row_shr:4', 'row_shr:2', 'row_shr:1'):
            a(f"v_add_f32_dpp v8, v8, v8 {sh} row_mask:0xf bank_mask:0xf bound_ctrl:1")
        a(f"v_mul_f32 v8, {hex(f2u(-LOG2E))}, v8")
        a("v_exp_f32 v8, v8")
        a("v_add_f32 v8, 1.0, v8")
        a("v_rcp_f32 v8, v8")
        a(f"v_mov_b32 v{32+it}, v8")
    a("v_cmp_eq_u32 s[52:53], 15, v2")
    a("s_mov_b64 s[54:55], exec")
    a("s_and_b64 exec, exec, s[52:53]")
    a(f"s_mov_b32 s51, {WS_G}")
    for it in range(4):
        a(f"buffer_store_dword v{32+it}, v6, s[32:35], s51 offen offset:{16*it}")
    a("s_mov_b64 exec, s[54:55]")
    if cfg.get('pf', 1):
        a("s_lshr_b32 s48, s18, 4")
        a("v_lshlrev_b32 v9, 4, v1")
        srd(a, 36, 60, 512*1024)
        srd(a, 44, 56, 896*1024)
        a("s_lshl_b32 s49, s48, 12")
        for q in range(4): a(f"buffer_load_dwordx4 {r4(128+4*q)}, v9, s[36:39], s49 offen offset:{q*1024}")
        a("s_mul_i32 s49, s48, 7168")
        for q in range(7):
            if q == 4: a("s_add_u32 s49, s49, 4096")
            a(f"buffer_load_dwordx4 {r4(144+4*q)}, v9, s[44:47], s49 offen offset:{(q%4)*1024}")
        srd(a, 80, 10, 2048*4096)
        a("s_lshr_b32 s43, s16, 1")
        a("s_lshl_b32 s43, s43, 21")
        a("s_lshl_b32 s44, s17, 16")
        a("s_add_u32 s43, s43, s44")
        a("s_lshl_b32 s44, s20, 13")
        a("s_add_u32 s43, s43, s44")
        for q in range(8):
            a(f"buffer_load_dwordx4 {r4(64+4*q)}, v9, s[80:83], s43 offen offset:{(q%4)*1024}")
            if q == 3: a("s_add_u32 s43, s43, 4096")
        a("s_waitcnt vmcnt(0)")
    a.label(L('fin'))
    if ts.on: a("s_waitcnt vmcnt(0)")
    ts(7)
    ts.flush()
    a.label(L('fin2'))
    a.label(L('end'))
    a("s_endpgm")
    a.check_protected(list(range(4, 16)) + list(range(56, 62)))
    n = a.fix_hazards()
    return a, n
```

```python
from asmlib import *
from common import *

NAME = 'gm_k1_kernel'
SLOT = 32768
NSLOT = 4
EP = NSLOT*SLOT
LDS_BYTES = EP + 1024 + 16384
GRID = 256
BLOCK = 512
VGPRS = 256
HUGE = 0x7ff00000
SENT = 0xffffffff

ACC = 16
X = [128, 144]
W = [160, 176]
XA = [216, 217]
WA = [218+i for i in range(7)]
PK = 192
VX = [16+i for i in range(4)]
VW = [[20+i for i in range(4)], [24+i for i in range(4)]]
def acc(n, tt): return ACC + (n*4+tt)*4
def r4(b): return f"v[{b}:{b+3}]"
def r2(b): return f"v[{b}:{b+1}]"

def gelu_pairs(a, regs, t0, cpair0, cpair1, one, G=4):
    for k in range(0, len(regs), G):
        grp = regs[k:k+G]
        T = [t0 + 2*i for i in range(len(grp))]
        for x, t in zip(grp, T): a(f"v_pk_mul_f32 {r2(t)}, {r2(x)}, {r2(x)}")
        for x, t in zip(grp, T): a(f"v_pk_fma_f32 {r2(t)}, {r2(t)}, {r2(cpair1)}, {r2(cpair0)}")
        for x, t in zip(grp, T): a(f"v_pk_mul_f32 {r2(t)}, {r2(t)}, {r2(x)}")
        for x, t in zip(grp, T):
            a(f"v_exp_f32 v{t}, v{t}"); a(f"v_exp_f32 v{t+1}, v{t+1}")
        for x, t in zip(grp, T): a(f"v_pk_add_f32 {r2(t)}, {r2(t)}, {r2(one)}")
        for x, t in zip(grp, T):
            a(f"v_rcp_f32 v{t}, v{t}"); a(f"v_rcp_f32 v{t+1}, v{t+1}")
        for x, t in zip(grp, T): a(f"v_pk_mul_f32 {r2(x)}, {r2(x)}, {r2(t)}")

def build(cfg):
    a = Asm()
    L = lambda s: f"K1_{s}"
    FL = {0: '', 1: 'sc0 sc1', 2: 'sc1'}
    ST = FL[cfg.get('st1', 2)]
    XS = 'sc1'
    PSTEP = cfg.get('pstep', 10)
    a(f"s_cmp_ge_u32 s2, 256")
    a(f"s_cbranch_scc1 {L('end')}")
    ts = Stamper(a, cfg, 0)
    ts.init()
    for i in range(8): ts(i)
    a(f"s_load_dwordx4 s[4:7], s[0:1], {KA_X}")
    a(f"s_load_dwordx4 s[8:11], s[0:1], {KA_WIN}")
    a(f"s_load_dwordx4 s[12:15], s[0:1], {KA_DBG}")
    a(f"s_load_dwordx4 s[56:59], s[0:1], {KA_WOUT}")
    a(f"s_load_dwordx2 s[60:61], s[0:1], {KA_WO}")
    a("v_lshrrev_b32 v2, 6, v0")
    a("v_and_b32 v1, 63, v0")
    a("v_readfirstlane_b32 s20, v2")
    a("s_and_b32 s16, s2, 7")
    a("s_lshr_b32 s17, s2, 3")
    a("s_lshr_b32 s18, s16, 2")
    a("s_lshl_b32 s18, s18, 3")
    a("s_and_b32 s43, s16, 3")
    a("s_mul_i32 s44, s43, 30")
    a("s_add_u32 s44, s44, s17")
    a("s_lshr_b32 s19, s44, 3")
    a("s_and_b32 s44, s44, 7")
    a("s_lshl_b32 s43, s43, 1")
    a("s_add_u32 s43, s43, s17")
    a("s_sub_u32 s43, s43, 30")
    a("s_cmp_ge_u32 s17, 30")
    a("s_cselect_b32 s44, s43, s44")
    a("s_add_u32 s18, s18, s44")
    a("s_cmp_ge_u32 s17, 30")
    a(f"s_cbranch_scc1 {L('spare')}")
    a("s_cmp_ge_u32 s20, 4")
    a(f"s_cbranch_scc1 {L('loader')}")
    a("s_lshr_b32 s21, s20, 1")
    a("s_and_b32 s22, s20, 1")
    a("s_mul_i32 s43, s18, 14")
    a("s_add_u32 s43, s43, s19")
    a("s_lshl_b32 s43, s43, 1")
    a("s_add_u32 s43, s43, s22")
    a("s_lshl_b32 s43, s43, 10")
    a("s_lshl_b32 s44, s21, 9")
    a("s_add_u32 s43, s43, s44")
    a(f"s_add_u32 s62, s43, {WS_STAT}")
    a("v_and_b32 v2, 15, v1")
    a("v_lshrrev_b32 v3, 4, v1")
    a("v_lshrrev_b32 v4, 1, v2")
    a("v_xor_b32 v4, v4, v3")
    a("s_lshl_b32 s43, s21, 6")
    a("v_add_u32 v5, s43, v2")
    a("v_lshlrev_b32 v5, 7, v5")
    a(f"v_lshl_add_u32 v{XA[0]}, v4, 4, v5")
    a(f"v_xor_b32 v{XA[1]}, 64, v{XA[0]}")
    a("v_lshrrev_b32 v4, 2, v1")
    a("v_and_b32 v4, 7, v4")
    a("v_lshrrev_b32 v5, 5, v1")
    a("v_lshlrev_b32 v5, 11, v5")
    a("v_lshl_add_u32 v5, v4, 7, v5")
    a("v_lshrrev_b32 v4, 1, v4")
    a("v_lshl_add_u32 v5, v4, 5, v5")
    a("v_and_b32 v4, 3, v1")
    a("v_lshl_add_u32 v5, v4, 3, v5")
    a("s_and_b32 s48, s19, 1")
    a("s_lshl_b32 s48, s48, 1")
    a("s_mul_i32 s49, s22, 3")
    a("s_add_u32 s48, s48, s49")
    a("s_lshl_b32 s49, s22, 1")
    a("s_lshl_b32 s50, s22, 2")
    for n in range(7):
        if n < 2: a(f"s_add_u32 s43, s49, {n}"); a(f"s_add_u32 s44, s50, {n}")
        elif n < 4: a(f"s_add_u32 s43, s49, {4+n-2}"); a(f"s_add_u32 s44, s50, {n}")
        else: a(f"s_add_u32 s43, s48, {n-4}"); a(f"s_add_u32 s44, s49, {min(n-4,1)}")
        a("s_cmp_eq_u32 s19, 14")
        a("s_cselect_b32 s43, s44, s43")
        a("s_and_b32 s44, s43, 3")
        a("s_lshl_b32 s44, s44, 5")
        a("s_lshr_b32 s43, s43, 2")
        a("s_lshl_b32 s43, s43, 12")
        a("s_add_u32 s43, s43, 16384")
        a(f"v_xor_b32 v{WA[n]}, s44, v5")
        a(f"v_add_u32 v{WA[n]}, s43, v{WA[n]}")
    for r in range(ACC, ACC+112): a(f"v_mov_b32 v{r}, 0")
    def tiles(ph): return range(4) if ph == 0 else range(4, 7)
    def reads(ph, ks, buf):
        out = []
        for tt in range(4):
            out.append(f"ds_read_b128 {r4(X[buf]+4*tt)}, v{XA[ks]} offset:{tt*2048}")
        for q, n in enumerate(tiles(ph)):
            for s in range(2):
                out.append(f"ds_read_b64_tr_b16 {r2(W[buf]+4*q+2*s)}, v{WA[n]} offset:{ks*8192+s*1024}")
        return out
    def mfmas(ph, buf):
        return [f"v_mfma_f32_16x16x32_bf16 {r4(acc(n,tt))}, {r4(W[buf]+4*q)}, {r4(X[buf]+4*tt)}, {r4(acc(n,tt))}"
                for q, n in enumerate(tiles(ph)) for tt in range(4)]
    a("s_mov_b32 s40, 0")
    a("s_mov_b32 s41, 0")
    a("s_waitcnt lgkmcnt(0)")
    srd(a, 32, 14, WS_END)
    ts(1)
    a("s_barrier")
    ts(2)
    for t in reads(0, 0, 0): a(t)
    def adv_addr(regs):
        return [f"v_add_u32 v{r}, s51, v{r}" for r in regs]
    def loop(ph):
        lab = L(f'loop{ph}')
        a("s_waitcnt lgkmcnt(0)")
        a.label(lab)
        if ph == 1:
            a("s_cmp_eq_u32 s40, s62")
            a(f"s_cbranch_scc1 {L('zfin')}")
            a.label(L('zback'))
        sal = ["s_cmp_eq_u32 s41, %d" % (NSLOT-1), f"s_mov_b32 s51, {SLOT}", f"s_cselect_b32 s51, {(-(NSLOT-1)*SLOT) & 0xffffffff}, s51",
               "s_add_u32 s41, s41, 1", f"s_and_b32 s41, s41, {NSLOT-1}", "s_add_u32 s40, s40, 1"]
        for t in interleave(mfmas(ph, 0), reads(ph, 1, 1) + sal): a(t)
        a("s_waitcnt lgkmcnt(0)")
        a("s_barrier")
        rd = reads(ph, 0, 0)
        nW = len(list(tiles(ph)))
        fill = [f"v_add_u32 v{XA[0]}, s51, v{XA[0]}"] + rd[:4] + [f"v_add_u32 v{XA[1]}, s51, v{XA[1]}"]
        cur = list(tiles(ph)); oth = [n for n in range(7) if n not in cur]
        for q, n in enumerate(cur):
            fill.append(f"v_add_u32 v{WA[n]}, s51, v{WA[n]}")
            fill += rd[4+2*q:6+2*q]
        fill += adv_addr([WA[n] for n in oth])
        fill += ["s_cmp_lt_u32 s40, 8"]
        for t in interleave(mfmas(ph, 1), fill): a(t)
        if ph == 0:
            pass
        a("s_waitcnt lgkmcnt(0)")
        a(f"s_cbranch_scc1 {lab}")
    loop(0)
    ts(3)
    a("v_and_b32 v2, 15, v1")
    a("v_lshrrev_b32 v3, 4, v1")
    for t in reads(1, 0, 0): a(t)
    a("s_cmp_eq_u32 s19, 14")
    a(f"s_cbranch_scc1 {L('pure_mid')}")
    a("s_lshl_b32 s43, s18, 2")
    a("v_mov_b32 v10, s43")
    a("global_load_dword v11, v10, s[12:13] sc1")
    Z1K1 = cfg.get('z1k1', 0)
    if Z1K1:
        a("s_lshl_b32 s47, s20, 12")
        a(f"s_add_u32 s47, s47, {EP+1024}")
        a("v_lshlrev_b32 v5, 4, v1")
        a("v_add_u32 v5, s47, v5")
        for tp in range(2):
            for k, n in enumerate((2, 3)):
                t = PK + 8*tp + 4*k
                for e in range(2):
                    c = acc(n, 2*tp+e)
                    a(f"v_cvt_pk_bf16_f32 v{t+2*e}, v{c}, v{c+1}")
                    a(f"v_cvt_pk_bf16_f32 v{t+2*e+1}, v{c+2}, v{c+3}")
                a(f"ds_write_b128 v5, {r4(t)} offset:{(tp*2+k)*1024}")
    CP0, CP1, ONE = 226, 228, 230
    for r in (CP0, CP0+1): a(f"v_mov_b32 v{r}, {hex(f2u(GELU_C0))}")
    for r in (CP1, CP1+1): a(f"v_mov_b32 v{r}, {hex(f2u(GELU_C1))}")
    for r in (ONE, ONE+1): a(f"v_mov_b32 v{r}, 1.0")
    zregs = [acc(n, tt) + 2*h for n in range(2) for tt in range(4) for h in range(2)]
    gelu_pairs(a, zregs, PK, CP0, CP1, ONE)
    T = PK
    for tt in range(4):
        z = [acc(0, tt), acc(0, tt)+2, acc(1, tt), acc(1, tt)+2]
        t = T + 6*tt
        a(f"v_pk_add_f32 {r2(t)}, {r2(z[0])}, {r2(z[1])}")
        a(f"v_pk_mul_f32 {r2(t+2)}, {r2(z[0])}, {r2(z[0])}")
        a(f"v_pk_add_f32 {r2(t+4)}, {r2(z[2])}, {r2(z[3])}")
        a(f"v_pk_fma_f32 {r2(t+2)}, {r2(z[1])}, {r2(z[1])}, {r2(t+2)}")
        a(f"v_pk_add_f32 {r2(t)}, {r2(t)}, {r2(t+4)}")
        a(f"v_pk_fma_f32 {r2(t+2)}, {r2(z[2])}, {r2(z[2])}, {r2(t+2)}")
        a(f"v_pk_fma_f32 {r2(t+2)}, {r2(z[3])}, {r2(z[3])}, {r2(t+2)}")
        a(f"v_add_f32 v{t}, v{t}, v{t+1}")
        a(f"v_add_f32 v{t+1}, v{t+2}, v{t+3}")
    V = lambda tt, c: T + 6*tt + c
    for c in range(2):
        a(f"v_permlane32_swap_b32 v{V(0,c)}, v{V(2,c)}")
        a(f"v_permlane32_swap_b32 v{V(1,c)}, v{V(3,c)}")
    for c in range(2):
        a(f"v_add_f32 v{V(0,c)}, v{V(0,c)}, v{V(2,c)}")
        a(f"v_add_f32 v{V(1,c)}, v{V(1,c)}, v{V(3,c)}")
    for c in range(2): a(f"v_permlane16_swap_b32 v{V(0,c)}, v{V(1,c)}")
    a(f"v_add_f32 v4, v{V(0,0)}, v{V(1,0)}")
    a(f"v_add_f32 v5, v{V(0,1)}, v{V(1,1)}")
    a("v_lshlrev_b32 v6, 3, v1")
    a("s_mov_b32 s88, 0")
    a.label(L('fchk'))
    a("s_waitcnt vmcnt(0)")
    a("v_readfirstlane_b32 s43, v11")
    a("s_cmp_lg_u32 s43, 0")
    a(f"s_cbranch_scc1 {L('fok')}")
    a("s_add_u32 s88, s88, 1")
    a("s_cmp_ge_u32 s88, 0x40000")
    a(f"s_cbranch_scc1 {L('fok')}")
    a("global_load_dword v11, v10, s[12:13] sc1")
    a(f"s_branch {L('fchk')}")
    a.label(L('fok'))
    a(f"buffer_store_dwordx2 v[4:5], v6, s[32:35], s62 offen {XS}")
    ts(4)
    a(f"s_mov_b32 s62, {PSTEP-4}")
    if not Z1K1:
        a("s_lshl_b32 s43, s18, 2")
        a("s_lshl_b32 s44, s21, 1")
        a("s_add_u32 s43, s43, s44")
        a("s_mul_i32 s43, s43, 56")
        a("s_lshl_b32 s44, s19, 2")
        a("s_add_u32 s43, s43, s44")
        a("s_lshl_b32 s44, s22, 1")
        a("s_add_u32 s43, s43, s44")
        a("s_lshl_b32 s43, s43, 10")
        a(f"s_add_u32 s54, s43, {WS_H1}")
        a("v_lshlrev_b32 v5, 4, v1")
        for tp in range(2):
            for k, n in enumerate((2, 3)):
                t = PK + 8*tp + 4*k
                for e in range(2):
                    c = acc(n, 2*tp+e)
                    a(f"v_cvt_pk_bf16_f32 v{t+2*e}, v{c}, v{c+1}")
                    a(f"v_cvt_pk_bf16_f32 v{t+2*e+1}, v{c+2}, v{c+3}")
                if k == 0: a(f"s_add_u32 s43, s54, {tp*56*1024}")
                a(f"buffer_store_dwordx4 {r4(t)}, v5, s[32:35], s43 offen offset:{k*1024} {FL[cfg.get('sth1', 2)]}")
    a(f"s_branch {L('phase1')}")
    a.label(L('pure_mid'))
    a("s_mov_b32 s62, 99")
    def vq():
        a("s_lshl_b32 s43, s18, 7")
        a("s_lshl_b32 s44, s21, 6")
        a("s_add_u32 s43, s43, s44")
        a("v_add_u32 v4, s43, v2")
        a("v_lshlrev_b32 v4, 5, v4")
        a("v_lshl_add_u32 v4, v3, 3, v4")
    def qkv_out(n, ct_sgpr_expr, T2):
        a("s_cmp_lt_u32 s45, 32")
        a(f"s_cselect_b32 s44, {hex(f2u(QSCALE))}, 1.0")
        a("s_lshl_b32 s43, s45, 16")
        if WS_QKV: a(f"s_add_u32 s43, s43, {WS_QKV}")
        a(f"v_mov_b32 v8, s44")
        a(f"v_mov_b32 v9, s44")
        for tt in range(4):
            c = acc(n, tt); t = T2 + 2*tt
            a(f"v_pk_mul_f32 {r2(c)}, {r2(c)}, v[8:9]")
            a(f"v_pk_mul_f32 {r2(c+2)}, {r2(c+2)}, v[8:9]")
            a(f"v_cvt_pk_bf16_f32 v{t}, v{c}, v{c+1}")
            a(f"v_cvt_pk_bf16_f32 v{t+1}, v{c+2}, v{c+3}")
            a(f"buffer_store_dwordx2 {r2(t)}, v4, s[32:35], s43 offen offset:{tt*512} {ST}")
    vq()
    for n in range(4):
        a("s_lshl_b32 s45, s22, 2")
        a(f"s_add_u32 s45, s45, {84+n}")
        qkv_out(n, None, PK + 8*(n % 3))
    a.label(L('phase1'))
    a("s_mov_b32 s40, 0")
    loop(1)
    ts(5)
    a("v_and_b32 v2, 15, v1")
    a("v_lshrrev_b32 v3, 4, v1")
    vq()
    a("s_cmp_eq_u32 s19, 14")
    a(f"s_cbranch_scc1 {L('pure_tail')}")
    a("s_mul_i32 s55, s19, 6")
    a("s_mul_i32 s44, s22, 3")
    a("s_add_u32 s55, s55, s44")
    for k in range(3):
        a(f"s_add_u32 s45, s55, {k}")
        qkv_out(4+k, None, W[0] + 8*k)
    a(f"s_branch {L('fin')}")
    a.label(L('zfin'))
    ZS, ZT = 232, 240
    a("v_and_b32 v2, 15, v1")
    a("v_lshrrev_b32 v3, 4, v1")
    a("s_lshl_b32 s43, s21, 6")
    a("v_add_u32 v6, s43, v2")
    a("v_lshlrev_b32 v6, 3, v6")
    a(f"v_add_u32 v6, {EP}, v6")
    for tt in range(4): a(f"ds_read_b64 {r2(ZS+2*tt)}, v6 offset:{tt*128}")
    a("s_lshl_b32 s47, s20, 12")
    a(f"s_add_u32 s47, s47, {EP+1024}")
    a("v_lshlrev_b32 v6, 5, v2")
    a("v_lshl_add_u32 v6, v3, 3, v6")
    a("v_add_u32 v6, s47, v6")
    a("s_waitcnt lgkmcnt(0)")
    for n in range(2):
        for tt in range(4):
            c = acc(n, tt); mr, r = ZS+2*tt, ZS+2*tt+1
            for i in range(4): a(f"v_fma_f32 v{c+i}, v{c+i}, v{r}, v{mr}")
            t = PK + 2*(n*4+tt)
            a(f"v_cvt_pk_bf16_f32 v{t}, v{c}, v{c+1}")
            a(f"v_cvt_pk_bf16_f32 v{t+1}, v{c+2}, v{c+3}")
            a(f"ds_write_b64 v6, {r2(t)} offset:{n*2048+tt*512}")
    a("v_lshlrev_b32 v6, 3, v2")
    a("v_lshl_add_u32 v6, v3, 8, v6")
    a("v_add_u32 v6, s47, v6")
    a("s_lshl_b32 s43, s19, 2")
    a("s_lshl_b32 s44, s22, 1")
    a("s_add_u32 s43, s43, s44")
    a("s_lshl_b32 s43, s43, 16")
    a("s_lshl_b32 s44, s18, 2")
    a("s_lshl_b32 s45, s21, 1")
    a("s_add_u32 s44, s44, s45")
    a("s_lshl_b32 s44, s44, 10")
    a("s_add_u32 s43, s43, s44")
    a(f"s_add_u32 s46, s43, {WS_Z2N}")
    a("s_add_u32 s47, s46, 65536")
    a("v_lshlrev_b32 v7, 4, v1")
    a("s_waitcnt lgkmcnt(0)")
    for n in range(2):
        for kk in range(2):
            for sx in range(2):
                a(f"ds_read_b64_tr_b16 {r2(ZT+4*(n*2+kk)+2*sx)}, v6 offset:{n*2048+kk*1024+sx*128}")
    for n in range(2):
        for kk in range(2):
            a(f"s_waitcnt lgkmcnt({6-2*(n*2+kk)})")
            a(f"buffer_store_dwordx4 {r4(ZT+4*(n*2+kk))}, v7, s[32:35], {'s46' if n==0 else 's47'} offen offset:{kk*1024} {FL[cfg.get('stz', 2)]}")
    a("s_mov_b32 s62, 99")
    a(f"s_branch {L('zback')}")
    a.label(L('pure_tail'))
    for k in range(2):
        a("s_lshl_b32 s45, s22, 1")
        a(f"s_add_u32 s45, s45, {92+k}")
        qkv_out(4+k, None, W[0] + 8*k)
    a(f"s_branch {L('fin')}")
    a.label(L('loader'))
    a("s_sub_u32 s20, s20, 4")
    ts.role(1)
    a("s_lshr_b32 s21, s20, 1")
    a("s_and_b32 s22, s20, 1")
    a("s_lshl_b32 s43, s19, 7")
    a("s_cmp_eq_u32 s21, 0")
    a("s_cselect_b32 s44, 1792, 0")
    a("s_add_u32 s43, s43, s44")
    a("s_lshl_b32 s44, s21, 7")
    a("s_add_u32 s44, s44, 2688")
    a("s_mul_i32 s45, s19, 3")
    a("s_lshr_b32 s45, s45, 1")
    a("s_add_u32 s45, s45, s21")
    a("s_lshl_b32 s45, s45, 7")
    a("s_cmp_eq_u32 s19, 14")
    a("s_cselect_b32 s43, s44, s43")
    a("s_cselect_b32 s45, 2944, s45")
    a("s_movk_i32 s36, 3584")
    a("s_cselect_b32 s36, 3072, s36")
    a("s_cselect_b32 s46, 0, 1")
    a("v_lshrrev_b32 v2, 3, v1")
    a("v_and_b32 v3, 7, v1")
    a("v_lshrrev_b32 v4, 1, v2")
    a("s_lshl_b32 s44, s18, 7")
    a("s_lshl_b32 s47, s20, 5")
    a("s_add_u32 s44, s44, s47")
    a("v_add_u32 v5, s44, v2")
    a("v_lshlrev_b32 v5, 10, v5")
    a("v_xor_b32 v6, v3, v4")
    a("v_xor_b32 v7, 4, v6")
    a("v_lshl_add_u32 v6, v6, 4, v5")
    a("v_lshl_add_u32 v7, v7, 4, v5")
    a(f"v_mov_b32 v{VX[0]}, v6")
    a(f"v_add_u32 v{VX[1]}, 7168, v7")
    a(f"v_add_u32 v{VX[2]}, {2*7168}, v6")
    a(f"v_add_u32 v{VX[3]}, {3*7168}, v7")
    a("v_and_b32 v5, 3, v2")
    a("v_lshrrev_b32 v6, 2, v2")
    a("v_lshl_add_u32 v5, v6, 3, v5")
    a("v_lshlrev_b32 v6, 1, v4")
    a("v_xor_b32 v6, v3, v6")
    a("v_lshlrev_b32 v6, 4, v6")
    a("s_lshl_b32 s48, s22, 5")
    a("v_add_u32 v5, s48, v5")
    for ph in range(2):
        st = 's36' if ph == 0 else 's37'
        if ph == 1: a("s_movk_i32 s37, 3072")
        a(f"v_mul_lo_u32 v7, v5, {st}")
        a("v_add_u32 v7, v7, v6")
        for b in range(4):
            h, s = b >> 1, b & 1
            a(f"s_mul_i32 s44, {st}, {16*h+4*s}")
            a(f"s_sub_u32 s44, s44, {b*1024}")
            a(f"v_add_u32 v{VW[ph][b]}, s44, v7")
    a("s_lshl_b32 s47, s20, 12")
    a("s_lshl_b32 s48, s22, 13")
    a("s_lshl_b32 s49, s21, 12")
    a("s_add_u32 s48, s48, s49")
    a("s_add_u32 s48, s48, 16384")
    a("s_cmp_eq_u32 s46, 1")
    a("s_waitcnt lgkmcnt(0)")
    a("s_cselect_b32 s28, s8, s6")
    a("s_cselect_b32 s29, s9, s7")
    a("s_add_u32 s28, s28, s43")
    a("s_addc_u32 s29, s29, 0")
    a("s_lshl_b32 s30, s36, 9")
    a("s_sub_u32 s30, s30, s43")
    a("s_mov_b32 s31, 0x20000")
    a("s_add_u32 s24, s6, s45")
    a("s_addc_u32 s25, s7, 0")
    a(f"s_mov_b32 s26, {512*3072}")
    a("s_sub_u32 s26, s26, s45")
    a("s_mov_b32 s27, 0x20000")
    srd(a, 84, 4, 2048*1024)
    srd(a, 32, 14, WS_END)
    LD = cfg.get('ld1', '')
    def issue_step(ph):
        a("s_add_u32 s45, s50, s23")
        a("s_and_b32 s45, s45, 7")
        a("s_lshl_b32 s46, s45, 7")
        a(f"s_lshl_b32 s44, {'s36' if ph == 0 else 's37'}, 6")
        a("s_mul_i32 s44, s44, s45")
        a("s_add_u32 m0, s51, s47")
        for i in range(4): a(f"buffer_load_dwordx4 v{VX[i]}, s[84:87], s46 offen offset:{i*1024} {LD} lds")
        a("s_add_u32 m0, s51, s48")
        S = 's[28:31]' if ph == 0 else 's[24:27]'
        for b in range(4): a(f"buffer_load_dwordx4 v{VW[ph][b]}, {S}, s44 offen offset:{b*1024} {LD} lds")
        a("s_add_u32 s50, s50, 1")
        a(f"s_add_u32 s51, s51, {SLOT}")
        a(f"s_and_b32 s51, s51, {NSLOT*SLOT-1}")
    a("s_mov_b32 s50, 0")
    a("s_mov_b32 s51, 0")
    rot = cfg.get('k1rot', 1)
    if rot == 0: a("s_mov_b32 s23, 0")
    elif rot == 1: a("s_and_b32 s23, s18, 7")
    elif rot == 2: a("s_and_b32 s23, s18, 1"); a("s_lshl_b32 s23, s23, 2")
    elif rot == 3: a("s_and_b32 s23, s18, 3"); a("s_lshl_b32 s23, s23, 1")
    issue_step(0); issue_step(0)
    ts(1)
    a("s_waitcnt vmcnt(8)")
    a("s_barrier")
    ts(2)
    issue_step(0); issue_step(0)
    a.label(L('lloop0'))
    a("s_waitcnt vmcnt(16)")
    a("s_barrier")
    issue_step(0)
    a("s_cmp_lt_u32 s50, 8")
    a(f"s_cbranch_scc1 {L('lloop0')}")
    a.label(L('lloop1'))
    a("s_waitcnt vmcnt(16)")
    a("s_barrier")
    issue_step(1)
    a("s_cmp_lt_u32 s50, 12")
    a(f"s_cbranch_scc1 {L('lloop1')}")
    a("s_cmp_eq_u32 s19, 14")
    a(f"s_cbranch_scc1 {L('lpure')}")
    a("s_lshl_b32 s43, s20, 12")
    a(f"s_add_u32 s43, s43, {EP+1024}")
    a("v_lshlrev_b32 v5, 4, v1")
    a("v_add_u32 v6, s43, v5")
    HP, HC, HT = 32, 48, 80
    C0, C1, C2 = 90, 92, 94
    for r in (C0, C0+1): a(f"v_mov_b32 v{r}, {hex(f2u(GELU_C0))}")
    for r in (C1, C1+1): a(f"v_mov_b32 v{r}, {hex(f2u(GELU_C1))}")
    for r in (C2, C2+1): a(f"v_mov_b32 v{r}, 1.0")
    a("s_lshl_b32 s43, s18, 2")
    a("s_lshl_b32 s44, s21, 1")
    a("s_add_u32 s43, s43, s44")
    a("s_mul_i32 s43, s43, 56")
    a("s_lshl_b32 s44, s19, 2")
    a("s_add_u32 s43, s43, s44")
    a("s_lshl_b32 s44, s22, 1")
    a("s_add_u32 s43, s43, s44")
    a("s_lshl_b32 s43, s43, 10")
    a(f"s_add_u32 s52, s43, {WS_H1}")
    a(f"s_add_u32 s53, s52, {56*1024}")
    def z1_block(q):
        if not Z1K1: return
        a(f"ds_read_b128 {r4(HP)}, v6 offset:{q*1024}")
        a("s_waitcnt lgkmcnt(0)")
        for e in range(4):
            a(f"v_lshlrev_b32 v{HC+2*e}, 16, v{HP+e}")
            a(f"v_and_b32 v{HC+2*e+1}, 0xffff0000, v{HP+e}")
        gelu_pairs(a, [HC+2*e for e in range(4)], HT, C0, C1, C2, G=4)
        t = HP + 4 + 4*(q % 2)
        for e in range(4): a(f"v_cvt_pk_bf16_f32 v{t+e}, v{HC+2*e}, v{HC+2*e+1}")
        a(f"buffer_store_dwordx4 {r4(t)}, v5, s[32:35], {'s52' if q < 2 else 's53'} offen offset:{(q%2)*1024} {FL[cfg.get('sth1', 2)]}")
    a("s_cmp_lt_u32 s20, 2")
    a(f"s_cbranch_scc1 {L('lx')}")
    q_ = [('D', 9, 8), ('D', 10, 8), ('D', 11, 8)]
    def allowed2(step_needed):
        idx = max(k for k, e in enumerate(q_) if e[0] == 'D' and e[1] <= step_needed)
        return sum(e[2] for e in q_[idx+1:])
    for b in (8, 9, 10, 11):
        a(f"s_waitcnt vmcnt({allowed2(b+1)})")
        a("s_barrier")
        issue_step(1); q_.append(('D', b+4, 8))
        z1_block(b-8); q_.append(('S', 0, 1 if Z1K1 else 0))
    W12, W13, W14 = allowed2(13), allowed2(14), allowed2(15)
    a(f"s_branch {L('lb12m')}")
    a.label(L('lpure'))
    for b in (8, 9, 10, 11):
        a("s_waitcnt vmcnt(16)")
        a("s_barrier")
        issue_step(1)
    a.label(L('lb12m'))
    PFN = 8 if cfg.get('pf', 1) == 2 else 0
    if PFN:
        srd(a, 80, 10, 2048*4096)
        a("s_lshr_b32 s43, s16, 1")
        a("s_lshl_b32 s43, s43, 21")
        a("s_lshl_b32 s44, s17, 16")
        a("s_add_u32 s43, s43, s44")
        a("s_and_b32 s44, s20, 1")
        a("s_lshl_b32 s44, s44, 15")
        a("s_add_u32 s43, s43, s44")
        a("v_lshlrev_b32 v8, 4, v1")
    def pf_batch():
        for q in range(PFN):
            a(f"buffer_load_dwordx4 {r4(64+4*q)}, v8, s[80:83], s43 offen offset:{(q%4)*1024}")
            if q % 4 == 3: a("s_add_u32 s43, s43, 4096")
    a("s_waitcnt vmcnt(16)")
    a("s_barrier")
    pf_batch()
    a(f"s_waitcnt vmcnt({8+PFN})")
    a("s_barrier")
    pf_batch()
    a(f"s_waitcnt vmcnt({2*PFN})")
    a("s_barrier")
    pf_batch()
    a("s_barrier")
    pf_batch()
    if cfg.get('xw', 0):
        a(f"s_mul_i32 s43, s2, {cfg['xw']*1024}")
        a(f"s_add_u32 s43, s43, 0x2000000")
        a(f"s_mov_b32 s90, s14"); a("s_mov_b32 s91, s15")
        a("s_mov_b32 s92, 0x8000000"); a("s_mov_b32 s93, 0x20000")
        a("s_mov_b32 s88, s14"); a("s_mov_b32 s89, s15"); a("s_mov_b32 s90, 0x8000000"); a("s_mov_b32 s91, 0x20000")
        a("s_and_b32 s44, s20, 1")
        a(f"s_mul_i32 s44, s44, {cfg['xw']*512}")
        a("s_add_u32 s43, s43, s44")
        for q in range(cfg['xw']//2):
            a(f"buffer_store_dwordx4 v[64:67], v8, s[88:91], s43 offen offset:{(q%4)*1024} {'sc1' if cfg.get('xwsc',1) else ''}")
            if q % 4 == 3: a("s_add_u32 s43, s43, 4096")
    if cfg.get('pfwait', 1): a("s_waitcnt vmcnt(0)")
    a(f"s_branch {L('fin2') if not cfg.get('pfwait', 1) else L('fin')}")
    a.label(L('lx'))
    a("s_lshl_b32 s43, s20, 6")
    a("v_add_u32 v9, s43, v1")
    a("v_lshlrev_b32 v7, 3, v9")
    a("s_mul_i32 s54, s18, 28672")
    a(f"s_add_u32 s54, s54, {WS_STAT}")
    a("s_mov_b32 s88, 0")
    P = 96
    def poll_loads():
        a("s_mov_b32 s43, s54")
        for q in range(28):
            if q % 4 == 0 and q: a("s_add_u32 s43, s43, 4096")
            a(f"buffer_load_dwordx2 {r2(P+2*q)}, v7, s[32:35], s43 offen offset:{(q%4)*1024} {XS}")
    q_ = [('D', 9, 8), ('D', 10, 8), ('D', 11, 8)]
    def allowed(step_needed):
        idx = max(k for k, e in enumerate(q_) if e[0] == 'D' and e[1] <= step_needed)
        return sum(e[2] for e in q_[idx+1:])
    for b in range(8, PSTEP+3):
        a(f"s_waitcnt vmcnt({allowed(b+1)})")
        a("s_barrier")
        if b+4 < 16:
            issue_step(1); q_.append(('D', b+4, 8))
        if b == PSTEP:
            poll_loads(); q_.append(('P', 0, 28))
        if b < 12:
            z1_block(b-8); q_.append(('S', 0, 1 if Z1K1 else 0))
    ts(3)
    idx = max(k for k, e in enumerate(q_) if e[0] == 'P' or (e[0] == 'D' and e[1] <= PSTEP+4))
    a(f"s_waitcnt vmcnt({sum(e[2] for e in q_[idx+1:])})")
    a(f"s_branch {L('pchk1')}")
    a.label(L('pchk'))
    a("s_waitcnt vmcnt(0)")
    a.label(L('pchk1'))
    a(f"v_max_u32 v10, v{P}, v{P+1}")
    for q in range(2, 56, 2): a(f"v_max3_u32 v10, v10, v{P+q}, v{P+q+1}")
    a("v_cmp_eq_u32 vcc, -1, v10")
    a("s_add_u32 s88, s88, 1")
    a("s_cmp_ge_u32 s88, 0x20000")
    a(f"s_cbranch_scc1 {L('polled')}")
    a(f"s_cbranch_vccz {L('polled')}")
    poll_loads()
    a(f"s_branch {L('pchk')}")
    a.label(L('polled'))
    ts(5)
    if ts.on: a("s_mov_b32 s62, s88")
    for q in range(1, 28): a(f"v_pk_add_f32 {r2(P)}, {r2(P)}, {r2(P+2*q)}")
    m, e2 = P, P+1
    a(f"v_mul_f32 v{m}, {hex(f2u(1.0/896))}, v{m}")
    a(f"v_mul_f32 v{e2}, {hex(f2u(1.0/896))}, v{e2}")
    a(f"v_fma_f32 v{e2}, -v{m}, v{m}, v{e2}")
    a(f"v_max_f32 v{e2}, 0, v{e2}")
    a(f"v_add_f32 v{e2}, {hex(f2u(1e-5))}, v{e2}")
    a(f"v_rsq_f32 v{e2}, v{e2}")
    a(f"v_mul_f32 v{m}, v{m}, v{e2}")
    a(f"v_sub_f32 v{m}, 0, v{m}")
    a(f"v_add_u32 v7, {EP}, v7")
    a(f"ds_write_b64 v7, {r2(m)}")
    a("s_waitcnt lgkmcnt(0)")
    a("s_barrier")
    for b in range(PSTEP+4, 16):
        if b+1 <= 15: a("s_waitcnt vmcnt(0)" if b+1 == 15 else f"s_waitcnt vmcnt({8*(15-(b+1))})")
        a("s_barrier")
    a(f"s_branch {L('fin')}")
    a.label(L('spare'))
    a("s_waitcnt lgkmcnt(0)")
    srd(a, 32, 14, WS_END)
    a("s_mul_i32 s43, s18, 28672")
    a("s_lshl_b32 s44, s20, 10")
    a("s_add_u32 s43, s43, s44")
    a(f"s_add_u32 s43, s43, {WS_STAT}")
    a("v_lshlrev_b32 v2, 4, v1")
    for r in range(4, 8): a(f"v_mov_b32 v{r}, -1")
    for q in range(3):
        a("buffer_store_dwordx4 v[4:7], v2, s[32:35], s43 offen sc1")
        a("s_add_u32 s43, s43, 8192")
    a("s_cmp_lt_u32 s20, 4")
    a(f"s_cbranch_scc0 {L('rs3')}")
    a("buffer_store_dwordx4 v[4:7], v2, s[32:35], s43 offen sc1")
    a.label(L('rs3'))
    if cfg.get('fuse', 1):
        lab = L('zf')
        a("s_cmp_eq_u32 s18, 0")
        a(f"s_cbranch_scc0 {lab}")
        a("s_cmp_ge_u32 s20, 6")
        a(f"s_cbranch_scc0 {lab}")
        a("s_and_b32 s43, s20, 1")
        a("s_lshl_b32 s43, s43, 10")
        a(f"s_add_u32 s43, s43, {WS_FLAG}")
        for r in range(4, 8): a(f"v_mov_b32 v{r}, 0")
        a("buffer_store_dwordx4 v[4:7], v2, s[32:35], s43 offen sc1")
        a.label(lab)
    a("s_waitcnt vmcnt(0)")
    a("s_barrier")
    a("s_cmp_eq_u32 s20, 0")
    a(f"s_cbranch_scc0 {L('rs4')}")
    a("s_lshl_b32 s43, s18, 2")
    a("v_mov_b32 v2, s43")
    a("v_mov_b32 v3, 1")
    a("s_mov_b64 s[52:53], exec")
    a("s_mov_b64 exec, 1")
    a("global_store_dword v2, v3, s[12:13] sc1")
    a("s_mov_b64 exec, s[52:53]")
    a.label(L('rs4'))
    if cfg.get('cpf', 1):
        a("s_and_b32 s43, s17, 1")
        a("s_lshl_b32 s43, s43, 3")
        a("s_add_u32 s43, s43, s20")
        code_prefetch(a, 'gm_k1_kernel', 'gm_code_end', 's43', 3, 'k1', vtmp=200)
    a("s_lshl_b32 s18, s18, 7")
    a("s_lshl_b32 s43, s20, 4")
    a("s_add_u32 s18, s18, s43")
    srd(a, 24, 4, 2048*1024)
    srd(a, 28, 58, 1024)
    srd(a, 32, 14, WS_END)
    a("v_and_b32 v2, 15, v1")
    a("v_lshrrev_b32 v3, 4, v1")
    a("v_lshlrev_b32 v4, 4, v2")
    for q in range(4): a(f"buffer_load_dwordx4 {r4(16+4*q)}, v4, s[28:31], 0 offen offset:{256*q}")
    a("v_add_u32 v5, s18, v3")
    a("v_lshl_add_u32 v5, v5, 10, v4")
    for it in range(4):
        for q in range(4): a(f"buffer_load_dwordx4 {r4(64+16*it+4*q)}, v5, s[24:27], 0 offen offset:{256*q}")
        a("v_add_u32 v5, 4096, v5")
    a("v_add_u32 v6, s18, v3")
    a("v_lshlrev_b32 v6, 2, v6")
    npf2 = 0
    for it in range(4):
        a(f"s_waitcnt vmcnt({4*(3-it)+npf2})")
        b = 64+16*it
        a(f"v_dot2_f32_bf16 v8, v{b}, v16, 0")
        for r in range(1, 16): a(f"v_dot2_f32_bf16 v8, v{b+r}, v{16+r}, v8")
        a("s_nop 2")
        for sh in ('row_shr:8', 'row_shr:4', 'row_shr:2', 'row_shr:1'):
            a(f"v_add_f32_dpp v8, v8, v8 {sh} row_mask:0xf bank_mask:0xf bound_ctrl:1")
        a(f"v_mul_f32 v8, {hex(f2u(-LOG2E))}, v8")
        a("v_exp_f32 v8, v8")
        a("v_add_f32 v8, 1.0, v8")
        a("v_rcp_f32 v8, v8")
        a(f"v_mov_b32 v{32+it}, v8")
    a("v_cmp_eq_u32 s[52:53], 15, v2")
    a("s_mov_b64 s[54:55], exec")
    a("s_and_b64 exec, exec, s[52:53]")
    a(f"s_mov_b32 s51, {WS_G}")
    for it in range(4):
        a(f"buffer_store_dword v{32+it}, v6, s[32:35], s51 offen offset:{16*it}")
    a("s_mov_b64 exec, s[54:55]")
    if cfg.get('pf', 1):
        a("s_lshr_b32 s48, s18, 4")
        a("v_lshlrev_b32 v9, 4, v1")
        srd(a, 36, 60, 512*1024)
        srd(a, 44, 56, 896*1024)
        a("s_lshl_b32 s49, s48, 12")
        for q in range(4): a(f"buffer_load_dwordx4 {r4(128+4*q)}, v9, s[36:39], s49 offen offset:{q*1024}")
        a("s_mul_i32 s49, s48, 7168")
        for q in range(7):
            if q == 4: a("s_add_u32 s49, s49, 4096")
            a(f"buffer_load_dwordx4 {r4(144+4*q)}, v9, s[44:47], s49 offen offset:{(q%4)*1024}")
        srd(a, 80, 10, 2048*4096)
        a("s_lshr_b32 s43, s16, 1")
        a("s_lshl_b32 s43, s43, 21")
        a("s_lshl_b32 s44, s17, 16")
        a("s_add_u32 s43, s43, s44")
        a("s_lshl_b32 s44, s20, 13")
        a("s_add_u32 s43, s43, s44")
        for q in range(8):
            a(f"buffer_load_dwordx4 {r4(64+4*q)}, v9, s[80:83], s43 offen offset:{(q%4)*1024}")
            if q == 3: a("s_add_u32 s43, s43, 4096")
        a("s_waitcnt vmcnt(0)")
    a.label(L('fin'))
    if ts.on: a("s_waitcnt vmcnt(0)")
    ts(7)
    ts.flush()
    a.label(L('fin2'))
    a.label(L('end'))
    a("s_endpgm")
    a.check_protected(list(range(4, 16)) + list(range(56, 62)))
    n = a.fix_hazards()
    return a, n
```

```python
from asmlib import *
from common import *

NAME = 'gm_k1_kernel'
SLOT = 32768
NSLOT = 4
EP = NSLOT*SLOT
LDS_BYTES = EP + 1024 + 16384
GRID = 256
BLOCK = 512
VGPRS = 256
HUGE = 0x7ff00000
SENT = 0xffffffff

ACC = 16
X = [128, 144]
W = [160, 176]
XA = [216, 217]
WA = [218+i for i in range(7)]
PK = 192
VX = [16+i for i in range(4)]
VW = [[20+i for i in range(4)], [24+i for i in range(4)]]
def acc(n, tt): return ACC + (n*4+tt)*4
def r4(b): return f"v[{b}:{b+3}]"
def r2(b): return f"v[{b}:{b+1}]"

def gelu_pairs(a, regs, t0, cpair0, cpair1, one, G=4):
    for k in range(0, len(regs), G):
        grp = regs[k:k+G]
        T = [t0 + 2*i for i in range(len(grp))]
        for x, t in zip(grp, T): a(f"v_pk_mul_f32 {r2(t)}, {r2(x)}, {r2(x)}")
        for x, t in zip(grp, T): a(f"v_pk_fma_f32 {r2(t)}, {r2(t)}, {r2(cpair1)}, {r2(cpair0)}")
        for x, t in zip(grp, T): a(f"v_pk_mul_f32 {r2(t)}, {r2(t)}, {r2(x)}")
        for x, t in zip(grp, T):
            a(f"v_exp_f32 v{t}, v{t}"); a(f"v_exp_f32 v{t+1}, v{t+1}")
        for x, t in zip(grp, T): a(f"v_pk_add_f32 {r2(t)}, {r2(t)}, {r2(one)}")
        for x, t in zip(grp, T):
            a(f"v_rcp_f32 v{t}, v{t}"); a(f"v_rcp_f32 v{t+1}, v{t+1}")
        for x, t in zip(grp, T): a(f"v_pk_mul_f32 {r2(x)}, {r2(x)}, {r2(t)}")

def build(cfg):
    a = Asm()
    L = lambda s: f"K1_{s}"
    FL = {0: '', 1: 'sc0 sc1', 2: 'sc1'}
    ST = FL[cfg.get('st1', 2)]
    XS = 'sc1'
    PSTEP = cfg.get('pstep', 10)
    a(f"s_cmp_ge_u32 s2, 256")
    a(f"s_cbranch_scc1 {L('end')}")
    ts = Stamper(a, cfg, 0)
    ts.init()
    for i in range(8): ts(i)
    a(f"s_load_dwordx4 s[4:7], s[0:1], {KA_X}")
    a(f"s_load_dwordx4 s[8:11], s[0:1], {KA_WIN}")
    a(f"s_load_dwordx4 s[12:15], s[0:1], {KA_DBG}")
    a(f"s_load_dwordx4 s[56:59], s[0:1], {KA_WOUT}")
    a(f"s_load_dwordx2 s[60:61], s[0:1], {KA_WO}")
    a("v_lshrrev_b32 v2, 6, v0")
    a("v_and_b32 v1, 63, v0")
    a("v_readfirstlane_b32 s20, v2")
    a("s_and_b32 s16, s2, 7")
    a("s_lshr_b32 s17, s2, 3")
    a("s_lshr_b32 s18, s16, 2")
    a("s_lshl_b32 s18, s18, 3")
    a("s_and_b32 s43, s16, 3")
    a("s_mul_i32 s44, s43, 30")
    a("s_add_u32 s44, s44, s17")
    a("s_lshr_b32 s19, s44, 3")
    a("s_and_b32 s44, s44, 7")
    a("s_lshl_b32 s43, s43, 1")
    a("s_add_u32 s43, s43, s17")
    a("s_sub_u32 s43, s43, 30")
    a("s_cmp_ge_u32 s17, 30")
    a("s_cselect_b32 s44, s43, s44")
    a("s_add_u32 s18, s18, s44")
    a("s_cmp_ge_u32 s17, 30")
    a(f"s_cbranch_scc1 {L('spare')}")
    a("s_cmp_ge_u32 s20, 4")
    a(f"s_cbranch_scc1 {L('loader')}")
    a("s_lshr_b32 s21, s20, 1")
    a("s_and_b32 s22, s20, 1")
    a("s_mul_i32 s43, s18, 14")
    a("s_add_u32 s43, s43, s19")
    a("s_lshl_b32 s43, s43, 1")
    a("s_add_u32 s43, s43, s22")
    a("s_lshl_b32 s43, s43, 10")
    a("s_lshl_b32 s44, s21, 9")
    a("s_add_u32 s43, s43, s44")
    a(f"s_add_u32 s62, s43, {WS_STAT}")
    a("v_and_b32 v2, 15, v1")
    a("v_lshrrev_b32 v3, 4, v1")
    a("v_lshrrev_b32 v4, 1, v2")
    a("v_xor_b32 v4, v4, v3")
    a("s_lshl_b32 s43, s21, 6")
    a("v_add_u32 v5, s43, v2")
    a("v_lshlrev_b32 v5, 7, v5")
    a(f"v_lshl_add_u32 v{XA[0]}, v4, 4, v5")
    a(f"v_xor_b32 v{XA[1]}, 64, v{XA[0]}")
    a("v_lshrrev_b32 v4, 2, v1")
    a("v_and_b32 v4, 7, v4")
    a("v_lshrrev_b32 v5, 5, v1")
    a("v_lshlrev_b32 v5, 11, v5")
    a("v_lshl_add_u32 v5, v4, 7, v5")
    a("v_lshrrev_b32 v4, 1, v4")
    a("v_lshl_add_u32 v5, v4, 5, v5")
    a("v_and_b32 v4, 3, v1")
    a("v_lshl_add_u32 v5, v4, 3, v5")
    a("s_and_b32 s48, s19, 1")
    a("s_lshl_b32 s48, s48, 1")
    a("s_mul_i32 s49, s22, 3")
    a("s_add_u32 s48, s48, s49")
    a("s_lshl_b32 s49, s22, 1")
    a("s_lshl_b32 s50, s22, 2")
    for n in range(7):
        if n < 2: a(f"s_add_u32 s43, s49, {n}"); a(f"s_add_u32 s44, s50, {n}")
        elif n < 4: a(f"s_add_u32 s43, s49, {4+n-2}"); a(f"s_add_u32 s44, s50, {n}")
        else: a(f"s_add_u32 s43, s48, {n-4}"); a(f"s_add_u32 s44, s49, {min(n-4,1)}")
        a("s_cmp_eq_u32 s19, 14")
        a("s_cselect_b32 s43, s44, s43")
        a("s_and_b32 s44, s43, 3")
        a("s_lshl_b32 s44, s44, 5")
        a("s_lshr_b32 s43, s43, 2")
        a("s_lshl_b32 s43, s43, 12")
        a("s_add_u32 s43, s43, 16384")
        a(f"v_xor_b32 v{WA[n]}, s44, v5")
        a(f"v_add_u32 v{WA[n]}, s43, v{WA[n]}")
    for r in range(ACC, ACC+112): a(f"v_mov_b32 v{r}, 0")
    def tiles(ph): return range(4) if ph == 0 else range(4, 7)
    def reads(ph, ks, buf):
        out = []
        for tt in range(4):
            out.append(f"ds_read_b128 {r4(X[buf]+4*tt)}, v{XA[ks]} offset:{tt*2048}")
        for q, n in enumerate(tiles(ph)):
            for s in range(2):
                out.append(f"ds_read_b64_tr_b16 {r2(W[buf]+4*q+2*s)}, v{WA[n]} offset:{ks*8192+s*1024}")
        return out
    def mfmas(ph, buf):
        if cfg.get('nomfma'): return ["s_nop 0"]*4
        return [f"v_mfma_f32_16x16x32_bf16 {r4(acc(n,tt))}, {r4(W[buf]+4*q)}, {r4(X[buf]+4*tt)}, {r4(acc(n,tt))}"
                for q, n in enumerate(tiles(ph)) for tt in range(4)]
    a("s_mov_b32 s40, 0")
    a("s_mov_b32 s41, 0")
    a("s_waitcnt lgkmcnt(0)")
    srd(a, 32, 14, WS_END)
    if cfg.get('l2w', 2) == 1:
        srd(a, 24, 4, 2048*1024)
        srd(a, 28, 6, 512*3072)
        a("s_lshl_b32 s43, s18, 7")
        a("s_and_b32 s44, s19, 3")
        a("s_lshl_b32 s44, s44, 5")
        a("s_add_u32 s43, s43, s44")
        a("s_lshl_b32 s44, s20, 3")
        a("s_add_u32 s43, s43, s44")
        a("s_lshl_b32 s43, s43, 10")
        a("s_and_b32 s44, s18, 7")
        a("s_add_u32 s44, s44, 4")
        a("s_lshl_b32 s44, s44, 7")
        a("v_and_b32 v2, 31, v1")
        a("v_lshlrev_b32 v2, 4, v2")
        a("v_add_u32 v2, s44, v2")
        a("v_and_b32 v2, 1023, v2")
        a("v_lshrrev_b32 v3, 5, v1")
        a("v_lshl_add_u32 v2, v3, 10, v2")
        for q in range(4):
            a(f"buffer_load_dwordx4 {r4(PK+4*q)}, v2, s[24:27], s43 offen offset:{(q%2)*2048}")
            if q == 1: a("s_add_u32 s43, s43, 4096")
        a("s_mul_i32 s44, s19, 3")
        a("s_lshr_b32 s44, s44, 1")
        a("s_lshl_b32 s44, s44, 7")
        a("s_cmp_eq_u32 s19, 14")
        a("s_cselect_b32 s44, 2816, s44")
        a("s_and_b32 s43, s18, 7")
        a("s_lshl_b32 s43, s43, 6")
        a("s_lshl_b32 s45, s20, 4")
        a("s_add_u32 s43, s43, s45")
        a("s_mul_i32 s43, s43, 3072")
        a("s_add_u32 s43, s43, s44")
        a("v_lshrrev_b32 v2, 4, v1")
        a("v_mul_u32_u24 v2, 3072, v2")
        a("v_and_b32 v3, 15, v1")
        a("v_lshl_add_u32 v2, v3, 4, v2")
        for q in range(4):
            a(f"buffer_load_dwordx4 {r4(PK+4*q)}, v2, s[28:31], s43 offen")
            if q < 3: a(f"s_add_u32 s43, s43, {4*3072}")
    ts(1)
    a("s_barrier")
    ts(2)
    for t in reads(0, 0, 0): a(t)
    def adv_addr(regs):
        return [f"v_add_u32 v{r}, s51, v{r}" for r in regs]
    def loop(ph):
        lab = L(f'loop{ph}')
        a("s_waitcnt lgkmcnt(0)")
        a.label(lab)
        if ph == 1:
            a("s_cmp_eq_u32 s40, s62")
            a(f"s_cbranch_scc1 {L('zfin')}")
            a.label(L('zback'))
        sal = ["s_cmp_eq_u32 s41, %d" % (NSLOT-1), f"s_mov_b32 s51, {SLOT}", f"s_cselect_b32 s51, {(-(NSLOT-1)*SLOT) & 0xffffffff}, s51",
               "s_add_u32 s41, s41, 1", f"s_and_b32 s41, s41, {NSLOT-1}", "s_add_u32 s40, s40, 1"]
        for t in interleave(mfmas(ph, 0), reads(ph, 1, 1) + sal): a(t)
        a("s_waitcnt lgkmcnt(0)")
        a("s_barrier")
        rd = reads(ph, 0, 0)
        nW = len(list(tiles(ph)))
        fill = [f"v_add_u32 v{XA[0]}, s51, v{XA[0]}"] + rd[:4] + [f"v_add_u32 v{XA[1]}, s51, v{XA[1]}"]
        cur = list(tiles(ph)); oth = [n for n in range(7) if n not in cur]
        for q, n in enumerate(cur):
            fill.append(f"v_add_u32 v{WA[n]}, s51, v{WA[n]}")
            fill += rd[4+2*q:6+2*q]
        fill += adv_addr([WA[n] for n in oth])
        fill += ["s_cmp_lt_u32 s40, 8"]
        for t in interleave(mfmas(ph, 1), fill): a(t)
        if ph == 0:
            pass
        a("s_waitcnt lgkmcnt(0)")
        a(f"s_cbranch_scc1 {lab}")
    loop(0)
    ts(3)
    a("v_and_b32 v2, 15, v1")
    a("v_lshrrev_b32 v3, 4, v1")
    for t in reads(1, 0, 0): a(t)
    a("s_waitcnt vmcnt(0)")
    a("s_cmp_eq_u32 s19, 14")
    a(f"s_cbranch_scc1 {L('pure_mid')}")
    a("s_lshl_b32 s43, s18, 2")
    a("v_mov_b32 v10, s43")
    a("global_load_dword v11, v10, s[12:13] sc1")
    Z1K1 = cfg.get('z1k1', 0)
    if Z1K1:
        a("s_lshl_b32 s47, s20, 12")
        a(f"s_add_u32 s47, s47, {EP+1024}")
        a("v_lshlrev_b32 v5, 4, v1")
        a("v_add_u32 v5, s47, v5")
        for tp in range(2):
            for k, n in enumerate((2, 3)):
                t = PK + 8*tp + 4*k
                for e in range(2):
                    c = acc(n, 2*tp+e)
                    a(f"v_cvt_pk_bf16_f32 v{t+2*e}, v{c}, v{c+1}")
                    a(f"v_cvt_pk_bf16_f32 v{t+2*e+1}, v{c+2}, v{c+3}")
                a(f"ds_write_b128 v5, {r4(t)} offset:{(tp*2+k)*1024}")
    CP0, CP1, ONE = 226, 228, 230
    for r in (CP0, CP0+1): a(f"v_mov_b32 v{r}, {hex(f2u(GELU_C0))}")
    for r in (CP1, CP1+1): a(f"v_mov_b32 v{r}, {hex(f2u(GELU_C1))}")
    for r in (ONE, ONE+1): a(f"v_mov_b32 v{r}, 1.0")
    zregs = [acc(n, tt) + 2*h for n in range(2) for tt in range(4) for h in range(2)]
    gelu_pairs(a, zregs, PK, CP0, CP1, ONE)
    T = PK
    for tt in range(4):
        z = [acc(0, tt), acc(0, tt)+2, acc(1, tt), acc(1, tt)+2]
        t = T + 6*tt
        a(f"v_pk_add_f32 {r2(t)}, {r2(z[0])}, {r2(z[1])}")
        a(f"v_pk_mul_f32 {r2(t+2)}, {r2(z[0])}, {r2(z[0])}")
        a(f"v_pk_add_f32 {r2(t+4)}, {r2(z[2])}, {r2(z[3])}")
        a(f"v_pk_fma_f32 {r2(t+2)}, {r2(z[1])}, {r2(z[1])}, {r2(t+2)}")
        a(f"v_pk_add_f32 {r2(t)}, {r2(t)}, {r2(t+4)}")
        a(f"v_pk_fma_f32 {r2(t+2)}, {r2(z[2])}, {r2(z[2])}, {r2(t+2)}")
        a(f"v_pk_fma_f32 {r2(t+2)}, {r2(z[3])}, {r2(z[3])}, {r2(t+2)}")
        a(f"v_add_f32 v{t}, v{t}, v{t+1}")
        a(f"v_add_f32 v{t+1}, v{t+2}, v{t+3}")
    V = lambda tt, c: T + 6*tt + c
    for c in range(2):
        a(f"v_permlane32_swap_b32 v{V(0,c)}, v{V(2,c)}")
        a(f"v_permlane32_swap_b32 v{V(1,c)}, v{V(3,c)}")
    for c in range(2):
        a(f"v_add_f32 v{V(0,c)}, v{V(0,c)}, v{V(2,c)}")
        a(f"v_add_f32 v{V(1,c)}, v{V(1,c)}, v{V(3,c)}")
    for c in range(2): a(f"v_permlane16_swap_b32 v{V(0,c)}, v{V(1,c)}")
    a(f"v_add_f32 v4, v{V(0,0)}, v{V(1,0)}")
    a(f"v_add_f32 v5, v{V(0,1)}, v{V(1,1)}")
    a("v_lshlrev_b32 v6, 3, v1")
    a("s_mov_b32 s88, 0")
    a.label(L('fchk'))
    a("s_waitcnt vmcnt(0)")
    a("v_readfirstlane_b32 s43, v11")
    a("s_cmp_lg_u32 s43, 0")
    a(f"s_cbranch_scc1 {L('fok')}")
    a("s_add_u32 s88, s88, 1")
    a("s_cmp_ge_u32 s88, 0x40000")
    a(f"s_cbranch_scc1 {L('fok')}")
    a("global_load_dword v11, v10, s[12:13] sc1")
    a(f"s_branch {L('fchk')}")
    a.label(L('fok'))
    a(f"buffer_store_dwordx2 v[4:5], v6, s[32:35], s62 offen {XS}")
    ts(4)
    a(f"s_mov_b32 s62, {PSTEP-4}")
    if not Z1K1:
        a("s_lshl_b32 s43, s18, 2")
        a("s_lshl_b32 s44, s21, 1")
        a("s_add_u32 s43, s43, s44")
        a("s_mul_i32 s43, s43, 56")
        a("s_lshl_b32 s44, s19, 2")
        a("s_add_u32 s43, s43, s44")
        a("s_lshl_b32 s44, s22, 1")
        a("s_add_u32 s43, s43, s44")
        a("s_lshl_b32 s43, s43, 10")
        a(f"s_add_u32 s54, s43, {WS_H1}")
        a("v_lshlrev_b32 v5, 4, v1")
        for tp in range(2):
            for k, n in enumerate((2, 3)):
                t = PK + 8*tp + 4*k
                for e in range(2):
                    c = acc(n, 2*tp+e)
                    a(f"v_cvt_pk_bf16_f32 v{t+2*e}, v{c}, v{c+1}")
                    a(f"v_cvt_pk_bf16_f32 v{t+2*e+1}, v{c+2}, v{c+3}")
                if k == 0: a(f"s_add_u32 s43, s54, {tp*56*1024}")
                a(f"buffer_store_dwordx4 {r4(t)}, v5, s[32:35], s43 offen offset:{k*1024} {FL[cfg.get('sth1', 2)]}")
    a(f"s_branch {L('phase1')}")
    a.label(L('pure_mid'))
    a("s_mov_b32 s62, 99")
    def vq():
        a("s_lshl_b32 s43, s18, 7")
        a("s_lshl_b32 s44, s21, 6")
        a("s_add_u32 s43, s43, s44")
        a("v_add_u32 v4, s43, v2")
        a("v_lshlrev_b32 v4, 5, v4")
        a("v_lshl_add_u32 v4, v3, 3, v4")
    def qkv_out(n, ct_sgpr_expr, T2):
        a("s_cmp_lt_u32 s45, 32")
        a(f"s_cselect_b32 s44, {hex(f2u(QSCALE))}, 1.0")
        a("s_lshl_b32 s43, s45, 16")
        if WS_QKV: a(f"s_add_u32 s43, s43, {WS_QKV}")
        a(f"v_mov_b32 v8, s44")
        a(f"v_mov_b32 v9, s44")
        for tt in range(4):
            c = acc(n, tt); t = T2 + 2*tt
            a(f"v_pk_mul_f32 {r2(c)}, {r2(c)}, v[8:9]")
            a(f"v_pk_mul_f32 {r2(c+2)}, {r2(c+2)}, v[8:9]")
            a(f"v_cvt_pk_bf16_f32 v{t}, v{c}, v{c+1}")
            a(f"v_cvt_pk_bf16_f32 v{t+1}, v{c+2}, v{c+3}")
            a(f"buffer_store_dwordx2 {r2(t)}, v4, s[32:35], s43 offen offset:{tt*512} {ST}")
    vq()
    for n in range(4):
        a("s_lshl_b32 s45, s22, 2")
        a(f"s_add_u32 s45, s45, {84+n}")
        qkv_out(n, None, PK + 8*(n % 3))
    a.label(L('phase1'))
    a("s_mov_b32 s40, 0")
    loop(1)
    ts(5)
    a("v_and_b32 v2, 15, v1")
    a("v_lshrrev_b32 v3, 4, v1")
    vq()
    a("s_cmp_eq_u32 s19, 14")
    a(f"s_cbranch_scc1 {L('pure_tail')}")
    a("s_mul_i32 s55, s19, 6")
    a("s_mul_i32 s44, s22, 3")
    a("s_add_u32 s55, s55, s44")
    for k in range(3):
        a(f"s_add_u32 s45, s55, {k}")
        qkv_out(4+k, None, W[0] + 8*k)
    a(f"s_branch {L('fin')}")
    a.label(L('zfin'))
    ZS, ZT = 232, 240
    a("v_and_b32 v2, 15, v1")
    a("v_lshrrev_b32 v3, 4, v1")
    a("s_lshl_b32 s43, s21, 6")
    a("v_add_u32 v6, s43, v2")
    a("v_lshlrev_b32 v6, 3, v6")
    a(f"v_add_u32 v6, {EP}, v6")
    for tt in range(4): a(f"ds_read_b64 {r2(ZS+2*tt)}, v6 offset:{tt*128}")
    a("s_lshl_b32 s47, s20, 12")
    a(f"s_add_u32 s47, s47, {EP+1024}")
    a("v_lshlrev_b32 v6, 5, v2")
    a("v_lshl_add_u32 v6, v3, 3, v6")
    a("v_add_u32 v6, s47, v6")
    a("s_waitcnt lgkmcnt(0)")
    for n in range(2):
        for tt in range(4):
            c = acc(n, tt); mr, r = ZS+2*tt, ZS+2*tt+1
            for i in range(4): a(f"v_fma_f32 v{c+i}, v{c+i}, v{r}, v{mr}")
            t = PK + 2*(n*4+tt)
            a(f"v_cvt_pk_bf16_f32 v{t}, v{c}, v{c+1}")
            a(f"v_cvt_pk_bf16_f32 v{t+1}, v{c+2}, v{c+3}")
            a(f"ds_write_b64 v6, {r2(t)} offset:{n*2048+tt*512}")
    a("v_lshlrev_b32 v6, 3, v2")
    a("v_lshl_add_u32 v6, v3, 8, v6")
    a("v_add_u32 v6, s47, v6")
    a("s_lshl_b32 s43, s19, 2")
    a("s_lshl_b32 s44, s22, 1")
    a("s_add_u32 s43, s43, s44")
    a("s_lshl_b32 s43, s43, 16")
    a("s_lshl_b32 s44, s18, 2")
    a("s_lshl_b32 s45, s21, 1")
    a("s_add_u32 s44, s44, s45")
    a("s_lshl_b32 s44, s44, 10")
    a("s_add_u32 s43, s43, s44")
    a(f"s_add_u32 s46, s43, {WS_Z2N}")
    a("s_add_u32 s47, s46, 65536")
    a("v_lshlrev_b32 v7, 4, v1")
    a("s_waitcnt lgkmcnt(0)")
    for n in range(2):
        for kk in range(2):
            for sx in range(2):
                a(f"ds_read_b64_tr_b16 {r2(ZT+4*(n*2+kk)+2*sx)}, v6 offset:{n*2048+kk*1024+sx*128}")
    for n in range(2):
        for kk in range(2):
            a(f"s_waitcnt lgkmcnt({6-2*(n*2+kk)})")
            a(f"buffer_store_dwordx4 {r4(ZT+4*(n*2+kk))}, v7, s[32:35], {'s46' if n==0 else 's47'} offen offset:{kk*1024} {FL[cfg.get('stz', 2)]}")
    a("s_mov_b32 s62, 99")
    a(f"s_branch {L('zback')}")
    a.label(L('pure_tail'))
    for k in range(2):
        a("s_lshl_b32 s45, s22, 1")
        a(f"s_add_u32 s45, s45, {92+k}")
        qkv_out(4+k, None, W[0] + 8*k)
    a(f"s_branch {L('fin')}")
    a.label(L('loader'))
    if cfg.get('lprio', 1): a(f"s_setprio {cfg.get('lprio', 1)}")
    a("s_sub_u32 s20, s20, 4")
    ts.role(1)
    a("s_lshr_b32 s21, s20, 1")
    a("s_and_b32 s22, s20, 1")
    a("s_lshl_b32 s43, s19, 7")
    a("s_cmp_eq_u32 s21, 0")
    a("s_cselect_b32 s44, 1792, 0")
    a("s_add_u32 s43, s43, s44")
    a("s_lshl_b32 s44, s21, 7")
    a("s_add_u32 s44, s44, 2688")
    a("s_mul_i32 s45, s19, 3")
    a("s_lshr_b32 s45, s45, 1")
    a("s_add_u32 s45, s45, s21")
    a("s_lshl_b32 s45, s45, 7")
    a("s_cmp_eq_u32 s19, 14")
    a("s_cselect_b32 s43, s44, s43")
    a("s_cselect_b32 s45, 2944, s45")
    a("s_movk_i32 s36, 3584")
    a("s_cselect_b32 s36, 3072, s36")
    a("s_cselect_b32 s46, 0, 1")
    a("v_lshrrev_b32 v2, 3, v1")
    a("v_and_b32 v3, 7, v1")
    a("v_lshrrev_b32 v4, 1, v2")
    a("s_lshl_b32 s44, s18, 7")
    a("s_lshl_b32 s47, s20, 5")
    a("s_add_u32 s44, s44, s47")
    a("v_add_u32 v5, s44, v2")
    a("v_lshlrev_b32 v5, 10, v5")
    a("v_xor_b32 v6, v3, v4")
    a("v_xor_b32 v7, 4, v6")
    a("v_lshl_add_u32 v6, v6, 4, v5")
    a("v_lshl_add_u32 v7, v7, 4, v5")
    a(f"v_mov_b32 v{VX[0]}, v6")
    a(f"v_add_u32 v{VX[1]}, 7168, v7")
    a(f"v_add_u32 v{VX[2]}, {2*7168}, v6")
    a(f"v_add_u32 v{VX[3]}, {3*7168}, v7")
    a("v_and_b32 v5, 3, v2")
    a("v_lshrrev_b32 v6, 2, v2")
    a("v_lshl_add_u32 v5, v6, 3, v5")
    a("v_lshlrev_b32 v6, 1, v4")
    a("v_xor_b32 v6, v3, v6")
    a("v_lshlrev_b32 v6, 4, v6")
    a("s_lshl_b32 s48, s22, 5")
    a("v_add_u32 v5, s48, v5")
    for ph in range(2):
        st = 's36' if ph == 0 else 's37'
        if ph == 1: a("s_movk_i32 s37, 3072")
        a(f"v_mul_lo_u32 v7, v5, {st}")
        a("v_add_u32 v7, v7, v6")
        for b in range(4):
            h, s = b >> 1, b & 1
            a(f"s_mul_i32 s44, {st}, {16*h+4*s}")
            a(f"s_sub_u32 s44, s44, {b*1024}")
            a(f"v_add_u32 v{VW[ph][b]}, s44, v7")
    a("s_lshl_b32 s47, s20, 12")
    a("s_lshl_b32 s48, s22, 13")
    a("s_lshl_b32 s49, s21, 12")
    a("s_add_u32 s48, s48, s49")
    a("s_add_u32 s48, s48, 16384")
    a("s_cmp_eq_u32 s46, 1")
    a("s_waitcnt lgkmcnt(0)")
    a("s_cselect_b32 s28, s8, s6")
    a("s_cselect_b32 s29, s9, s7")
    a("s_add_u32 s28, s28, s43")
    a("s_addc_u32 s29, s29, 0")
    a("s_lshl_b32 s30, s36, 9")
    a("s_sub_u32 s30, s30, s43")
    a("s_mov_b32 s31, 0x20000")
    a("s_add_u32 s24, s6, s45")
    a("s_addc_u32 s25, s7, 0")
    a(f"s_mov_b32 s26, {512*3072}")
    a("s_sub_u32 s26, s26, s45")
    a("s_mov_b32 s27, 0x20000")
    srd(a, 84, 4, 2048*1024)
    srd(a, 32, 14, WS_END)
    LD = cfg.get('ld1', '')
    XR = cfg.get('xreuse', 1)
    def koff(s_): return s_ if s_ < 8 else ((s_-4 if s_ < 12 else s_-12) if XR else s_-8)
    def hasx(s_): return not (XR and 8 <= s_ < 12)
    def nins(s_): return 8 if hasx(s_) else 4
    def prep(s_):
        ph = s_ >> 3; base = (s_ % NSLOT)*SLOT
        a(f"s_add_u32 s45, s23, {koff(s_)}")
        a("s_and_b32 s45, s45, 7")
        a("s_lshl_b32 s46, s45, 7")
        a(f"s_mul_i32 s44, s45, {'s38' if ph == 0 else 's39'}")
        if cfg.get('nodma'): a("s_mov_b32 s46, 0x7ff00000"); a("s_mov_b32 s44, 0x7ff00000")
        a(f"s_add_u32 s49, s48, {base}")
        if hasx(s_): a(f"s_add_u32 m0, s47, {base}")
        else: a("s_mov_b32 m0, s49")
    def fire(s_):
        ph = s_ >> 3
        if hasx(s_):
            for i in range(4): a(f"buffer_load_dwordx4 v{VX[i]}, s[84:87], s46 offen offset:{i*1024} {LD} lds")
            a("s_mov_b32 m0, s49")
        S = 's[28:31]' if ph == 0 else 's[24:27]'
        for b in range(4): a(f"buffer_load_dwordx4 v{VW[ph][b]}, {S}, s44 offen offset:{b*1024} {LD} lds")
    class LQ:
        def __init__(self, q=None): self.q = list(q or [])
        def add(self, kind, key, n): self.q.append((kind, key, n))
        def allowed(self, step, also=()):
            idx = max([k for k, e in enumerate(self.q) if (e[0] == 'D' and e[1] <= step) or e[0] in also], default=-1)
            return sum(e[2] for e in self.q[idx+1:])
        def copy(self): return LQ(self.q)
    lq = LQ()
    a("s_lshl_b32 s38, s36, 6")
    a(f"s_mov_b32 s39, {64*3072}")
    rot = cfg.get('k1rot', 1)
    if rot == 0: a("s_mov_b32 s23, 0")
    elif rot == 1: a("s_and_b32 s23, s18, 7")
    elif rot == 2: a("s_and_b32 s23, s18, 1"); a("s_lshl_b32 s23, s23, 2")
    elif rot == 3: a("s_and_b32 s23, s18, 3"); a("s_lshl_b32 s23, s23, 1")
    elif rot == 4: a("s_mov_b32 s23, s16")
    elif rot == 5:
        a("s_and_b32 s23, s16, 3"); a("s_lshl_b32 s23, s23, 1"); a("s_lshr_b32 s43, s16, 2"); a("s_add_u32 s23, s23, s43")
    elif rot == 6:
        a("s_and_b32 s23, s18, 1"); a("s_lshl_b32 s23, s23, 2"); a("s_add_u32 s23, s23, s16")
    elif rot == 7:
        a("s_and_b32 s23, s18, 7"); a("s_lshl_b32 s43, s16, 1"); a("s_add_u32 s23, s23, s43")
    for st_ in (0, 1):
        prep(st_); fire(st_); lq.add('D', st_, 8)
    ts(1)
    prep(2)
    a(f"s_waitcnt vmcnt({lq.allowed(0)})")
    a("s_barrier")
    ts(2)
    fire(2); lq.add('D', 2, 8)
    prep(3); fire(3); lq.add('D', 3, 8)
    NW = 0
    if cfg.get('l2w', 2) == 2:
        NW = 8
        lq.add('W', 0, 8)
        a("s_lshl_b32 s43, s18, 7")
        a("s_and_b32 s44, s19, 3")
        a("s_lshl_b32 s44, s44, 5")
        a("s_add_u32 s43, s43, s44")
        a("s_lshl_b32 s44, s20, 3")
        a("s_add_u32 s43, s43, s44")
        a("s_lshl_b32 s43, s43, 10")
        a("s_add_u32 s44, s23, 4")
        a("s_lshl_b32 s44, s44, 7")
        a("v_and_b32 v2, 31, v1")
        a("v_lshlrev_b32 v2, 4, v2")
        a("v_add_u32 v2, s44, v2")
        a("v_and_b32 v2, 1023, v2")
        a("v_lshrrev_b32 v3, 5, v1")
        a("v_lshl_add_u32 v2, v3, 10, v2")
        for q in range(4):
            a(f"buffer_load_dwordx4 {r4(32+4*q)}, v2, s[84:87], s43 offen offset:{(q%2)*2048}")
            if q == 1: a("s_add_u32 s43, s43, 4096")
        a("s_mul_i32 s44, s19, 3")
        a("s_lshr_b32 s44, s44, 1")
        a("s_lshl_b32 s44, s44, 7")
        a("s_cmp_eq_u32 s19, 14")
        a("s_cselect_b32 s44, 2816, s44")
        a("s_and_b32 s43, s18, 7")
        a("s_lshl_b32 s43, s43, 6")
        a("s_lshl_b32 s45, s20, 4")
        a("s_add_u32 s43, s43, s45")
        a("s_mul_i32 s43, s43, 3072")
        a("s_add_u32 s43, s43, s44")
        srd(a, 80, 6, 512*3072)
        a("v_lshrrev_b32 v2, 4, v1")
        a("v_mul_u32_u24 v2, 3072, v2")
        a("v_and_b32 v3, 15, v1")
        a("v_lshl_add_u32 v2, v3, 4, v2")
        for q in range(4):
            a(f"buffer_load_dwordx4 {r4(48+4*q)}, v2, s[80:83], s43 offen")
            if q < 3: a(f"s_add_u32 s43, s43, {4*3072}")
    for b in range(8):
        prep(b+4)
        a(f"s_waitcnt vmcnt({lq.allowed(b+1)})")
        if cfg.get('tsl') and b < 4: ts(3 + b)
        a("s_barrier")
        fire(b+4); lq.add('D', b+4, nins(b+4))
    a("s_cmp_eq_u32 s19, 14")
    a(f"s_cbranch_scc1 {L('lpure')}")
    a("s_lshl_b32 s43, s20, 12")
    a(f"s_add_u32 s43, s43, {EP+1024}")
    a("v_lshlrev_b32 v5, 4, v1")
    a("v_add_u32 v6, s43, v5")
    HP, HC, HT = 32, 48, 80
    C0, C1, C2 = 90, 92, 94
    for r in (C0, C0+1): a(f"v_mov_b32 v{r}, {hex(f2u(GELU_C0))}")
    for r in (C1, C1+1): a(f"v_mov_b32 v{r}, {hex(f2u(GELU_C1))}")
    for r in (C2, C2+1): a(f"v_mov_b32 v{r}, 1.0")
    a("s_lshl_b32 s43, s18, 2")
    a("s_lshl_b32 s44, s21, 1")
    a("s_add_u32 s43, s43, s44")
    a("s_mul_i32 s43, s43, 56")
    a("s_lshl_b32 s44, s19, 2")
    a("s_add_u32 s43, s43, s44")
    a("s_lshl_b32 s44, s22, 1")
    a("s_add_u32 s43, s43, s44")
    a("s_lshl_b32 s43, s43, 10")
    a(f"s_add_u32 s52, s43, {WS_H1}")
    a(f"s_add_u32 s53, s52, {56*1024}")
    def z1_block(q):
        if not Z1K1: return
        a(f"ds_read_b128 {r4(HP)}, v6 offset:{q*1024}")
        a("s_waitcnt lgkmcnt(0)")
        for e in range(4):
            a(f"v_lshlrev_b32 v{HC+2*e}, 16, v{HP+e}")
            a(f"v_and_b32 v{HC+2*e+1}, 0xffff0000, v{HP+e}")
        gelu_pairs(a, [HC+2*e for e in range(4)], HT, C0, C1, C2, G=4)
        t = HP + 4 + 4*(q % 2)
        for e in range(4): a(f"v_cvt_pk_bf16_f32 v{t+e}, v{HC+2*e}, v{HC+2*e+1}")
        a(f"buffer_store_dwordx4 {r4(t)}, v5, s[32:35], {'s52' if q < 2 else 's53'} offen offset:{(q%2)*1024} {FL[cfg.get('sth1', 2)]}")
    a("s_cmp_lt_u32 s20, 2")
    a(f"s_cbranch_scc1 {L('lx')}")
    l2 = lq.copy()
    for b in (8, 9, 10, 11):
        prep(b+4)
        a(f"s_waitcnt vmcnt({l2.allowed(b+1)})")
        a("s_barrier")
        fire(b+4); l2.add('D', b+4, nins(b+4))
        z1_block(b-8)
        if Z1K1: l2.add('S', 0, 1)
    a(f"s_branch {L('lb12m')}")
    a.label(L('lpure'))
    l3 = lq.copy()
    for b in (8, 9, 10, 11):
        prep(b+4)
        a(f"s_waitcnt vmcnt({l3.allowed(b+1)})")
        a("s_barrier")
        fire(b+4); l3.add('D', b+4, nins(b+4))
    a.label(L('lb12m'))
    PFN = 8 if cfg.get('pf', 1) == 2 else 0
    if PFN:
        srd(a, 80, 10, 2048*4096)
        a("s_lshr_b32 s43, s16, 1")
        a("s_lshl_b32 s43, s43, 21")
        a("s_lshl_b32 s44, s17, 16")
        a("s_add_u32 s43, s43, s44")
        a("s_and_b32 s44, s20, 1")
        a("s_lshl_b32 s44, s44, 15")
        a("s_add_u32 s43, s43, s44")
        a("v_lshlrev_b32 v8, 4, v1")
    def pf_batch():
        for q in range(PFN):
            a(f"buffer_load_dwordx4 {r4(64+4*q)}, v8, s[80:83], s43 offen offset:{(q%4)*1024}")
            if q % 4 == 3: a("s_add_u32 s43, s43, 4096")
    a("s_waitcnt vmcnt(16)")
    a("s_barrier")
    pf_batch()
    a(f"s_waitcnt vmcnt({8+PFN})")
    a("s_barrier")
    pf_batch()
    a(f"s_waitcnt vmcnt({2*PFN})")
    a("s_barrier")
    pf_batch()
    a("s_barrier")
    pf_batch()
    if cfg.get('xw', 0):
        a(f"s_mul_i32 s43, s2, {cfg['xw']*1024}")
        a(f"s_add_u32 s43, s43, 0x2000000")
        a(f"s_mov_b32 s90, s14"); a("s_mov_b32 s91, s15")
        a("s_mov_b32 s92, 0x8000000"); a("s_mov_b32 s93, 0x20000")
        a("s_mov_b32 s88, s14"); a("s_mov_b32 s89, s15"); a("s_mov_b32 s90, 0x8000000"); a("s_mov_b32 s91, 0x20000")
        a("s_and_b32 s44, s20, 1")
        a(f"s_mul_i32 s44, s44, {cfg['xw']*512}")
        a("s_add_u32 s43, s43, s44")
        for q in range(cfg['xw']//2):
            a(f"buffer_store_dwordx4 v[64:67], v8, s[88:91], s43 offen offset:{(q%4)*1024} {'sc1' if cfg.get('xwsc',1) else ''}")
            if q % 4 == 3: a("s_add_u32 s43, s43, 4096")
    if cfg.get('pfwait', 1): a("s_waitcnt vmcnt(0)")
    a(f"s_branch {L('fin2') if not cfg.get('pfwait', 1) else L('fin')}")
    a.label(L('lx'))
    a("s_lshl_b32 s43, s20, 6")
    a("v_add_u32 v9, s43, v1")
    a("v_lshlrev_b32 v7, 3, v9")
    a("s_mul_i32 s54, s18, 28672")
    a(f"s_add_u32 s54, s54, {WS_STAT}")
    a("s_mov_b32 s88, 0")
    P = 96
    def poll_loads():
        a("s_mov_b32 s43, s54")
        for q in range(28):
            if q % 4 == 0 and q: a("s_add_u32 s43, s43, 4096")
            a(f"buffer_load_dwordx2 {r2(P+2*q)}, v7, s[32:35], s43 offen offset:{(q%4)*1024} {XS}")
    l1 = lq.copy()
    for b in range(8, PSTEP+3):
        if b+4 < 16: prep(b+4)
        a(f"s_waitcnt vmcnt({l1.allowed(b+1)})")
        a("s_barrier")
        if b+4 < 16:
            fire(b+4); l1.add('D', b+4, nins(b+4))
        if b == PSTEP:
            poll_loads(); l1.add('P', 0, 28)
        if b < 12:
            z1_block(b-8)
            if Z1K1: l1.add('S', 0, 1)
    if not cfg.get('tsl'): ts(3)
    a(f"s_waitcnt vmcnt({l1.allowed(PSTEP+4, also=('P',))})")
    a(f"s_branch {L('pchk1')}")
    a.label(L('pchk'))
    a("s_waitcnt vmcnt(0)")
    a.label(L('pchk1'))
    a(f"v_max_u32 v10, v{P}, v{P+1}")
    for q in range(2, 56, 2): a(f"v_max3_u32 v10, v10, v{P+q}, v{P+q+1}")
    a("v_cmp_eq_u32 vcc, -1, v10")
    a("s_add_u32 s88, s88, 1")
    a("s_cmp_ge_u32 s88, 0x20000")
    a(f"s_cbranch_scc1 {L('polled')}")
    a(f"s_cbranch_vccz {L('polled')}")
    poll_loads()
    a(f"s_branch {L('pchk')}")
    a.label(L('polled'))
    if not cfg.get('tsl'): ts(5)
    if ts.on: a("s_mov_b32 s62, s88")
    for q in range(1, 28): a(f"v_pk_add_f32 {r2(P)}, {r2(P)}, {r2(P+2*q)}")
    m, e2 = P, P+1
    a(f"v_mul_f32 v{m}, {hex(f2u(1.0/896))}, v{m}")
    a(f"v_mul_f32 v{e2}, {hex(f2u(1.0/896))}, v{e2}")
    a(f"v_fma_f32 v{e2}, -v{m}, v{m}, v{e2}")
    a(f"v_max_f32 v{e2}, 0, v{e2}")
    a(f"v_add_f32 v{e2}, {hex(f2u(1e-5))}, v{e2}")
    a(f"v_rsq_f32 v{e2}, v{e2}")
    a(f"v_mul_f32 v{m}, v{m}, v{e2}")
    a(f"v_sub_f32 v{m}, 0, v{m}")
    a(f"v_add_u32 v7, {EP}, v7")
    a(f"ds_write_b64 v7, {r2(m)}")
    a("s_waitcnt lgkmcnt(0)")
    a("s_barrier")
    for b in range(PSTEP+4, 16):
        if b+1 <= 15: a("s_waitcnt vmcnt(0)" if b+1 == 15 else f"s_waitcnt vmcnt({8*(15-(b+1))})")
        a("s_barrier")
    a(f"s_branch {L('fin')}")
    a.label(L('spare'))
    a("s_waitcnt lgkmcnt(0)")
    srd(a, 32, 14, WS_END)
    a("s_mul_i32 s43, s18, 28672")
    a("s_lshl_b32 s44, s20, 10")
    a("s_add_u32 s43, s43, s44")
    a(f"s_add_u32 s43, s43, {WS_STAT}")
    a("v_lshlrev_b32 v2, 4, v1")
    for r in range(4, 8): a(f"v_mov_b32 v{r}, -1")
    for q in range(3):
        a("buffer_store_dwordx4 v[4:7], v2, s[32:35], s43 offen sc1")
        a("s_add_u32 s43, s43, 8192")
    a("s_cmp_lt_u32 s20, 4")
    a(f"s_cbranch_scc0 {L('rs3')}")
    a("buffer_store_dwordx4 v[4:7], v2, s[32:35], s43 offen sc1")
    a.label(L('rs3'))
    if cfg.get('fuse', 1):
        lab = L('zf')
        a("s_cmp_eq_u32 s18, 0")
        a(f"s_cbranch_scc0 {lab}")
        a("s_cmp_ge_u32 s20, 5")
        a(f"s_cbranch_scc0 {lab}")
        a("s_sub_u32 s43, s20, 5")
        a("s_lshl_b32 s43, s43, 10")
        a(f"s_add_u32 s43, s43, {WS_FLAG}")
        for r in range(4, 8): a(f"v_mov_b32 v{r}, 0")
        a("buffer_store_dwordx4 v[4:7], v2, s[32:35], s43 offen sc1")
        a.label(lab)
    a("s_waitcnt vmcnt(0)")
    a("s_barrier")
    a("s_cmp_eq_u32 s20, 0")
    a(f"s_cbranch_scc0 {L('rs4')}")
    a("s_lshl_b32 s43, s18, 2")
    a("v_mov_b32 v2, s43")
    a("v_mov_b32 v3, 1")
    a("s_mov_b64 s[52:53], exec")
    a("s_mov_b64 exec, 1")
    a("global_store_dword v2, v3, s[12:13] sc1")
    a("s_mov_b64 exec, s[52:53]")
    a.label(L('rs4'))
    if cfg.get('cpf', 1):
        a("s_and_b32 s43, s17, 1")
        a("s_lshl_b32 s43, s43, 3")
        a("s_add_u32 s43, s43, s20")
        code_prefetch(a, 'gm_k1_kernel', 'gm_code_end', 's43', 3, 'k1', vtmp=200)
    a("s_lshl_b32 s18, s18, 7")
    a("s_lshl_b32 s43, s20, 4")
    a("s_add_u32 s18, s18, s43")
    srd(a, 24, 4, 2048*1024)
    srd(a, 28, 58, 1024)
    srd(a, 32, 14, WS_END)
    a("v_and_b32 v2, 15, v1")
    a("v_lshrrev_b32 v3, 4, v1")
    a("v_lshlrev_b32 v4, 4, v2")
    for q in range(4): a(f"buffer_load_dwordx4 {r4(16+4*q)}, v4, s[28:31], 0 offen offset:{256*q}")
    a("v_add_u32 v5, s18, v3")
    a("v_lshl_add_u32 v5, v5, 10, v4")
    for it in range(4):
        for q in range(4): a(f"buffer_load_dwordx4 {r4(64+16*it+4*q)}, v5, s[24:27], 0 offen offset:{256*q}")
        a("v_add_u32 v5, 4096, v5")
    a("v_add_u32 v6, s18, v3")
    a("v_lshlrev_b32 v6, 2, v6")
    npf2 = 0
    for it in range(4):
        a(f"s_waitcnt vmcnt({4*(3-it)+npf2})")
        b = 64+16*it
        a(f"v_dot2_f32_bf16 v8, v{b}, v16, 0")
        for r in range(1, 16): a(f"v_dot2_f32_bf16 v8, v{b+r}, v{16+r}, v8")
        a("s_nop 2")
        for sh in ('row_shr:8', 'row_shr:4', 'row_shr:2', 'row_shr:1'):
            a(f"v_add_f32_dpp v8, v8, v8 {sh} row_mask:0xf bank_mask:0xf bound_ctrl:1")
        a(f"v_mul_f32 v8, {hex(f2u(-LOG2E))}, v8")
        a("v_exp_f32 v8, v8")
        a("v_add_f32 v8, 1.0, v8")
        a("v_rcp_f32 v8, v8")
        a(f"v_mov_b32 v{32+it}, v8")
    a("v_cmp_eq_u32 s[52:53], 15, v2")
    a("s_mov_b64 s[54:55], exec")
    a("s_and_b64 exec, exec, s[52:53]")
    a(f"s_mov_b32 s51, {WS_G}")
    for it in range(4):
        a(f"buffer_store_dword v{32+it}, v6, s[32:35], s51 offen offset:{16*it}")
    a("s_mov_b64 exec, s[54:55]")
    if cfg.get('pf', 1):
        a("s_lshr_b32 s48, s18, 4")
        a("v_lshlrev_b32 v9, 4, v1")
        srd(a, 36, 60, 512*1024)
        srd(a, 44, 56, 896*1024)
        a("s_lshl_b32 s49, s48, 12")
        for q in range(4): a(f"buffer_load_dwordx4 {r4(128+4*q)}, v9, s[36:39], s49 offen offset:{q*1024}")
        a("s_mul_i32 s49, s48, 7168")
        for q in range(7):
            if q == 4: a("s_add_u32 s49, s49, 4096")
            a(f"buffer_load_dwordx4 {r4(144+4*q)}, v9, s[44:47], s49 offen offset:{(q%4)*1024}")
        srd(a, 80, 10, 2048*4096)
        a("s_lshr_b32 s43, s16, 1")
        a("s_lshl_b32 s43, s43, 21")
        a("s_lshl_b32 s44, s17, 16")
        a("s_add_u32 s43, s43, s44")
        a("s_lshl_b32 s44, s20, 13")
        a("s_add_u32 s43, s43, s44")
        for q in range(8):
            a(f"buffer_load_dwordx4 {r4(64+4*q)}, v9, s[80:83], s43 offen offset:{(q%4)*1024}")
            if q == 3: a("s_add_u32 s43, s43, 4096")
        a("s_waitcnt vmcnt(0)")
    a.label(L('fin'))
    if ts.on: a("s_waitcnt vmcnt(0)")
    ts(7)
    ts.flush()
    a.label(L('fin2'))
    a.label(L('end'))
    a("s_endpgm")
    a.check_protected(list(range(4, 16)) + list(range(56, 62)))
    n = a.fix_hazards()
    return a, n
```

```python
from asmlib import *
from common import *

NAME = 'gm_k1_kernel'
SLOT = 32768
NSLOT = 4
EP = NSLOT*SLOT
LDS_BYTES = EP + 1024 + 16384
GRID = 256
BLOCK = 512
VGPRS = 256
HUGE = 0x7ff00000
SENT = 0xffffffff

ACC = 16
X = [128, 144]
W = [160, 176]
XA = [216, 217]
WA = [218+i for i in range(7)]
PK = 192
VX = [16+i for i in range(4)]
VW = [[20+i for i in range(4)], [24+i for i in range(4)]]
def acc(n, tt): return ACC + (n*4+tt)*4
def r4(b): return f"v[{b}:{b+3}]"
def r2(b): return f"v[{b}:{b+1}]"

def gelu_pairs(a, regs, t0, cpair0, cpair1, one, G=4):
    for k in range(0, len(regs), G):
        grp = regs[k:k+G]
        T = [t0 + 2*i for i in range(len(grp))]
        for x, t in zip(grp, T): a(f"v_pk_mul_f32 {r2(t)}, {r2(x)}, {r2(x)}")
        for x, t in zip(grp, T): a(f"v_pk_fma_f32 {r2(t)}, {r2(t)}, {r2(cpair1)}, {r2(cpair0)}")
        for x, t in zip(grp, T): a(f"v_pk_mul_f32 {r2(t)}, {r2(t)}, {r2(x)}")
        for x, t in zip(grp, T):
            a(f"v_exp_f32 v{t}, v{t}"); a(f"v_exp_f32 v{t+1}, v{t+1}")
        for x, t in zip(grp, T): a(f"v_pk_add_f32 {r2(t)}, {r2(t)}, {r2(one)}")
        for x, t in zip(grp, T):
            a(f"v_rcp_f32 v{t}, v{t}"); a(f"v_rcp_f32 v{t+1}, v{t+1}")
        for x, t in zip(grp, T): a(f"v_pk_mul_f32 {r2(x)}, {r2(x)}, {r2(t)}")

def build(cfg):
    a = Asm()
    L = lambda s: f"K1_{s}"
    FL = {0: '', 1: 'sc0 sc1', 2: 'sc1'}
    ST = FL[cfg.get('st1', 2)]
    XS = 'sc1'
    PSTEP = cfg.get('pstep', 10)
    a(f"s_cmp_ge_u32 s2, 256")
    a(f"s_cbranch_scc1 {L('end')}")
    ts = Stamper(a, cfg, 0)
    ts.init()
    for i in range(8): ts(i)
    a(f"s_load_dwordx4 s[4:7], s[0:1], {KA_X}")
    a(f"s_load_dwordx4 s[8:11], s[0:1], {KA_WIN}")
    a(f"s_load_dwordx4 s[12:15], s[0:1], {KA_DBG}")
    a(f"s_load_dwordx4 s[56:59], s[0:1], {KA_WOUT}")
    a(f"s_load_dwordx2 s[60:61], s[0:1], {KA_WO}")
    a("v_lshrrev_b32 v2, 6, v0")
    a("v_and_b32 v1, 63, v0")
    a("v_readfirstlane_b32 s20, v2")
    a("s_and_b32 s16, s2, 7")
    a("s_lshr_b32 s17, s2, 3")
    a("s_lshr_b32 s18, s16, 2")
    a("s_lshl_b32 s18, s18, 3")
    a("s_and_b32 s43, s16, 3")
    a("s_mul_i32 s44, s43, 30")
    a("s_add_u32 s44, s44, s17")
    a("s_lshr_b32 s19, s44, 3")
    a("s_and_b32 s44, s44, 7")
    a("s_lshl_b32 s43, s43, 1")
    a("s_add_u32 s43, s43, s17")
    a("s_sub_u32 s43, s43, 30")
    a("s_cmp_ge_u32 s17, 30")
    a("s_cselect_b32 s44, s43, s44")
    a("s_add_u32 s18, s18, s44")
    a("s_cmp_ge_u32 s17, 30")
    a(f"s_cbranch_scc1 {L('spare')}")
    a("s_cmp_ge_u32 s20, 4")
    a(f"s_cbranch_scc1 {L('loader')}")
    a("s_lshr_b32 s21, s20, 1")
    a("s_and_b32 s22, s20, 1")
    a("s_mul_i32 s43, s18, 14")
    a("s_add_u32 s43, s43, s19")
    a("s_lshl_b32 s43, s43, 11")
    a("s_lshl_b32 s44, s21, 10")
    a("s_add_u32 s43, s43, s44")
    a("s_lshl_b32 s44, s22, 3")
    a("s_add_u32 s43, s43, s44")
    a(f"s_add_u32 s62, s43, {WS_STAT}")
    a("v_and_b32 v2, 15, v1")
    a("v_lshrrev_b32 v3, 4, v1")
    a("v_lshrrev_b32 v4, 1, v2")
    a("v_xor_b32 v4, v4, v3")
    a("s_lshl_b32 s43, s21, 6")
    a("v_add_u32 v5, s43, v2")
    a("v_lshlrev_b32 v5, 7, v5")
    a(f"v_lshl_add_u32 v{XA[0]}, v4, 4, v5")
    a(f"v_xor_b32 v{XA[1]}, 64, v{XA[0]}")
    a("v_lshrrev_b32 v4, 2, v1")
    a("v_and_b32 v4, 7, v4")
    a("v_lshrrev_b32 v5, 5, v1")
    a("v_lshlrev_b32 v5, 11, v5")
    a("v_lshl_add_u32 v5, v4, 7, v5")
    a("v_lshrrev_b32 v4, 1, v4")
    a("v_lshl_add_u32 v5, v4, 5, v5")
    a("v_and_b32 v4, 3, v1")
    a("v_lshl_add_u32 v5, v4, 3, v5")
    a("s_and_b32 s48, s19, 1")
    a("s_lshl_b32 s48, s48, 1")
    a("s_mul_i32 s49, s22, 3")
    a("s_add_u32 s48, s48, s49")
    a("s_lshl_b32 s49, s22, 1")
    a("s_lshl_b32 s50, s22, 2")
    for n in range(7):
        if n < 2: a(f"s_add_u32 s43, s49, {n}"); a(f"s_add_u32 s44, s50, {n}")
        elif n < 4: a(f"s_add_u32 s43, s49, {4+n-2}"); a(f"s_add_u32 s44, s50, {n}")
        else: a(f"s_add_u32 s43, s48, {n-4}"); a(f"s_add_u32 s44, s49, {min(n-4,1)}")
        a("s_cmp_eq_u32 s19, 14")
        a("s_cselect_b32 s43, s44, s43")
        a("s_and_b32 s44, s43, 3")
        a("s_lshl_b32 s44, s44, 5")
        a("s_lshr_b32 s43, s43, 2")
        a("s_lshl_b32 s43, s43, 12")
        a("s_add_u32 s43, s43, 16384")
        a(f"v_xor_b32 v{WA[n]}, s44, v5")
        a(f"v_add_u32 v{WA[n]}, s43, v{WA[n]}")
    for r in range(ACC, ACC+112): a(f"v_mov_b32 v{r}, 0")
    def tiles(ph): return range(4) if ph == 0 else range(4, 7)
    def reads(ph, ks, buf):
        out = []
        for tt in range(4):
            out.append(f"ds_read_b128 {r4(X[buf]+4*tt)}, v{XA[ks]} offset:{tt*2048}")
        for q, n in enumerate(tiles(ph)):
            for s in range(2):
                out.append(f"ds_read_b64_tr_b16 {r2(W[buf]+4*q+2*s)}, v{WA[n]} offset:{ks*8192+s*1024}")
        return out
    def mfmas(ph, buf):
        if cfg.get('nomfma'): return ["s_nop 0"]*4
        return [f"v_mfma_f32_16x16x32_bf16 {r4(acc(n,tt))}, {r4(W[buf]+4*q)}, {r4(X[buf]+4*tt)}, {r4(acc(n,tt))}"
                for q, n in enumerate(tiles(ph)) for tt in range(4)]
    a("s_mov_b32 s40, 0")
    a("s_mov_b32 s41, 0")
    a("s_waitcnt lgkmcnt(0)")
    srd(a, 32, 14, WS_END)
    if cfg.get('l2w', 2) == 1:
        srd(a, 24, 4, 2048*1024)
        srd(a, 28, 6, 512*3072)
        a("s_lshl_b32 s43, s18, 7")
        a("s_and_b32 s44, s19, 3")
        a("s_lshl_b32 s44, s44, 5")
        a("s_add_u32 s43, s43, s44")
        a("s_lshl_b32 s44, s20, 3")
        a("s_add_u32 s43, s43, s44")
        a("s_lshl_b32 s43, s43, 10")
        a("s_and_b32 s44, s18, 7")
        a("s_add_u32 s44, s44, 4")
        a("s_lshl_b32 s44, s44, 7")
        a("v_and_b32 v2, 31, v1")
        a("v_lshlrev_b32 v2, 4, v2")
        a("v_add_u32 v2, s44, v2")
        a("v_and_b32 v2, 1023, v2")
        a("v_lshrrev_b32 v3, 5, v1")
        a("v_lshl_add_u32 v2, v3, 10, v2")
        for q in range(4):
            a(f"buffer_load_dwordx4 {r4(PK+4*q)}, v2, s[24:27], s43 offen offset:{(q%2)*2048}")
            if q == 1: a("s_add_u32 s43, s43, 4096")
        a("s_mul_i32 s44, s19, 3")
        a("s_lshr_b32 s44, s44, 1")
        a("s_lshl_b32 s44, s44, 7")
        a("s_cmp_eq_u32 s19, 14")
        a("s_cselect_b32 s44, 2816, s44")
        a("s_and_b32 s43, s18, 7")
        a("s_lshl_b32 s43, s43, 6")
        a("s_lshl_b32 s45, s20, 4")
        a("s_add_u32 s43, s43, s45")
        a("s_mul_i32 s43, s43, 3072")
        a("s_add_u32 s43, s43, s44")
        a("v_lshrrev_b32 v2, 4, v1")
        a("v_mul_u32_u24 v2, 3072, v2")
        a("v_and_b32 v3, 15, v1")
        a("v_lshl_add_u32 v2, v3, 4, v2")
        for q in range(4):
            a(f"buffer_load_dwordx4 {r4(PK+4*q)}, v2, s[28:31], s43 offen")
            if q < 3: a(f"s_add_u32 s43, s43, {4*3072}")
    ts(1)
    a("s_barrier")
    ts(2)
    for t in reads(0, 0, 0): a(t)
    def adv_addr(regs):
        return [f"v_add_u32 v{r}, s51, v{r}" for r in regs]
    def loop(ph):
        if cfg.get('tsc') == ph + 1:
            a("s_waitcnt lgkmcnt(0)")
            for it in range(8): loop_body(ph, it)
            return
        loop_body(ph, None)
    def loop_body(ph, it):
        lab = L(f'loop{ph}')
        if it is None:
            a("s_waitcnt lgkmcnt(0)")
            a.label(lab)
        else:
            a(f"s_memtime s[{64+2*it}:{65+2*it}]")
        if ph == 1:
            if it is None or it == cfg.get('h1it', 4):
                if cfg.get('h1it', 4) >= 0 and not cfg.get('z1k1', 0):
                    a("s_cmp_eq_u32 s40, s89")
                    a(f"s_cbranch_scc1 {L('h1blk')}")
                    a.label(L('h1back'))
            if it is None or it == PSTEP-4:
                a("s_cmp_eq_u32 s40, s62")
                a(f"s_cbranch_scc1 {L('zfin')}")
                a.label(L('zback'))
        sal = ["s_cmp_eq_u32 s41, %d" % (NSLOT-1), f"s_mov_b32 s51, {SLOT}", f"s_cselect_b32 s51, {(-(NSLOT-1)*SLOT) & 0xffffffff}, s51",
               "s_add_u32 s41, s41, 1", f"s_and_b32 s41, s41, {NSLOT-1}", "s_add_u32 s40, s40, 1"]
        for t in interleave(mfmas(ph, 0), reads(ph, 1, 1) + sal, per=cfg.get('k1per', 2)): a(t)
        a("s_waitcnt lgkmcnt(0)")
        a("s_barrier")
        rd = reads(ph, 0, 0)
        nW = len(list(tiles(ph)))
        fill = [f"v_add_u32 v{XA[0]}, s51, v{XA[0]}"] + rd[:4] + [f"v_add_u32 v{XA[1]}, s51, v{XA[1]}"]
        cur = list(tiles(ph)); oth = [n for n in range(7) if n not in cur]
        for q, n in enumerate(cur):
            fill.append(f"v_add_u32 v{WA[n]}, s51, v{WA[n]}")
            fill += rd[4+2*q:6+2*q]
        fill += adv_addr([WA[n] for n in oth])
        fill += ["s_cmp_lt_u32 s40, 8"]
        for t in interleave(mfmas(ph, 1), fill, per=cfg.get('k1per2', 3)): a(t)
        if ph == 0:
            pass
        a("s_waitcnt lgkmcnt(0)")
        if it is None: a(f"s_cbranch_scc1 {lab}")
    loop(0)
    def h1_store():
        a("s_lshl_b32 s43, s18, 2")
        a("s_lshl_b32 s44, s21, 1")
        a("s_add_u32 s43, s43, s44")
        a("s_mul_i32 s43, s43, 56")
        a("s_lshl_b32 s44, s19, 2")
        a("s_add_u32 s43, s43, s44")
        a("s_lshl_b32 s44, s22, 1")
        a("s_add_u32 s43, s43, s44")
        a("s_lshl_b32 s43, s43, 10")
        a(f"s_add_u32 s54, s43, {WS_H1}")
        a("v_lshlrev_b32 v5, 4, v1")
        for tp in range(2):
            for k, n in enumerate((2, 3)):
                t = PK + 8*tp + 4*k
                for e in range(2):
                    c = acc(n, 2*tp+e)
                    a(f"v_cvt_pk_bf16_f32 v{t+2*e}, v{c}, v{c+1}")
                    a(f"v_cvt_pk_bf16_f32 v{t+2*e+1}, v{c+2}, v{c+3}")
                if k == 0: a(f"s_add_u32 s43, s54, {tp*56*1024}")
                a(f"buffer_store_dwordx4 {r4(t)}, v5, s[32:35], s43 offen offset:{k*1024} {FL[cfg.get('sth1', 2)]}")
    if not cfg.get('tsc'): ts(3)
    a("v_and_b32 v2, 15, v1")
    a("v_lshrrev_b32 v3, 4, v1")
    for t in reads(1, 0, 0): a(t)
    a("s_waitcnt vmcnt(0)")
    a("s_cmp_eq_u32 s19, 14")
    a(f"s_cbranch_scc1 {L('pure_mid')}")
    a("s_lshl_b32 s43, s18, 2")
    a("v_mov_b32 v10, s43")
    a("global_load_dword v11, v10, s[12:13] sc1")
    Z1K1 = cfg.get('z1k1', 0)
    if Z1K1:
        a("s_lshl_b32 s47, s20, 12")
        a(f"s_add_u32 s47, s47, {EP+1024}")
        a("v_lshlrev_b32 v5, 4, v1")
        a("v_add_u32 v5, s47, v5")
        for tp in range(2):
            for k, n in enumerate((2, 3)):
                t = PK + 8*tp + 4*k
                for e in range(2):
                    c = acc(n, 2*tp+e)
                    a(f"v_cvt_pk_bf16_f32 v{t+2*e}, v{c}, v{c+1}")
                    a(f"v_cvt_pk_bf16_f32 v{t+2*e+1}, v{c+2}, v{c+3}")
                a(f"ds_write_b128 v5, {r4(t)} offset:{(tp*2+k)*1024}")
    CP0, CP1, ONE = 226, 228, 230
    for r in (CP0, CP0+1): a(f"v_mov_b32 v{r}, {hex(f2u(GELU_C0))}")
    for r in (CP1, CP1+1): a(f"v_mov_b32 v{r}, {hex(f2u(GELU_C1))}")
    for r in (ONE, ONE+1): a(f"v_mov_b32 v{r}, 1.0")
    zregs = [acc(n, tt) + 2*h for n in range(2) for tt in range(4) for h in range(2)]
    gelu_pairs(a, zregs, PK, CP0, CP1, ONE)
    T = PK
    for tt in range(4):
        z = [acc(0, tt), acc(0, tt)+2, acc(1, tt), acc(1, tt)+2]
        t = T + 6*tt
        a(f"v_pk_add_f32 {r2(t)}, {r2(z[0])}, {r2(z[1])}")
        a(f"v_pk_mul_f32 {r2(t+2)}, {r2(z[0])}, {r2(z[0])}")
        a(f"v_pk_add_f32 {r2(t+4)}, {r2(z[2])}, {r2(z[3])}")
        a(f"v_pk_fma_f32 {r2(t+2)}, {r2(z[1])}, {r2(z[1])}, {r2(t+2)}")
        a(f"v_pk_add_f32 {r2(t)}, {r2(t)}, {r2(t+4)}")
        a(f"v_pk_fma_f32 {r2(t+2)}, {r2(z[2])}, {r2(z[2])}, {r2(t+2)}")
        a(f"v_pk_fma_f32 {r2(t+2)}, {r2(z[3])}, {r2(z[3])}, {r2(t+2)}")
        a(f"v_add_f32 v{t}, v{t}, v{t+1}")
        a(f"v_add_f32 v{t+1}, v{t+2}, v{t+3}")
    V = lambda tt, c: T + 6*tt + c
    for c in range(2):
        a(f"v_permlane32_swap_b32 v{V(0,c)}, v{V(2,c)}")
        a(f"v_permlane32_swap_b32 v{V(1,c)}, v{V(3,c)}")
    for c in range(2):
        a(f"v_add_f32 v{V(0,c)}, v{V(0,c)}, v{V(2,c)}")
        a(f"v_add_f32 v{V(1,c)}, v{V(1,c)}, v{V(3,c)}")
    for c in range(2): a(f"v_permlane16_swap_b32 v{V(0,c)}, v{V(1,c)}")
    a(f"v_add_f32 v4, v{V(0,0)}, v{V(1,0)}")
    a(f"v_add_f32 v5, v{V(0,1)}, v{V(1,1)}")
    a("v_lshlrev_b32 v6, 4, v1")
    a("s_mov_b32 s88, 0")
    a.label(L('fchk'))
    a("s_waitcnt vmcnt(0)")
    a("v_readfirstlane_b32 s43, v11")
    a("s_cmp_lg_u32 s43, 0")
    a(f"s_cbranch_scc1 {L('fok')}")
    a("s_add_u32 s88, s88, 1")
    a("s_cmp_ge_u32 s88, 0x40000")
    a(f"s_cbranch_scc1 {L('fok')}")
    a("global_load_dword v11, v10, s[12:13] sc1")
    a(f"s_branch {L('fchk')}")
    a.label(L('fok'))
    a(f"buffer_store_dwordx2 v[4:5], v6, s[32:35], s62 offen {XS}")
    if not cfg.get('tsc'): ts(4)
    a(f"s_mov_b32 s62, {PSTEP-4}")
    H1IT = cfg.get('h1it', 4)
    if not Z1K1:
        if H1IT < 0:
            h1_store()
        else:
            a(f"s_mov_b32 s63x, {H1IT}".replace('s63x', 's89'))
    a(f"s_branch {L('phase1')}")
    a.label(L('pure_mid'))
    a("s_mov_b32 s62, 99")
    a("s_mov_b32 s89, 99")
    def vq():
        a("s_lshl_b32 s43, s18, 7")
        a("s_lshl_b32 s44, s21, 6")
        a("s_add_u32 s43, s43, s44")
        a("v_add_u32 v4, s43, v2")
        a("v_lshlrev_b32 v4, 5, v4")
        a("v_lshl_add_u32 v4, v3, 3, v4")
    def qkv_out(n, ct_sgpr_expr, T2):
        a("s_cmp_lt_u32 s45, 32")
        a(f"s_cselect_b32 s44, {hex(f2u(QSCALE))}, 1.0")
        a("s_lshl_b32 s43, s45, 16")
        if WS_QKV: a(f"s_add_u32 s43, s43, {WS_QKV}")
        a(f"v_mov_b32 v8, s44")
        a(f"v_mov_b32 v9, s44")
        for tt in range(4):
            c = acc(n, tt); t = T2 + 2*tt
            a(f"v_pk_mul_f32 {r2(c)}, {r2(c)}, v[8:9]")
            a(f"v_pk_mul_f32 {r2(c+2)}, {r2(c+2)}, v[8:9]")
            a(f"v_cvt_pk_bf16_f32 v{t}, v{c}, v{c+1}")
            a(f"v_cvt_pk_bf16_f32 v{t+1}, v{c+2}, v{c+3}")
            a(f"buffer_store_dwordx2 {r2(t)}, v4, s[32:35], s43 offen offset:{tt*512} {ST}")
    vq()
    for n in range(4):
        a("s_lshl_b32 s45, s22, 2")
        a(f"s_add_u32 s45, s45, {84+n}")
        qkv_out(n, None, PK + 8*(n % 3))
    a.label(L('phase1'))
    if cfg.get('pf', 2) == 7:
        srd(a, 24, 10, 2048*4096)
        a("s_lshr_b32 s43, s16, 1")
        a("s_lshl_b32 s43, s43, 21")
        a("s_lshl_b32 s44, s17, 16")
        a("s_add_u32 s43, s43, s44")
        a("s_and_b32 s44, s16, 1")
        a("s_lshl_b32 s44, s44, 11")
        a("s_add_u32 s43, s43, s44")
        a("s_lshl_b32 s44, s20, 14")
        a("s_add_u32 s43, s43, s44")
        a("v_lshlrev_b32 v8, 4, v1")
        for q in range(8):
            a(f"buffer_load_dwordx4 v[228:231], v8, s[24:27], s43 offen offset:{(q%2)*1024}")
            if q % 2 == 1: a("s_add_u32 s43, s43, 4096")
    a("s_mov_b32 s40, 0")
    loop(1)
    if not cfg.get('tsc'): ts(5)
    a("v_and_b32 v2, 15, v1")
    a("v_lshrrev_b32 v3, 4, v1")
    vq()
    a("s_cmp_eq_u32 s19, 14")
    a(f"s_cbranch_scc1 {L('pure_tail')}")
    a("s_mul_i32 s55, s19, 6")
    a("s_mul_i32 s44, s22, 3")
    a("s_add_u32 s55, s55, s44")
    for k in range(3):
        a(f"s_add_u32 s45, s55, {k}")
        qkv_out(4+k, None, W[0] + 8*k)
    a(f"s_branch {L('fin')}")
    if cfg.get('h1it', 4) >= 0 and not cfg.get('z1k1', 0):
        a.label(L('h1blk'))
        h1_store()
        a("s_mov_b32 s89, 99")
        a(f"s_branch {L('h1back')}")
    a.label(L('zfin'))
    ZS, ZT = 232, 240
    a("v_and_b32 v2, 15, v1")
    a("v_lshrrev_b32 v3, 4, v1")
    a("s_lshl_b32 s43, s21, 6")
    a("v_add_u32 v6, s43, v2")
    a("v_lshlrev_b32 v6, 3, v6")
    a(f"v_add_u32 v6, {EP}, v6")
    for tt in range(4): a(f"ds_read_b64 {r2(ZS+2*tt)}, v6 offset:{tt*128}")
    a("s_lshl_b32 s47, s20, 12")
    a(f"s_add_u32 s47, s47, {EP+1024}")
    a("v_lshlrev_b32 v6, 5, v2")
    a("v_lshl_add_u32 v6, v3, 3, v6")
    a("v_add_u32 v6, s47, v6")
    a("s_waitcnt lgkmcnt(0)")
    for n in range(2):
        for tt in range(4):
            c = acc(n, tt); mr, r = ZS+2*tt, ZS+2*tt+1
            for i in range(4): a(f"v_fma_f32 v{c+i}, v{c+i}, v{r}, v{mr}")
            t = PK + 2*(n*4+tt)
            a(f"v_cvt_pk_bf16_f32 v{t}, v{c}, v{c+1}")
            a(f"v_cvt_pk_bf16_f32 v{t+1}, v{c+2}, v{c+3}")
            a(f"ds_write_b64 v6, {r2(t)} offset:{n*2048+tt*512}")
    a("v_lshlrev_b32 v6, 3, v2")
    a("v_lshl_add_u32 v6, v3, 8, v6")
    a("v_add_u32 v6, s47, v6")
    a("s_lshl_b32 s43, s19, 2")
    a("s_lshl_b32 s44, s22, 1")
    a("s_add_u32 s43, s43, s44")
    a("s_lshl_b32 s43, s43, 16")
    a("s_lshl_b32 s44, s18, 2")
    a("s_lshl_b32 s45, s21, 1")
    a("s_add_u32 s44, s44, s45")
    a("s_lshl_b32 s44, s44, 10")
    a("s_add_u32 s43, s43, s44")
    a(f"s_add_u32 s46, s43, {WS_Z2N}")
    a("s_add_u32 s47, s46, 65536")
    a("v_lshlrev_b32 v7, 4, v1")
    a("s_waitcnt lgkmcnt(0)")
    for n in range(2):
        for kk in range(2):
            for sx in range(2):
                a(f"ds_read_b64_tr_b16 {r2(ZT+4*(n*2+kk)+2*sx)}, v6 offset:{n*2048+kk*1024+sx*128}")
    for n in range(2):
        for kk in range(2):
            a(f"s_waitcnt lgkmcnt({6-2*(n*2+kk)})")
            a(f"buffer_store_dwordx4 {r4(ZT+4*(n*2+kk))}, v7, s[32:35], {'s46' if n==0 else 's47'} offen offset:{kk*1024} {FL[cfg.get('stz', 2)]}")
    a("s_mov_b32 s62, 99")
    a(f"s_branch {L('zback')}")
    a.label(L('pure_tail'))
    for k in range(2):
        a("s_lshl_b32 s45, s22, 1")
        a(f"s_add_u32 s45, s45, {92+k}")
        qkv_out(4+k, None, W[0] + 8*k)
    a(f"s_branch {L('fin')}")
    a.label(L('loader'))
    if cfg.get('lprio', 1): a(f"s_setprio {cfg.get('lprio', 1)}")
    a("s_sub_u32 s20, s20, 4")
    ts.role(1)
    a("s_lshr_b32 s21, s20, 1")
    a("s_and_b32 s22, s20, 1")
    a("s_lshl_b32 s43, s19, 7")
    a("s_cmp_eq_u32 s21, 0")
    a("s_cselect_b32 s44, 1792, 0")
    a("s_add_u32 s43, s43, s44")
    a("s_lshl_b32 s44, s21, 7")
    a("s_add_u32 s44, s44, 2688")
    a("s_mul_i32 s45, s19, 3")
    a("s_lshr_b32 s45, s45, 1")
    a("s_add_u32 s45, s45, s21")
    a("s_lshl_b32 s45, s45, 7")
    a("s_cmp_eq_u32 s19, 14")
    a("s_cselect_b32 s43, s44, s43")
    a("s_cselect_b32 s45, 2944, s45")
    a("s_movk_i32 s36, 3584")
    a("s_cselect_b32 s36, 3072, s36")
    a("s_cselect_b32 s46, 0, 1")
    a("v_lshrrev_b32 v2, 3, v1")
    a("v_and_b32 v3, 7, v1")
    a("v_lshrrev_b32 v4, 1, v2")
    a("s_lshl_b32 s44, s18, 7")
    a("s_lshl_b32 s47, s20, 5")
    a("s_add_u32 s44, s44, s47")
    a("v_add_u32 v5, s44, v2")
    a("v_lshlrev_b32 v5, 10, v5")
    a("v_xor_b32 v6, v3, v4")
    a("v_xor_b32 v7, 4, v6")
    a("v_lshl_add_u32 v6, v6, 4, v5")
    a("v_lshl_add_u32 v7, v7, 4, v5")
    a(f"v_mov_b32 v{VX[0]}, v6")
    a(f"v_add_u32 v{VX[1]}, 7168, v7")
    a(f"v_add_u32 v{VX[2]}, {2*7168}, v6")
    a(f"v_add_u32 v{VX[3]}, {3*7168}, v7")
    a("v_and_b32 v5, 3, v2")
    a("v_lshrrev_b32 v6, 2, v2")
    a("v_lshl_add_u32 v5, v6, 3, v5")
    a("v_lshlrev_b32 v6, 1, v4")
    a("v_xor_b32 v6, v3, v6")
    a("v_lshlrev_b32 v6, 4, v6")
    a("s_lshl_b32 s48, s22, 5")
    a("v_add_u32 v5, s48, v5")
    for ph in range(2):
        st = 's36' if ph == 0 else 's37'
        if ph == 1: a("s_movk_i32 s37, 3072")
        a(f"v_mul_lo_u32 v7, v5, {st}")
        a("v_add_u32 v7, v7, v6")
        for b in range(4):
            h, s = b >> 1, b & 1
            a(f"s_mul_i32 s44, {st}, {16*h+4*s}")
            a(f"s_sub_u32 s44, s44, {b*1024}")
            a(f"v_add_u32 v{VW[ph][b]}, s44, v7")
    a("s_lshl_b32 s47, s20, 12")
    a("s_lshl_b32 s48, s22, 13")
    a("s_lshl_b32 s49, s21, 12")
    a("s_add_u32 s48, s48, s49")
    a("s_add_u32 s48, s48, 16384")
    a("s_cmp_eq_u32 s46, 1")
    a("s_waitcnt lgkmcnt(0)")
    a("s_cselect_b32 s28, s8, s6")
    a("s_cselect_b32 s29, s9, s7")
    a("s_add_u32 s28, s28, s43")
    a("s_addc_u32 s29, s29, 0")
    a("s_lshl_b32 s30, s36, 9")
    a("s_sub_u32 s30, s30, s43")
    a("s_mov_b32 s31, 0x20000")
    a("s_add_u32 s24, s6, s45")
    a("s_addc_u32 s25, s7, 0")
    a(f"s_mov_b32 s26, {512*3072}")
    a("s_sub_u32 s26, s26, s45")
    a("s_mov_b32 s27, 0x20000")
    srd(a, 84, 4, 2048*1024)
    srd(a, 32, 14, WS_END)
    LD = cfg.get('ld1', '')
    XR = cfg.get('xreuse', 1)
    def koff(s_): return s_ if s_ < 8 else ((s_-4 if s_ < 12 else s_-12) if XR else s_-8)
    def hasx(s_): return not (XR and 8 <= s_ < 12)
    def nins(s_): return 8 if hasx(s_) else 4
    def prep(s_):
        ph = s_ >> 3; base = (s_ % NSLOT)*SLOT
        a(f"s_add_u32 s45, s23, {koff(s_)}")
        a("s_and_b32 s45, s45, 7")
        a("s_lshl_b32 s46, s45, 7")
        a(f"s_mul_i32 s44, s45, {'s38' if ph == 0 else 's39'}")
        if cfg.get('nodma'): a("s_mov_b32 s46, 0x7ff00000"); a("s_mov_b32 s44, 0x7ff00000")
        a(f"s_add_u32 s49, s48, {base}")
        if hasx(s_): a(f"s_add_u32 m0, s47, {base}")
        else: a("s_mov_b32 m0, s49")
    def fire(s_):
        ph = s_ >> 3
        if hasx(s_):
            for i in range(4): a(f"buffer_load_dwordx4 v{VX[i]}, s[84:87], s46 offen offset:{i*1024} {LD} lds")
            a("s_mov_b32 m0, s49")
        S = 's[28:31]' if ph == 0 else 's[24:27]'
        for b in range(4): a(f"buffer_load_dwordx4 v{VW[ph][b]}, {S}, s44 offen offset:{b*1024} {LD} lds")
    class LQ:
        def __init__(self, q=None): self.q = list(q or [])
        def add(self, kind, key, n): self.q.append((kind, key, n))
        def allowed(self, step, also=()):
            idx = max([k for k, e in enumerate(self.q) if (e[0] == 'D' and e[1] <= step) or e[0] in also], default=-1)
            return sum(e[2] for e in self.q[idx+1:])
        def copy(self): return LQ(self.q)
    lq = LQ()
    a("s_lshl_b32 s38, s36, 6")
    a(f"s_mov_b32 s39, {64*3072}")
    rot = cfg.get('k1rot', 1)
    if rot == 0: a("s_mov_b32 s23, 0")
    elif rot == 1: a("s_and_b32 s23, s18, 7")
    elif rot == 2: a("s_and_b32 s23, s18, 1"); a("s_lshl_b32 s23, s23, 2")
    elif rot == 3: a("s_and_b32 s23, s18, 3"); a("s_lshl_b32 s23, s23, 1")
    elif rot == 4: a("s_mov_b32 s23, s16")
    elif rot == 5:
        a("s_and_b32 s23, s16, 3"); a("s_lshl_b32 s23, s23, 1"); a("s_lshr_b32 s43, s16, 2"); a("s_add_u32 s23, s23, s43")
    elif rot == 6:
        a("s_and_b32 s23, s18, 1"); a("s_lshl_b32 s23, s23, 2"); a("s_add_u32 s23, s23, s16")
    elif rot == 7:
        a("s_and_b32 s23, s18, 7"); a("s_lshl_b32 s43, s16, 1"); a("s_add_u32 s23, s23, s43")
    for st_ in (0, 1):
        prep(st_); fire(st_); lq.add('D', st_, 8)
    ts(1)
    prep(2)
    a(f"s_waitcnt vmcnt({lq.allowed(0)})")
    a("s_barrier")
    ts(2)
    fire(2); lq.add('D', 2, 8)
    prep(3); fire(3); lq.add('D', 3, 8)
    NW = 0
    if cfg.get('l2w', 2) == 2:
        NW = 8
        lq.add('W', 0, 8)
        a("s_lshl_b32 s43, s18, 7")
        a("s_and_b32 s44, s19, 3")
        a("s_lshl_b32 s44, s44, 5")
        a("s_add_u32 s43, s43, s44")
        a("s_lshl_b32 s44, s20, 3")
        a("s_add_u32 s43, s43, s44")
        a("s_lshl_b32 s43, s43, 10")
        a("s_add_u32 s44, s23, 4")
        a("s_lshl_b32 s44, s44, 7")
        a("v_and_b32 v2, 31, v1")
        a("v_lshlrev_b32 v2, 4, v2")
        a("v_add_u32 v2, s44, v2")
        a("v_and_b32 v2, 1023, v2")
        a("v_lshrrev_b32 v3, 5, v1")
        a("v_lshl_add_u32 v2, v3, 10, v2")
        for q in range(4):
            a(f"buffer_load_dwordx4 {r4(32+4*q)}, v2, s[84:87], s43 offen offset:{(q%2)*2048}")
            if q == 1: a("s_add_u32 s43, s43, 4096")
        a("s_mul_i32 s44, s19, 3")
        a("s_lshr_b32 s44, s44, 1")
        a("s_lshl_b32 s44, s44, 7")
        a("s_cmp_eq_u32 s19, 14")
        a("s_cselect_b32 s44, 2816, s44")
        a("s_and_b32 s43, s18, 7")
        a("s_lshl_b32 s43, s43, 6")
        a("s_lshl_b32 s45, s20, 4")
        a("s_add_u32 s43, s43, s45")
        a("s_mul_i32 s43, s43, 3072")
        a("s_add_u32 s43, s43, s44")
        srd(a, 80, 6, 512*3072)
        a("v_lshrrev_b32 v2, 4, v1")
        a("v_mul_u32_u24 v2, 3072, v2")
        a("v_and_b32 v3, 15, v1")
        a("v_lshl_add_u32 v2, v3, 4, v2")
        for q in range(4):
            a(f"buffer_load_dwordx4 {r4(48+4*q)}, v2, s[80:83], s43 offen")
            if q < 3: a(f"s_add_u32 s43, s43, {4*3072}")
    PF3 = cfg.get('pf', 2) == 3
    if PF3:
        srd(a, 92, 10, 2048*4096)
        a("s_lshr_b32 s90, s16, 1")
        a("s_lshl_b32 s90, s90, 21")
        a("s_lshl_b32 s43, s17, 16")
        a("s_add_u32 s90, s90, s43")
        a("s_lshl_b32 s43, s20, 14")
        a("s_add_u32 s90, s90, s43")
        a("v_lshlrev_b32 v8, 4, v1")
    for b in range(8):
        prep(b+4)
        a(f"s_waitcnt vmcnt({lq.allowed(b+1)})")
        if cfg.get('tsl') and b < 4: ts(3 + b)
        a("s_barrier")
        fire(b+4); lq.add('D', b+4, nins(b+4))
        if PF3 and b >= 4:
            for q in range(4): a(f"buffer_load_dwordx4 {r4(64+4*q)}, v8, s[92:95], s90 offen offset:{q*1024}")
            a("s_add_u32 s90, s90, 4096")
            lq.add('F', 0, 4)
    a("s_cmp_eq_u32 s19, 14")
    a(f"s_cbranch_scc1 {L('lpure')}")
    a("s_lshl_b32 s43, s20, 12")
    a(f"s_add_u32 s43, s43, {EP+1024}")
    a("v_lshlrev_b32 v5, 4, v1")
    a("v_add_u32 v6, s43, v5")
    HP, HC, HT = 32, 48, 80
    C0, C1, C2 = 90, 92, 94
    for r in (C0, C0+1): a(f"v_mov_b32 v{r}, {hex(f2u(GELU_C0))}")
    for r in (C1, C1+1): a(f"v_mov_b32 v{r}, {hex(f2u(GELU_C1))}")
    for r in (C2, C2+1): a(f"v_mov_b32 v{r}, 1.0")
    a("s_lshl_b32 s43, s18, 2")
    a("s_lshl_b32 s44, s21, 1")
    a("s_add_u32 s43, s43, s44")
    a("s_mul_i32 s43, s43, 56")
    a("s_lshl_b32 s44, s19, 2")
    a("s_add_u32 s43, s43, s44")
    a("s_lshl_b32 s44, s22, 1")
    a("s_add_u32 s43, s43, s44")
    a("s_lshl_b32 s43, s43, 10")
    a(f"s_add_u32 s52, s43, {WS_H1}")
    a(f"s_add_u32 s53, s52, {56*1024}")
    def z1_block(q):
        if not Z1K1: return
        a(f"ds_read_b128 {r4(HP)}, v6 offset:{q*1024}")
        a("s_waitcnt lgkmcnt(0)")
        for e in range(4):
            a(f"v_lshlrev_b32 v{HC+2*e}, 16, v{HP+e}")
            a(f"v_and_b32 v{HC+2*e+1}, 0xffff0000, v{HP+e}")
        gelu_pairs(a, [HC+2*e for e in range(4)], HT, C0, C1, C2, G=4)
        t = HP + 4 + 4*(q % 2)
        for e in range(4): a(f"v_cvt_pk_bf16_f32 v{t+e}, v{HC+2*e}, v{HC+2*e+1}")
        a(f"buffer_store_dwordx4 {r4(t)}, v5, s[32:35], {'s52' if q < 2 else 's53'} offen offset:{(q%2)*1024} {FL[cfg.get('sth1', 2)]}")
    a("s_cmp_lt_u32 s20, 2")
    a(f"s_cbranch_scc1 {L('lx')}")
    l2 = lq.copy()
    for b in (8, 9, 10, 11):
        prep(b+4)
        a(f"s_waitcnt vmcnt({l2.allowed(b+1)})")
        a("s_barrier")
        fire(b+4); l2.add('D', b+4, nins(b+4))
        z1_block(b-8)
        if Z1K1: l2.add('S', 0, 1)
    a(f"s_branch {L('lb12m')}")
    a.label(L('lpure'))
    l3 = lq.copy()
    for b in (8, 9, 10, 11):
        prep(b+4)
        a(f"s_waitcnt vmcnt({l3.allowed(b+1)})")
        a("s_barrier")
        fire(b+4); l3.add('D', b+4, nins(b+4))
    a.label(L('lb12m'))
    PFN = {2: 8, 4: 4, 5: 2, 6: 4}.get(cfg.get('pf', 2), 0)
    PF6 = cfg.get('pf', 2) == 6
    if PF6:
        srd(a, 80, 10, 2048*4096)
        a("s_lshr_b32 s43, s16, 1")
        a("s_lshl_b32 s43, s43, 21")
        a("s_lshl_b32 s44, s17, 16")
        a("s_add_u32 s43, s43, s44")
        a("s_and_b32 s44, s16, 1")
        a("s_lshl_b32 s44, s44, 11")
        a("s_add_u32 s43, s43, s44")
        a("s_and_b32 s44, s20, 1")
        a("s_lshl_b32 s44, s44, 15")
        a("s_add_u32 s43, s43, s44")
        a("v_and_b32 v8, 63, v1")
        a("v_lshlrev_b32 v8, 4, v8")
    elif PFN == 2:
        srd(a, 80, 10, 2048*4096)
        a("s_lshl_b32 s43, s2, 14")
        a("s_and_b32 s44, s20, 1")
        a("s_lshl_b32 s44, s44, 13")
        a("s_add_u32 s43, s43, s44")
        a(f"s_add_u32 s43, s43, {4<<20}")
        a("v_lshlrev_b32 v8, 4, v1")
    elif PFN:
        srd(a, 80, 10, 2048*4096)
        a("s_lshr_b32 s43, s16, 1")
        a("s_lshl_b32 s43, s43, 21")
        a("s_lshl_b32 s44, s17, 16")
        a("s_add_u32 s43, s43, s44")
        if PFN == 8:
            a("s_and_b32 s44, s20, 1")
            a("s_lshl_b32 s44, s44, 15")
        else:
            a("s_and_b32 s44, s16, 1")
            a("s_lshl_b32 s44, s44, 15")
            a("s_add_u32 s43, s43, s44")
            a("s_and_b32 s44, s20, 1")
            a("s_lshl_b32 s44, s44, 14")
        a("s_add_u32 s43, s43, s44")
        a("v_lshlrev_b32 v8, 4, v1")
    def pf_batch():
        if PF6:
            for q in range(4):
                a(f"buffer_load_dwordx4 {r4(64+4*q)}, v8, s[80:83], s43 offen offset:{(q%2)*1024}")
                if q % 2 == 1: a("s_add_u32 s43, s43, 4096")
            return
        for q in range(PFN):
            a(f"buffer_load_dwordx4 {r4(64+4*q)}, v8, s[80:83], s43 offen offset:{(q%4)*1024}")
            if q % 4 == 3 or q == PFN-1: a(f"s_add_u32 s43, s43, {1024*min(4, PFN)}")
    a("s_waitcnt vmcnt(16)")
    a("s_barrier")
    pf_batch()
    a(f"s_waitcnt vmcnt({8+PFN})")
    a("s_barrier")
    pf_batch()
    a(f"s_waitcnt vmcnt({2*PFN})")
    a("s_barrier")
    pf_batch()
    a("s_barrier")
    pf_batch()
    if cfg.get('xw', 0):
        a(f"s_mul_i32 s43, s2, {cfg['xw']*1024}")
        a(f"s_add_u32 s43, s43, 0x2000000")
        a(f"s_mov_b32 s90, s14"); a("s_mov_b32 s91, s15")
        a("s_mov_b32 s92, 0x8000000"); a("s_mov_b32 s93, 0x20000")
        a("s_mov_b32 s88, s14"); a("s_mov_b32 s89, s15"); a("s_mov_b32 s90, 0x8000000"); a("s_mov_b32 s91, 0x20000")
        a("s_and_b32 s44, s20, 1")
        a(f"s_mul_i32 s44, s44, {cfg['xw']*512}")
        a("s_add_u32 s43, s43, s44")
        for q in range(cfg['xw']//2):
            a(f"buffer_store_dwordx4 v[64:67], v8, s[88:91], s43 offen offset:{(q%4)*1024} {'sc1' if cfg.get('xwsc',1) else ''}")
            if q % 4 == 3: a("s_add_u32 s43, s43, 4096")
    if cfg.get('pfwait', 1): a("s_waitcnt vmcnt(0)")
    a(f"s_branch {L('fin2') if not cfg.get('pfwait', 1) else L('fin')}")
    a.label(L('lx'))
    a("s_lshl_b32 s43, s20, 6")
    a("v_add_u32 v9, s43, v1")
    a("v_lshlrev_b32 v7, 4, v9")
    a("s_mul_i32 s54, s18, 28672")
    a(f"s_add_u32 s54, s54, {WS_STAT}")
    a("s_mov_b32 s88, 0")
    P = 96
    def poll_loads():
        a("s_mov_b32 s43, s54")
        for q in range(14):
            if q % 2 == 0 and q: a("s_add_u32 s43, s43, 4096")
            a(f"buffer_load_dwordx4 {r4(P+4*q)}, v7, s[32:35], s43 offen offset:{(q%2)*2048} {XS}")
    l1 = lq.copy()
    for b in range(8, PSTEP+3):
        if b+4 < 16: prep(b+4)
        a(f"s_waitcnt vmcnt({l1.allowed(b+1)})")
        a("s_barrier")
        if b+4 < 16:
            fire(b+4); l1.add('D', b+4, nins(b+4))
        if b == PSTEP:
            poll_loads(); l1.add('P', 0, 14)
        if b < 12:
            z1_block(b-8)
            if Z1K1: l1.add('S', 0, 1)
    if not cfg.get('tsl'): ts(3)
    a(f"s_waitcnt vmcnt({l1.allowed(PSTEP+4, also=('P',))})")
    a(f"s_branch {L('pchk1')}")
    a.label(L('pchk'))
    a("s_waitcnt vmcnt(0)")
    a.label(L('pchk1'))
    a(f"v_max_u32 v10, v{P}, v{P+1}")
    for q in range(2, 56, 2): a(f"v_max3_u32 v10, v10, v{P+q}, v{P+q+1}")
    a("v_cmp_eq_u32 vcc, -1, v10")
    a("s_add_u32 s88, s88, 1")
    a("s_cmp_ge_u32 s88, 0x20000")
    a(f"s_cbranch_scc1 {L('polled')}")
    a(f"s_cbranch_vccz {L('polled')}")
    poll_loads()
    a(f"s_branch {L('pchk')}")
    a.label(L('polled'))
    if not cfg.get('tsl'): ts(5)
    if ts.on: a("s_mov_b32 s62, s88")
    for q in range(1, 28): a(f"v_pk_add_f32 {r2(P)}, {r2(P)}, {r2(P+2*q)}")
    m, e2 = P, P+1
    a(f"v_mul_f32 v{m}, {hex(f2u(1.0/896))}, v{m}")
    a(f"v_mul_f32 v{e2}, {hex(f2u(1.0/896))}, v{e2}")
    a(f"v_fma_f32 v{e2}, -v{m}, v{m}, v{e2}")
    a(f"v_max_f32 v{e2}, 0, v{e2}")
    a(f"v_add_f32 v{e2}, {hex(f2u(1e-5))}, v{e2}")
    a(f"v_rsq_f32 v{e2}, v{e2}")
    a(f"v_mul_f32 v{m}, v{m}, v{e2}")
    a(f"v_sub_f32 v{m}, 0, v{m}")
    a("v_lshlrev_b32 v7, 3, v9")
    a(f"v_add_u32 v7, {EP}, v7")
    a(f"ds_write_b64 v7, {r2(m)}")
    a("s_waitcnt lgkmcnt(0)")
    a("s_barrier")
    for b in range(PSTEP+4, 16):
        if b+1 <= 15: a("s_waitcnt vmcnt(0)" if b+1 == 15 else f"s_waitcnt vmcnt({8*(15-(b+1))})")
        a("s_barrier")
    a(f"s_branch {L('fin')}")
    a.label(L('spare'))
    a("s_waitcnt lgkmcnt(0)")
    srd(a, 32, 14, WS_END)
    a("s_mul_i32 s43, s18, 28672")
    a("s_lshl_b32 s44, s20, 10")
    a("s_add_u32 s43, s43, s44")
    a(f"s_add_u32 s43, s43, {WS_STAT}")
    a("v_lshlrev_b32 v2, 4, v1")
    for r in range(4, 8): a(f"v_mov_b32 v{r}, -1")
    for q in range(3):
        a("buffer_store_dwordx4 v[4:7], v2, s[32:35], s43 offen sc1")
        a("s_add_u32 s43, s43, 8192")
    a("s_cmp_lt_u32 s20, 4")
    a(f"s_cbranch_scc0 {L('rs3')}")
    a("buffer_store_dwordx4 v[4:7], v2, s[32:35], s43 offen sc1")
    a.label(L('rs3'))
    if cfg.get('fuse', 1):
        lab = L('zf')
        a("s_cmp_eq_u32 s18, 0")
        a(f"s_cbranch_scc0 {lab}")
        a("s_cmp_ge_u32 s20, 5")
        a(f"s_cbranch_scc0 {lab}")
        a("s_sub_u32 s43, s20, 5")
        a("s_lshl_b32 s43, s43, 10")
        a(f"s_add_u32 s43, s43, {WS_FLAG}")
        for r in range(4, 8): a(f"v_mov_b32 v{r}, 0")
        a("buffer_store_dwordx4 v[4:7], v2, s[32:35], s43 offen sc1")
        a.label(lab)
    a("s_waitcnt vmcnt(0)")
    a("s_barrier")
    a("s_cmp_eq_u32 s20, 0")
    a(f"s_cbranch_scc0 {L('rs4')}")
    a("s_lshl_b32 s43, s18, 2")
    a("v_mov_b32 v2, s43")
    a("v_mov_b32 v3, 1")
    a("s_mov_b64 s[52:53], exec")
    a("s_mov_b64 exec, 1")
    a("global_store_dword v2, v3, s[12:13] sc1")
    a("s_mov_b64 exec, s[52:53]")
    a.label(L('rs4'))
    if cfg.get('cpf', 1):
        a("s_and_b32 s43, s17, 1")
        a("s_lshl_b32 s43, s43, 3")
        a("s_add_u32 s43, s43, s20")
        code_prefetch(a, 'gm_k1_kernel', 'gm_code_end', 's43', 3, 'k1', vtmp=200)
    a("s_lshl_b32 s18, s18, 7")
    a("s_lshl_b32 s43, s20, 4")
    a("s_add_u32 s18, s18, s43")
    srd(a, 24, 4, 2048*1024)
    srd(a, 28, 58, 1024)
    srd(a, 32, 14, WS_END)
    a("v_and_b32 v2, 15, v1")
    a("v_lshrrev_b32 v3, 4, v1")
    a("v_lshlrev_b32 v4, 4, v2")
    for q in range(4): a(f"buffer_load_dwordx4 {r4(16+4*q)}, v4, s[28:31], 0 offen offset:{256*q}")
    a("v_add_u32 v5, s18, v3")
    a("v_lshl_add_u32 v5, v5, 10, v4")
    for it in range(4):
        for q in range(4): a(f"buffer_load_dwordx4 {r4(64+16*it+4*q)}, v5, s[24:27], 0 offen offset:{256*q}")
        a("v_add_u32 v5, 4096, v5")
    a("v_add_u32 v6, s18, v3")
    a("v_lshlrev_b32 v6, 2, v6")
    npf2 = 0
    for it in range(4):
        a(f"s_waitcnt vmcnt({4*(3-it)+npf2})")
        b = 64+16*it
        a(f"v_dot2_f32_bf16 v8, v{b}, v16, 0")
        for r in range(1, 16): a(f"v_dot2_f32_bf16 v8, v{b+r}, v{16+r}, v8")
        a("s_nop 2")
        for sh in ('row_shr:8', 'row_shr:4', 'row_shr:2', 'row_shr:1'):
            a(f"v_add_f32_dpp v8, v8, v8 {sh} row_mask:0xf bank_mask:0xf bound_ctrl:1")
        a(f"v_mul_f32 v8, {hex(f2u(-LOG2E))}, v8")
        a("v_exp_f32 v8, v8")
        a("v_add_f32 v8, 1.0, v8")
        a("v_rcp_f32 v8, v8")
        a(f"v_mov_b32 v{32+it}, v8")
    a("v_cmp_eq_u32 s[52:53], 15, v2")
    a("s_mov_b64 s[54:55], exec")
    a("s_and_b64 exec, exec, s[52:53]")
    a(f"s_mov_b32 s51, {WS_G}")
    for it in range(4):
        a(f"buffer_store_dword v{32+it}, v6, s[32:35], s51 offen offset:{16*it}")
    a("s_mov_b64 exec, s[54:55]")
    if cfg.get('pf', 1):
        a("s_lshr_b32 s48, s18, 4")
        a("v_lshlrev_b32 v9, 4, v1")
        srd(a, 36, 60, 512*1024)
        srd(a, 44, 56, 896*1024)
        a("s_lshl_b32 s49, s48, 12")
        for q in range(4): a(f"buffer_load_dwordx4 {r4(128+4*q)}, v9, s[36:39], s49 offen offset:{q*1024}")
        a("s_mul_i32 s49, s48, 7168")
        for q in range(7):
            if q == 4: a("s_add_u32 s49, s49, 4096")
            a(f"buffer_load_dwordx4 {r4(144+4*q)}, v9, s[44:47], s49 offen offset:{(q%4)*1024}")
        srd(a, 80, 10, 2048*4096)
        if cfg.get('pf', 2) == 5:
            a("s_lshl_b32 s43, s48, 15")
            a("s_mov_b32 s50, 0")
            a.label(L('pfl'))
            for q in range(8):
                a(f"buffer_load_dwordx4 {r4(64+4*q)}, v9, s[80:83], s43 offen offset:{(q%4)*1024}")
                if q % 4 == 3: a("s_add_u32 s43, s43, 4096")
            a("s_waitcnt vmcnt(24)")
            a("s_add_u32 s50, s50, 1")
            a("s_cmp_lt_u32 s50, 4")
            a(f"s_cbranch_scc1 {L('pfl')}")
            a("s_lshl_b32 s43, s2, 14")
            a("s_lshl_b32 s44, s20, 11")
            a("s_add_u32 s43, s43, s44")
            a(f"s_add_u32 s43, s43, {4<<20}")
            for q in range(2): a(f"buffer_load_dwordx4 {r4(64+4*q)}, v9, s[80:83], s43 offen offset:{q*1024}")
        else:
            a("s_lshr_b32 s43, s16, 1")
            a("s_lshl_b32 s43, s43, 21")
            a("s_lshl_b32 s44, s17, 16")
            a("s_add_u32 s43, s43, s44")
            a("s_lshl_b32 s44, s20, 13")
            a("s_add_u32 s43, s43, s44")
            for q in range(8):
                a(f"buffer_load_dwordx4 {r4(64+4*q)}, v9, s[80:83], s43 offen offset:{(q%4)*1024}")
                if q == 3: a("s_add_u32 s43, s43, 4096")
        a("s_waitcnt vmcnt(0)")
    a.label(L('fin'))
    if ts.on: a("s_waitcnt vmcnt(0)")
    if not cfg.get('tsc'): ts(7)
    ts.flush()
    a.label(L('fin2'))
    a.label(L('end'))
    a("s_endpgm")
    a.check_protected(list(range(4, 16)) + list(range(56, 62)))
    n = a.fix_hazards()
    return a, n
```

```python
from asmlib import *
from common import *

NAME = 'gm_k1_kernel'
SLOT = 32768
NSLOT = 4
EP = NSLOT*SLOT
LDS_BYTES = EP + 1024 + 16384
GRID = 256
BLOCK = 512
VGPRS = 256
HUGE = 0x7ff00000
SENT = 0xffffffff

ACC = 16
X = [128, 144]
W = [160, 176]
XA = [216, 217]
WA = [218+i for i in range(7)]
PK = 192
VX = [16+i for i in range(4)]
VW = [[20+i for i in range(4)], [24+i for i in range(4)]]
def acc(n, tt): return ACC + (n*4+tt)*4
def r4(b): return f"v[{b}:{b+3}]"
def r2(b): return f"v[{b}:{b+1}]"

def gelu_pairs(a, regs, t0, cpair0, cpair1, one, G=4):
    for k in range(0, len(regs), G):
        grp = regs[k:k+G]
        T = [t0 + 2*i for i in range(len(grp))]
        for x, t in zip(grp, T): a(f"v_pk_mul_f32 {r2(t)}, {r2(x)}, {r2(x)}")
        for x, t in zip(grp, T): a(f"v_pk_fma_f32 {r2(t)}, {r2(t)}, {r2(cpair1)}, {r2(cpair0)}")
        for x, t in zip(grp, T): a(f"v_pk_mul_f32 {r2(t)}, {r2(t)}, {r2(x)}")
        for x, t in zip(grp, T):
            a(f"v_exp_f32 v{t}, v{t}"); a(f"v_exp_f32 v{t+1}, v{t+1}")
        for x, t in zip(grp, T): a(f"v_pk_add_f32 {r2(t)}, {r2(t)}, {r2(one)}")
        for x, t in zip(grp, T):
            a(f"v_rcp_f32 v{t}, v{t}"); a(f"v_rcp_f32 v{t+1}, v{t+1}")
        for x, t in zip(grp, T): a(f"v_pk_mul_f32 {r2(x)}, {r2(x)}, {r2(t)}")

def build(cfg):
    a = Asm()
    L = lambda s: f"K1_{s}"
    FL = {0: '', 1: 'sc0 sc1', 2: 'sc1'}
    ST = FL[cfg.get('st1', 2)]
    XS = 'sc1'
    PSTEP = cfg.get('pstep', 10)
    a(f"s_cmp_ge_u32 s2, 256")
    a(f"s_cbranch_scc1 {L('end')}")
    ts = Stamper(a, cfg, 0)
    ts.init()
    for i in range(8): ts(i)
    a(f"s_load_dwordx4 s[4:7], s[0:1], {KA_X}")
    a(f"s_load_dwordx4 s[8:11], s[0:1], {KA_WIN}")
    a(f"s_load_dwordx4 s[12:15], s[0:1], {KA_DBG}")
    a(f"s_load_dwordx4 s[56:59], s[0:1], {KA_WOUT}")
    a(f"s_load_dwordx2 s[60:61], s[0:1], {KA_WO}")
    a("v_lshrrev_b32 v2, 6, v0")
    a("v_and_b32 v1, 63, v0")
    a("v_readfirstlane_b32 s20, v2")
    a("s_and_b32 s16, s2, 7")
    a("s_lshr_b32 s17, s2, 3")
    a("s_lshr_b32 s18, s16, 2")
    a("s_lshl_b32 s18, s18, 3")
    a("s_and_b32 s43, s16, 3")
    a("s_mul_i32 s44, s43, 30")
    a("s_add_u32 s44, s44, s17")
    a("s_lshr_b32 s19, s44, 3")
    a("s_and_b32 s44, s44, 7")
    a("s_lshl_b32 s43, s43, 1")
    a("s_add_u32 s43, s43, s17")
    a("s_sub_u32 s43, s43, 30")
    a("s_cmp_ge_u32 s17, 30")
    a("s_cselect_b32 s44, s43, s44")
    a("s_add_u32 s18, s18, s44")
    a("s_cmp_ge_u32 s17, 30")
    a(f"s_cbranch_scc1 {L('spare')}")
    a("s_cmp_lt_u32 s20, 4")
    a(f"s_cbranch_scc1 {L('compute')}")
    a(f"s_branch {L('loader')}") if not cfg.get('lfirst', 1) else None
    a.label(L('compute'))
    a("s_lshr_b32 s21, s20, 1")
    a("s_and_b32 s22, s20, 1")
    a("s_mul_i32 s43, s18, 14")
    a("s_add_u32 s43, s43, s19")
    a("s_lshl_b32 s43, s43, 11")
    a("s_lshl_b32 s44, s21, 10")
    a("s_add_u32 s43, s43, s44")
    a("s_lshl_b32 s44, s22, 3")
    a("s_add_u32 s43, s43, s44")
    a(f"s_add_u32 s62, s43, {WS_STAT}")
    a("v_and_b32 v2, 15, v1")
    a("v_lshrrev_b32 v3, 4, v1")
    a("v_lshrrev_b32 v4, 1, v2")
    a("v_xor_b32 v4, v4, v3")
    a("s_lshl_b32 s43, s21, 6")
    a("v_add_u32 v5, s43, v2")
    a("v_lshlrev_b32 v5, 7, v5")
    a(f"v_lshl_add_u32 v{XA[0]}, v4, 4, v5")
    a(f"v_xor_b32 v{XA[1]}, 64, v{XA[0]}")
    a("v_lshrrev_b32 v4, 2, v1")
    a("v_and_b32 v4, 7, v4")
    a("v_lshrrev_b32 v5, 5, v1")
    a("v_lshlrev_b32 v5, 11, v5")
    a("v_lshl_add_u32 v5, v4, 7, v5")
    a("v_lshrrev_b32 v4, 1, v4")
    a("v_lshl_add_u32 v5, v4, 5, v5")
    a("v_and_b32 v4, 3, v1")
    a("v_lshl_add_u32 v5, v4, 3, v5")
    a("s_and_b32 s48, s19, 1")
    a("s_lshl_b32 s48, s48, 1")
    a("s_mul_i32 s49, s22, 3")
    a("s_add_u32 s48, s48, s49")
    a("s_lshl_b32 s49, s22, 1")
    a("s_lshl_b32 s50, s22, 2")
    for n in range(7):
        if n < 2: a(f"s_add_u32 s43, s49, {n}"); a(f"s_add_u32 s44, s50, {n}")
        elif n < 4: a(f"s_add_u32 s43, s49, {4+n-2}"); a(f"s_add_u32 s44, s50, {n}")
        else: a(f"s_add_u32 s43, s48, {n-4}"); a(f"s_add_u32 s44, s49, {min(n-4,1)}")
        a("s_cmp_eq_u32 s19, 14")
        a("s_cselect_b32 s43, s44, s43")
        a("s_and_b32 s44, s43, 3")
        a("s_lshl_b32 s44, s44, 5")
        a("s_lshr_b32 s43, s43, 2")
        a("s_lshl_b32 s43, s43, 12")
        a("s_add_u32 s43, s43, 16384")
        a(f"v_xor_b32 v{WA[n]}, s44, v5")
        a(f"v_add_u32 v{WA[n]}, s43, v{WA[n]}")
    for r in range(ACC, ACC+112): a(f"v_mov_b32 v{r}, 0")
    def tiles(ph): return range(4) if ph == 0 else range(4, 7)
    def reads(ph, ks, buf):
        out = []
        for tt in range(4):
            out.append(f"ds_read_b128 {r4(X[buf]+4*tt)}, v{XA[ks]} offset:{tt*2048}")
        for q, n in enumerate(tiles(ph)):
            for s in range(2):
                out.append(f"ds_read_b64_tr_b16 {r2(W[buf]+4*q+2*s)}, v{WA[n]} offset:{ks*8192+s*1024}")
        return out
    def mfmas(ph, buf):
        if cfg.get('nomfma'): return ["s_nop 0"]*4
        return [f"v_mfma_f32_16x16x32_bf16 {r4(acc(n,tt))}, {r4(W[buf]+4*q)}, {r4(X[buf]+4*tt)}, {r4(acc(n,tt))}"
                for q, n in enumerate(tiles(ph)) for tt in range(4)]
    a("s_mov_b32 s40, 0")
    a("s_mov_b32 s41, 0")
    a("s_waitcnt lgkmcnt(0)")
    srd(a, 32, 14, WS_END)
    if cfg.get('l2w', 2) == 1:
        srd(a, 24, 4, 2048*1024)
        srd(a, 28, 6, 512*3072)
        a("s_lshl_b32 s43, s18, 7")
        a("s_and_b32 s44, s19, 3")
        a("s_lshl_b32 s44, s44, 5")
        a("s_add_u32 s43, s43, s44")
        a("s_lshl_b32 s44, s20, 3")
        a("s_add_u32 s43, s43, s44")
        a("s_lshl_b32 s43, s43, 10")
        a("s_and_b32 s44, s18, 7")
        a("s_add_u32 s44, s44, 4")
        a("s_lshl_b32 s44, s44, 7")
        a("v_and_b32 v2, 31, v1")
        a("v_lshlrev_b32 v2, 4, v2")
        a("v_add_u32 v2, s44, v2")
        a("v_and_b32 v2, 1023, v2")
        a("v_lshrrev_b32 v3, 5, v1")
        a("v_lshl_add_u32 v2, v3, 10, v2")
        for q in range(4):
            a(f"buffer_load_dwordx4 {r4(PK+4*q)}, v2, s[24:27], s43 offen offset:{(q%2)*2048}")
            if q == 1: a("s_add_u32 s43, s43, 4096")
        a("s_mul_i32 s44, s19, 3")
        a("s_lshr_b32 s44, s44, 1")
        a("s_lshl_b32 s44, s44, 7")
        a("s_cmp_eq_u32 s19, 14")
        a("s_cselect_b32 s44, 2816, s44")
        a("s_and_b32 s43, s18, 7")
        a("s_lshl_b32 s43, s43, 6")
        a("s_lshl_b32 s45, s20, 4")
        a("s_add_u32 s43, s43, s45")
        a("s_mul_i32 s43, s43, 3072")
        a("s_add_u32 s43, s43, s44")
        a("v_lshrrev_b32 v2, 4, v1")
        a("v_mul_u32_u24 v2, 3072, v2")
        a("v_and_b32 v3, 15, v1")
        a("v_lshl_add_u32 v2, v3, 4, v2")
        for q in range(4):
            a(f"buffer_load_dwordx4 {r4(PK+4*q)}, v2, s[28:31], s43 offen")
            if q < 3: a(f"s_add_u32 s43, s43, {4*3072}")
    ts(1)
    a("s_barrier")
    ts(2)
    for t in reads(0, 0, 0): a(t)
    def adv_addr(regs):
        return [f"v_add_u32 v{r}, s51, v{r}" for r in regs]
    def loop(ph):
        if cfg.get('tsc') == ph + 1:
            a("s_waitcnt lgkmcnt(0)")
            for it in range(8): loop_body(ph, it)
            return
        loop_body(ph, None)
    def loop_body(ph, it):
        lab = L(f'loop{ph}')
        if it is None:
            a("s_waitcnt lgkmcnt(0)")
            a.label(lab)
        else:
            a(f"s_memtime s[{64+2*it}:{65+2*it}]")
        if ph == 1:
            if it is None or it == cfg.get('h1it', 4):
                if cfg.get('h1it', 4) >= 0 and not cfg.get('z1k1', 0):
                    a("s_cmp_eq_u32 s40, s89")
                    a(f"s_cbranch_scc1 {L('h1blk')}")
                    a.label(L('h1back'))
            if it is None or it == PSTEP-4:
                a("s_cmp_eq_u32 s40, s62")
                a(f"s_cbranch_scc1 {L('zfin')}")
                a.label(L('zback'))
        sal = ["s_cmp_eq_u32 s41, %d" % (NSLOT-1), f"s_mov_b32 s51, {SLOT}", f"s_cselect_b32 s51, {(-(NSLOT-1)*SLOT) & 0xffffffff}, s51",
               "s_add_u32 s41, s41, 1", f"s_and_b32 s41, s41, {NSLOT-1}", "s_add_u32 s40, s40, 1"]
        for t in interleave(mfmas(ph, 0), reads(ph, 1, 1) + sal, per=cfg.get('k1per', 2)): a(t)
        a("s_waitcnt lgkmcnt(0)")
        a("s_barrier")
        rd = reads(ph, 0, 0)
        nW = len(list(tiles(ph)))
        fill = [f"v_add_u32 v{XA[0]}, s51, v{XA[0]}"] + rd[:4] + [f"v_add_u32 v{XA[1]}, s51, v{XA[1]}"]
        cur = list(tiles(ph)); oth = [n for n in range(7) if n not in cur]
        for q, n in enumerate(cur):
            fill.append(f"v_add_u32 v{WA[n]}, s51, v{WA[n]}")
            fill += rd[4+2*q:6+2*q]
        fill += adv_addr([WA[n] for n in oth])
        fill += ["s_cmp_lt_u32 s40, 8"]
        for t in interleave(mfmas(ph, 1), fill, per=cfg.get('k1per2', 3)): a(t)
        if ph == 0:
            pass
        a("s_waitcnt lgkmcnt(0)")
        if it is None: a(f"s_cbranch_scc1 {lab}")
    loop(0)
    def h1_store():
        a("s_lshl_b32 s43, s18, 2")
        a("s_lshl_b32 s44, s21, 1")
        a("s_add_u32 s43, s43, s44")
        a("s_mul_i32 s43, s43, 56")
        a("s_lshl_b32 s44, s19, 2")
        a("s_add_u32 s43, s43, s44")
        a("s_lshl_b32 s44, s22, 1")
        a("s_add_u32 s43, s43, s44")
        a("s_lshl_b32 s43, s43, 10")
        a(f"s_add_u32 s54, s43, {WS_H1}")
        a("v_lshlrev_b32 v5, 4, v1")
        for tp in range(2):
            for k, n in enumerate((2, 3)):
                t = PK + 8*tp + 4*k
                for e in range(2):
                    c = acc(n, 2*tp+e)
                    a(f"v_cvt_pk_bf16_f32 v{t+2*e}, v{c}, v{c+1}")
                    a(f"v_cvt_pk_bf16_f32 v{t+2*e+1}, v{c+2}, v{c+3}")
                if k == 0: a(f"s_add_u32 s43, s54, {tp*56*1024}")
                a(f"buffer_store_dwordx4 {r4(t)}, v5, s[32:35], s43 offen offset:{k*1024} {FL[cfg.get('sth1', 2)]}")
    if not cfg.get('tsc'): ts(3)
    a("v_and_b32 v2, 15, v1")
    a("v_lshrrev_b32 v3, 4, v1")
    for t in reads(1, 0, 0): a(t)
    a("s_waitcnt vmcnt(0)")
    a("s_cmp_eq_u32 s19, 14")
    a(f"s_cbranch_scc1 {L('pure_mid')}")
    a("s_lshl_b32 s43, s18, 2")
    a("v_mov_b32 v10, s43")
    a("global_load_dword v11, v10, s[12:13] sc1")
    Z1K1 = cfg.get('z1k1', 0)
    if Z1K1:
        a("s_lshl_b32 s47, s20, 12")
        a(f"s_add_u32 s47, s47, {EP+1024}")
        a("v_lshlrev_b32 v5, 4, v1")
        a("v_add_u32 v5, s47, v5")
        for tp in range(2):
            for k, n in enumerate((2, 3)):
                t = PK + 8*tp + 4*k
                for e in range(2):
                    c = acc(n, 2*tp+e)
                    a(f"v_cvt_pk_bf16_f32 v{t+2*e}, v{c}, v{c+1}")
                    a(f"v_cvt_pk_bf16_f32 v{t+2*e+1}, v{c+2}, v{c+3}")
                a(f"ds_write_b128 v5, {r4(t)} offset:{(tp*2+k)*1024}")
    CP0, CP1, ONE = 226, 228, 230
    for r in (CP0, CP0+1): a(f"v_mov_b32 v{r}, {hex(f2u(GELU_C0))}")
    for r in (CP1, CP1+1): a(f"v_mov_b32 v{r}, {hex(f2u(GELU_C1))}")
    for r in (ONE, ONE+1): a(f"v_mov_b32 v{r}, 1.0")
    zregs = [acc(n, tt) + 2*h for n in range(2) for tt in range(4) for h in range(2)]
    gelu_pairs(a, zregs, PK, CP0, CP1, ONE)
    T = PK
    for tt in range(4):
        z = [acc(0, tt), acc(0, tt)+2, acc(1, tt), acc(1, tt)+2]
        t = T + 6*tt
        a(f"v_pk_add_f32 {r2(t)}, {r2(z[0])}, {r2(z[1])}")
        a(f"v_pk_mul_f32 {r2(t+2)}, {r2(z[0])}, {r2(z[0])}")
        a(f"v_pk_add_f32 {r2(t+4)}, {r2(z[2])}, {r2(z[3])}")
        a(f"v_pk_fma_f32 {r2(t+2)}, {r2(z[1])}, {r2(z[1])}, {r2(t+2)}")
        a(f"v_pk_add_f32 {r2(t)}, {r2(t)}, {r2(t+4)}")
        a(f"v_pk_fma_f32 {r2(t+2)}, {r2(z[2])}, {r2(z[2])}, {r2(t+2)}")
        a(f"v_pk_fma_f32 {r2(t+2)}, {r2(z[3])}, {r2(z[3])}, {r2(t+2)}")
        a(f"v_add_f32 v{t}, v{t}, v{t+1}")
        a(f"v_add_f32 v{t+1}, v{t+2}, v{t+3}")
    V = lambda tt, c: T + 6*tt + c
    for c in range(2):
        a(f"v_permlane32_swap_b32 v{V(0,c)}, v{V(2,c)}")
        a(f"v_permlane32_swap_b32 v{V(1,c)}, v{V(3,c)}")
    for c in range(2):
        a(f"v_add_f32 v{V(0,c)}, v{V(0,c)}, v{V(2,c)}")
        a(f"v_add_f32 v{V(1,c)}, v{V(1,c)}, v{V(3,c)}")
    for c in range(2): a(f"v_permlane16_swap_b32 v{V(0,c)}, v{V(1,c)}")
    a(f"v_add_f32 v4, v{V(0,0)}, v{V(1,0)}")
    a(f"v_add_f32 v5, v{V(0,1)}, v{V(1,1)}")
    a("v_lshlrev_b32 v6, 4, v1")
    a("s_mov_b32 s88, 0")
    a.label(L('fchk'))
    a("s_waitcnt vmcnt(0)")
    a("v_readfirstlane_b32 s43, v11")
    a("s_cmp_lg_u32 s43, 0")
    a(f"s_cbranch_scc1 {L('fok')}")
    a("s_add_u32 s88, s88, 1")
    a("s_cmp_ge_u32 s88, 0x40000")
    a(f"s_cbranch_scc1 {L('fok')}")
    a("global_load_dword v11, v10, s[12:13] sc1")
    a(f"s_branch {L('fchk')}")
    a.label(L('fok'))
    a(f"buffer_store_dwordx2 v[4:5], v6, s[32:35], s62 offen {XS}")
    if not cfg.get('tsc'): ts(4)
    a(f"s_mov_b32 s62, {PSTEP-4}")
    H1IT = cfg.get('h1it', 4)
    if not Z1K1:
        if H1IT < 0:
            h1_store()
        else:
            a(f"s_mov_b32 s63x, {H1IT}".replace('s63x', 's89'))
    a(f"s_branch {L('phase1')}")
    a.label(L('pure_mid'))
    a("s_mov_b32 s62, 99")
    a("s_mov_b32 s89, 99")
    def vq():
        a("s_lshl_b32 s43, s18, 7")
        a("s_lshl_b32 s44, s21, 6")
        a("s_add_u32 s43, s43, s44")
        a("v_add_u32 v4, s43, v2")
        a("v_lshlrev_b32 v4, 5, v4")
        a("v_lshl_add_u32 v4, v3, 3, v4")
    def qkv_out(n, ct_sgpr_expr, T2):
        a("s_cmp_lt_u32 s45, 32")
        a(f"s_cselect_b32 s44, {hex(f2u(QSCALE))}, 1.0")
        a("s_lshl_b32 s43, s45, 16")
        if WS_QKV: a(f"s_add_u32 s43, s43, {WS_QKV}")
        a(f"v_mov_b32 v8, s44")
        a(f"v_mov_b32 v9, s44")
        for tt in range(4):
            c = acc(n, tt); t = T2 + 2*tt
            a(f"v_pk_mul_f32 {r2(c)}, {r2(c)}, v[8:9]")
            a(f"v_pk_mul_f32 {r2(c+2)}, {r2(c+2)}, v[8:9]")
            a(f"v_cvt_pk_bf16_f32 v{t}, v{c}, v{c+1}")
            a(f"v_cvt_pk_bf16_f32 v{t+1}, v{c+2}, v{c+3}")
            a(f"buffer_store_dwordx2 {r2(t)}, v4, s[32:35], s43 offen offset:{tt*512} {ST}")
    vq()
    for n in range(4):
        a("s_lshl_b32 s45, s22, 2")
        a(f"s_add_u32 s45, s45, {84+n}")
        qkv_out(n, None, PK + 8*(n % 3))
    a.label(L('phase1'))
    if cfg.get('pf', 2) == 7:
        srd(a, 24, 10, 2048*4096)
        a("s_lshr_b32 s43, s16, 1")
        a("s_lshl_b32 s43, s43, 21")
        a("s_lshl_b32 s44, s17, 16")
        a("s_add_u32 s43, s43, s44")
        a("s_and_b32 s44, s16, 1")
        a("s_lshl_b32 s44, s44, 11")
        a("s_add_u32 s43, s43, s44")
        a("s_lshl_b32 s44, s20, 14")
        a("s_add_u32 s43, s43, s44")
        a("v_lshlrev_b32 v8, 4, v1")
        for q in range(8):
            a(f"buffer_load_dwordx4 v[228:231], v8, s[24:27], s43 offen offset:{(q%2)*1024}")
            if q % 2 == 1: a("s_add_u32 s43, s43, 4096")
    a("s_mov_b32 s40, 0")
    loop(1)
    if not cfg.get('tsc'): ts(5)
    a("v_and_b32 v2, 15, v1")
    a("v_lshrrev_b32 v3, 4, v1")
    vq()
    a("s_cmp_eq_u32 s19, 14")
    a(f"s_cbranch_scc1 {L('pure_tail')}")
    a("s_mul_i32 s55, s19, 6")
    a("s_mul_i32 s44, s22, 3")
    a("s_add_u32 s55, s55, s44")
    for k in range(3):
        a(f"s_add_u32 s45, s55, {k}")
        qkv_out(4+k, None, W[0] + 8*k)
    a(f"s_branch {L('fin')}")
    if cfg.get('h1it', 4) >= 0 and not cfg.get('z1k1', 0):
        a.label(L('h1blk'))
        h1_store()
        a("s_mov_b32 s89, 99")
        a(f"s_branch {L('h1back')}")
    a.label(L('zfin'))
    ZS, ZT = 232, 240
    a("v_and_b32 v2, 15, v1")
    a("v_lshrrev_b32 v3, 4, v1")
    a("s_lshl_b32 s43, s21, 6")
    a("v_add_u32 v6, s43, v2")
    a("v_lshlrev_b32 v6, 3, v6")
    a(f"v_add_u32 v6, {EP}, v6")
    for tt in range(4): a(f"ds_read_b64 {r2(ZS+2*tt)}, v6 offset:{tt*128}")
    a("s_lshl_b32 s47, s20, 12")
    a(f"s_add_u32 s47, s47, {EP+1024}")
    a("v_lshlrev_b32 v6, 5, v2")
    a("v_lshl_add_u32 v6, v3, 3, v6")
    a("v_add_u32 v6, s47, v6")
    a("s_waitcnt lgkmcnt(0)")
    for n in range(2):
        for tt in range(4):
            c = acc(n, tt); mr, r = ZS+2*tt, ZS+2*tt+1
            for i in range(4): a(f"v_fma_f32 v{c+i}, v{c+i}, v{r}, v{mr}")
            t = PK + 2*(n*4+tt)
            a(f"v_cvt_pk_bf16_f32 v{t}, v{c}, v{c+1}")
            a(f"v_cvt_pk_bf16_f32 v{t+1}, v{c+2}, v{c+3}")
            a(f"ds_write_b64 v6, {r2(t)} offset:{n*2048+tt*512}")
    a("v_lshlrev_b32 v6, 3, v2")
    a("v_lshl_add_u32 v6, v3, 8, v6")
    a("v_add_u32 v6, s47, v6")
    a("s_lshl_b32 s43, s19, 2")
    a("s_lshl_b32 s44, s22, 1")
    a("s_add_u32 s43, s43, s44")
    a("s_lshl_b32 s43, s43, 16")
    a("s_lshl_b32 s44, s18, 2")
    a("s_lshl_b32 s45, s21, 1")
    a("s_add_u32 s44, s44, s45")
    a("s_lshl_b32 s44, s44, 10")
    a("s_add_u32 s43, s43, s44")
    a(f"s_add_u32 s46, s43, {WS_Z2N}")
    a("s_add_u32 s47, s46, 65536")
    a("v_lshlrev_b32 v7, 4, v1")
    a("s_waitcnt lgkmcnt(0)")
    for n in range(2):
        for kk in range(2):
            for sx in range(2):
                a(f"ds_read_b64_tr_b16 {r2(ZT+4*(n*2+kk)+2*sx)}, v6 offset:{n*2048+kk*1024+sx*128}")
    for n in range(2):
        for kk in range(2):
            a(f"s_waitcnt lgkmcnt({6-2*(n*2+kk)})")
            a(f"buffer_store_dwordx4 {r4(ZT+4*(n*2+kk))}, v7, s[32:35], {'s46' if n==0 else 's47'} offen offset:{kk*1024} {FL[cfg.get('stz', 2)]}")
    a("s_mov_b32 s62, 99")
    a(f"s_branch {L('zback')}")
    a.label(L('pure_tail'))
    for k in range(2):
        a("s_lshl_b32 s45, s22, 1")
        a(f"s_add_u32 s45, s45, {92+k}")
        qkv_out(4+k, None, W[0] + 8*k)
    a(f"s_branch {L('fin')}")
    a.label(L('loader'))
    if cfg.get('lprio', 1): a(f"s_setprio {cfg.get('lprio', 1)}")
    a("s_sub_u32 s20, s20, 4")
    ts.role(1)
    a("s_lshr_b32 s21, s20, 1")
    a("s_and_b32 s22, s20, 1")
    a("s_lshl_b32 s43, s19, 7")
    a("s_cmp_eq_u32 s21, 0")
    a("s_cselect_b32 s44, 1792, 0")
    a("s_add_u32 s43, s43, s44")
    a("s_lshl_b32 s44, s21, 7")
    a("s_add_u32 s44, s44, 2688")
    a("s_mul_i32 s45, s19, 3")
    a("s_lshr_b32 s45, s45, 1")
    a("s_add_u32 s45, s45, s21")
    a("s_lshl_b32 s45, s45, 7")
    a("s_cmp_eq_u32 s19, 14")
    a("s_cselect_b32 s43, s44, s43")
    a("s_cselect_b32 s45, 2944, s45")
    a("s_movk_i32 s36, 3584")
    a("s_cselect_b32 s36, 3072, s36")
    a("s_cselect_b32 s46, 0, 1")
    a("v_lshrrev_b32 v2, 3, v1")
    a("v_and_b32 v3, 7, v1")
    a("v_lshrrev_b32 v4, 1, v2")
    a("s_lshl_b32 s44, s18, 7")
    a("s_lshl_b32 s47, s20, 5")
    a("s_add_u32 s44, s44, s47")
    a("v_add_u32 v5, s44, v2")
    a("v_lshlrev_b32 v5, 10, v5")
    a("v_xor_b32 v6, v3, v4")
    a("v_xor_b32 v7, 4, v6")
    a("v_lshl_add_u32 v6, v6, 4, v5")
    a("v_lshl_add_u32 v7, v7, 4, v5")
    a(f"v_mov_b32 v{VX[0]}, v6")
    a(f"v_add_u32 v{VX[1]}, 7168, v7")
    a(f"v_add_u32 v{VX[2]}, {2*7168}, v6")
    a(f"v_add_u32 v{VX[3]}, {3*7168}, v7")
    a("v_and_b32 v5, 3, v2")
    a("v_lshrrev_b32 v6, 2, v2")
    a("v_lshl_add_u32 v5, v6, 3, v5")
    a("v_lshlrev_b32 v6, 1, v4")
    a("v_xor_b32 v6, v3, v6")
    a("v_lshlrev_b32 v6, 4, v6")
    a("s_lshl_b32 s48, s22, 5")
    a("v_add_u32 v5, s48, v5")
    def vw_setup(ph):
        st = 's36' if ph == 0 else 's37'
        if ph == 1: a("s_movk_i32 s37, 3072")
        a(f"v_mul_lo_u32 v7, v12, {st}")
        a("v_add_u32 v7, v7, v13")
        for b in range(4):
            h, s = b >> 1, b & 1
            a(f"s_mul_i32 s92, {st}, {16*h+4*s}")
            a(f"s_sub_u32 s92, s92, {b*1024}")
            a(f"v_add_u32 v{VW[ph][b]}, s92, v7")
    a("v_mov_b32 v12, v5")
    a("v_mov_b32 v13, v6")
    a("s_mov_b32 s93, s45")
    vw_setup(0)
    a("s_lshl_b32 s47, s20, 12")
    a("s_lshl_b32 s48, s22, 13")
    a("s_lshl_b32 s49, s21, 12")
    a("s_add_u32 s48, s48, s49")
    a("s_add_u32 s48, s48, 16384")
    a("s_cmp_eq_u32 s46, 1")
    a("s_waitcnt lgkmcnt(0)")
    a("s_cselect_b32 s28, s8, s6")
    a("s_cselect_b32 s29, s9, s7")
    a("s_add_u32 s28, s28, s43")
    a("s_addc_u32 s29, s29, 0")
    a("s_lshl_b32 s30, s36, 9")
    a("s_sub_u32 s30, s30, s43")
    a("s_mov_b32 s31, 0x20000")
    srd(a, 84, 4, 2048*1024)
    def late_setup():
        vw_setup(1)
        a("s_add_u32 s24, s6, s93")
        a("s_addc_u32 s25, s7, 0")
        a(f"s_mov_b32 s26, {512*3072}")
        a("s_sub_u32 s26, s26, s93")
        a("s_mov_b32 s27, 0x20000")
        srd(a, 32, 14, WS_END)
    LD = cfg.get('ld1', '')
    XR = cfg.get('xreuse', 1)
    def koff(s_): return s_ if s_ < 8 else ((s_-4 if s_ < 12 else s_-12) if XR else s_-8)
    def hasx(s_): return not (XR and 8 <= s_ < 12)
    def nins(s_): return 8 if hasx(s_) else 4
    def prep(s_):
        ph = s_ >> 3; base = (s_ % NSLOT)*SLOT
        a(f"s_add_u32 s45, s23, {koff(s_)}")
        a("s_and_b32 s45, s45, 7")
        a("s_lshl_b32 s46, s45, 7")
        a(f"s_mul_i32 s44, s45, {'s38' if ph == 0 else 's39'}")
        if cfg.get('nodma'): a("s_mov_b32 s46, 0x7ff00000"); a("s_mov_b32 s44, 0x7ff00000")
        a(f"s_add_u32 s49, s48, {base}")
        if hasx(s_): a(f"s_add_u32 m0, s47, {base}")
        else: a("s_mov_b32 m0, s49")
    def fire(s_):
        ph = s_ >> 3
        if hasx(s_):
            for i in range(4): a(f"buffer_load_dwordx4 v{VX[i]}, s[84:87], s46 offen offset:{i*1024} {LD} lds")
            a("s_mov_b32 m0, s49")
        S = 's[28:31]' if ph == 0 else 's[24:27]'
        for b in range(4): a(f"buffer_load_dwordx4 v{VW[ph][b]}, {S}, s44 offen offset:{b*1024} {LD} lds")
    class LQ:
        def __init__(self, q=None): self.q = list(q or [])
        def add(self, kind, key, n): self.q.append((kind, key, n))
        def allowed(self, step, also=()):
            idx = max([k for k, e in enumerate(self.q) if (e[0] == 'D' and e[1] <= step) or e[0] in also], default=-1)
            return sum(e[2] for e in self.q[idx+1:])
        def copy(self): return LQ(self.q)
    lq = LQ()
    a("s_lshl_b32 s38, s36, 6")
    a(f"s_mov_b32 s39, {64*3072}")
    rot = cfg.get('k1rot', 1)
    if rot == 0: a("s_mov_b32 s23, 0")
    elif rot == 1: a("s_and_b32 s23, s18, 7")
    elif rot == 2: a("s_and_b32 s23, s18, 1"); a("s_lshl_b32 s23, s23, 2")
    elif rot == 3: a("s_and_b32 s23, s18, 3"); a("s_lshl_b32 s23, s23, 1")
    elif rot == 4: a("s_mov_b32 s23, s16")
    elif rot == 5:
        a("s_and_b32 s23, s16, 3"); a("s_lshl_b32 s23, s23, 1"); a("s_lshr_b32 s43, s16, 2"); a("s_add_u32 s23, s23, s43")
    elif rot == 6:
        a("s_and_b32 s23, s18, 1"); a("s_lshl_b32 s23, s23, 2"); a("s_add_u32 s23, s23, s16")
    elif rot == 7:
        a("s_and_b32 s23, s18, 7"); a("s_lshl_b32 s43, s16, 1"); a("s_add_u32 s23, s23, s43")
    for st_ in (0, 1):
        prep(st_); fire(st_); lq.add('D', st_, 8)
    late_setup()
    ts(1)
    prep(2)
    a(f"s_waitcnt vmcnt({lq.allowed(0)})")
    a("s_barrier")
    ts(2)
    fire(2); lq.add('D', 2, 8)
    prep(3); fire(3); lq.add('D', 3, 8)
    NW = 0
    if cfg.get('l2w', 2) == 2:
        NW = 8
        lq.add('W', 0, 8)
        a("s_lshl_b32 s43, s18, 7")
        a("s_and_b32 s44, s19, 3")
        a("s_lshl_b32 s44, s44, 5")
        a("s_add_u32 s43, s43, s44")
        a("s_lshl_b32 s44, s20, 3")
        a("s_add_u32 s43, s43, s44")
        a("s_lshl_b32 s43, s43, 10")
        a("s_add_u32 s44, s23, 4")
        a("s_lshl_b32 s44, s44, 7")
        a("v_and_b32 v2, 31, v1")
        a("v_lshlrev_b32 v2, 4, v2")
        a("v_add_u32 v2, s44, v2")
        a("v_and_b32 v2, 1023, v2")
        a("v_lshrrev_b32 v3, 5, v1")
        a("v_lshl_add_u32 v2, v3, 10, v2")
        for q in range(4):
            a(f"buffer_load_dwordx4 {r4(32+4*q)}, v2, s[84:87], s43 offen offset:{(q%2)*2048}")
            if q == 1: a("s_add_u32 s43, s43, 4096")
        a("s_mul_i32 s44, s19, 3")
        a("s_lshr_b32 s44, s44, 1")
        a("s_lshl_b32 s44, s44, 7")
        a("s_cmp_eq_u32 s19, 14")
        a("s_cselect_b32 s44, 2816, s44")
        a("s_and_b32 s43, s18, 7")
        a("s_lshl_b32 s43, s43, 6")
        a("s_lshl_b32 s45, s20, 4")
        a("s_add_u32 s43, s43, s45")
        a("s_mul_i32 s43, s43, 3072")
        a("s_add_u32 s43, s43, s44")
        srd(a, 80, 6, 512*3072)
        a("v_lshrrev_b32 v2, 4, v1")
        a("v_mul_u32_u24 v2, 3072, v2")
        a("v_and_b32 v3, 15, v1")
        a("v_lshl_add_u32 v2, v3, 4, v2")
        for q in range(4):
            a(f"buffer_load_dwordx4 {r4(48+4*q)}, v2, s[80:83], s43 offen")
            if q < 3: a(f"s_add_u32 s43, s43, {4*3072}")
    PF3 = cfg.get('pf', 2) == 3
    if PF3:
        srd(a, 92, 10, 2048*4096)
        a("s_lshr_b32 s90, s16, 1")
        a("s_lshl_b32 s90, s90, 21")
        a("s_lshl_b32 s43, s17, 16")
        a("s_add_u32 s90, s90, s43")
        a("s_lshl_b32 s43, s20, 14")
        a("s_add_u32 s90, s90, s43")
        a("v_lshlrev_b32 v8, 4, v1")
    for b in range(8):
        prep(b+4)
        a(f"s_waitcnt vmcnt({lq.allowed(b+1)})")
        if cfg.get('tsl') and b < 4: ts(3 + b)
        a("s_barrier")
        fire(b+4); lq.add('D', b+4, nins(b+4))
        if PF3 and b >= 4:
            for q in range(4): a(f"buffer_load_dwordx4 {r4(64+4*q)}, v8, s[92:95], s90 offen offset:{q*1024}")
            a("s_add_u32 s90, s90, 4096")
            lq.add('F', 0, 4)
    a("s_cmp_eq_u32 s19, 14")
    a(f"s_cbranch_scc1 {L('lpure')}")
    a("s_lshl_b32 s43, s20, 12")
    a(f"s_add_u32 s43, s43, {EP+1024}")
    a("v_lshlrev_b32 v5, 4, v1")
    a("v_add_u32 v6, s43, v5")
    HP, HC, HT = 32, 48, 80
    C0, C1, C2 = 90, 92, 94
    for r in (C0, C0+1): a(f"v_mov_b32 v{r}, {hex(f2u(GELU_C0))}")
    for r in (C1, C1+1): a(f"v_mov_b32 v{r}, {hex(f2u(GELU_C1))}")
    for r in (C2, C2+1): a(f"v_mov_b32 v{r}, 1.0")
    a("s_lshl_b32 s43, s18, 2")
    a("s_lshl_b32 s44, s21, 1")
    a("s_add_u32 s43, s43, s44")
    a("s_mul_i32 s43, s43, 56")
    a("s_lshl_b32 s44, s19, 2")
    a("s_add_u32 s43, s43, s44")
    a("s_lshl_b32 s44, s22, 1")
    a("s_add_u32 s43, s43, s44")
    a("s_lshl_b32 s43, s43, 10")
    a(f"s_add_u32 s52, s43, {WS_H1}")
    a(f"s_add_u32 s53, s52, {56*1024}")
    def z1_block(q):
        if not Z1K1: return
        a(f"ds_read_b128 {r4(HP)}, v6 offset:{q*1024}")
        a("s_waitcnt lgkmcnt(0)")
        for e in range(4):
            a(f"v_lshlrev_b32 v{HC+2*e}, 16, v{HP+e}")
            a(f"v_and_b32 v{HC+2*e+1}, 0xffff0000, v{HP+e}")
        gelu_pairs(a, [HC+2*e for e in range(4)], HT, C0, C1, C2, G=4)
        t = HP + 4 + 4*(q % 2)
        for e in range(4): a(f"v_cvt_pk_bf16_f32 v{t+e}, v{HC+2*e}, v{HC+2*e+1}")
        a(f"buffer_store_dwordx4 {r4(t)}, v5, s[32:35], {'s52' if q < 2 else 's53'} offen offset:{(q%2)*1024} {FL[cfg.get('sth1', 2)]}")
    a("s_cmp_lt_u32 s20, 2")
    a(f"s_cbranch_scc1 {L('lx')}")
    l2 = lq.copy()
    for b in (8, 9, 10, 11):
        prep(b+4)
        a(f"s_waitcnt vmcnt({l2.allowed(b+1)})")
        a("s_barrier")
        fire(b+4); l2.add('D', b+4, nins(b+4))
        z1_block(b-8)
        if Z1K1: l2.add('S', 0, 1)
    a(f"s_branch {L('lb12m')}")
    a.label(L('lpure'))
    l3 = lq.copy()
    for b in (8, 9, 10, 11):
        prep(b+4)
        a(f"s_waitcnt vmcnt({l3.allowed(b+1)})")
        a("s_barrier")
        fire(b+4); l3.add('D', b+4, nins(b+4))
    a.label(L('lb12m'))
    PFN = {2: 8, 4: 4, 5: 2, 6: 4}.get(cfg.get('pf', 2), 0)
    PF6 = cfg.get('pf', 2) == 6
    if PF6:
        srd(a, 80, 10, 2048*4096)
        a("s_lshr_b32 s43, s16, 1")
        a("s_lshl_b32 s43, s43, 21")
        a("s_lshl_b32 s44, s17, 16")
        a("s_add_u32 s43, s43, s44")
        a("s_and_b32 s44, s16, 1")
        a("s_lshl_b32 s44, s44, 11")
        a("s_add_u32 s43, s43, s44")
        a("s_and_b32 s44, s20, 1")
        a("s_lshl_b32 s44, s44, 15")
        a("s_add_u32 s43, s43, s44")
        a("v_and_b32 v8, 63, v1")
        a("v_lshlrev_b32 v8, 4, v8")
    elif PFN == 2:
        srd(a, 80, 10, 2048*4096)
        a("s_lshl_b32 s43, s2, 14")
        a("s_and_b32 s44, s20, 1")
        a("s_lshl_b32 s44, s44, 13")
        a("s_add_u32 s43, s43, s44")
        a(f"s_add_u32 s43, s43, {4<<20}")
        a("v_lshlrev_b32 v8, 4, v1")
    elif PFN:
        srd(a, 80, 10, 2048*4096)
        a("s_lshr_b32 s43, s16, 1")
        a("s_lshl_b32 s43, s43, 21")
        a("s_lshl_b32 s44, s17, 16")
        a("s_add_u32 s43, s43, s44")
        if PFN == 8:
            a("s_and_b32 s44, s20, 1")
            a("s_lshl_b32 s44, s44, 15")
        else:
            a("s_and_b32 s44, s16, 1")
            a("s_lshl_b32 s44, s44, 15")
            a("s_add_u32 s43, s43, s44")
            a("s_and_b32 s44, s20, 1")
            a("s_lshl_b32 s44, s44, 14")
        a("s_add_u32 s43, s43, s44")
        a("v_lshlrev_b32 v8, 4, v1")
    def pf_batch():
        if PF6:
            for q in range(4):
                a(f"buffer_load_dwordx4 {r4(64+4*q)}, v8, s[80:83], s43 offen offset:{(q%2)*1024}")
                if q % 2 == 1: a("s_add_u32 s43, s43, 4096")
            return
        for q in range(PFN):
            a(f"buffer_load_dwordx4 {r4(64+4*q)}, v8, s[80:83], s43 offen offset:{(q%4)*1024}")
            if q % 4 == 3 or q == PFN-1: a(f"s_add_u32 s43, s43, {1024*min(4, PFN)}")
    a("s_waitcnt vmcnt(16)")
    a("s_barrier")
    pf_batch()
    a(f"s_waitcnt vmcnt({8+PFN})")
    a("s_barrier")
    pf_batch()
    a(f"s_waitcnt vmcnt({2*PFN})")
    a("s_barrier")
    pf_batch()
    a("s_barrier")
    pf_batch()
    if cfg.get('xw', 0):
        a(f"s_mul_i32 s43, s2, {cfg['xw']*1024}")
        a(f"s_add_u32 s43, s43, 0x2000000")
        a(f"s_mov_b32 s90, s14"); a("s_mov_b32 s91, s15")
        a("s_mov_b32 s92, 0x8000000"); a("s_mov_b32 s93, 0x20000")
        a("s_mov_b32 s88, s14"); a("s_mov_b32 s89, s15"); a("s_mov_b32 s90, 0x8000000"); a("s_mov_b32 s91, 0x20000")
        a("s_and_b32 s44, s20, 1")
        a(f"s_mul_i32 s44, s44, {cfg['xw']*512}")
        a("s_add_u32 s43, s43, s44")
        for q in range(cfg['xw']//2):
            a(f"buffer_store_dwordx4 v[64:67], v8, s[88:91], s43 offen offset:{(q%4)*1024} {'sc1' if cfg.get('xwsc',1) else ''}")
            if q % 4 == 3: a("s_add_u32 s43, s43, 4096")
    if cfg.get('pfwait', 1): a("s_waitcnt vmcnt(0)")
    a(f"s_branch {L('fin2') if not cfg.get('pfwait', 1) else L('fin')}")
    a.label(L('lx'))
    a("s_lshl_b32 s43, s20, 6")
    a("v_add_u32 v9, s43, v1")
    a("v_lshlrev_b32 v7, 4, v9")
    a("s_mul_i32 s54, s18, 28672")
    a(f"s_add_u32 s54, s54, {WS_STAT}")
    a("s_mov_b32 s88, 0")
    P = 96
    def poll_loads():
        a("s_mov_b32 s43, s54")
        for q in range(14):
            if q % 2 == 0 and q: a("s_add_u32 s43, s43, 4096")
            a(f"buffer_load_dwordx4 {r4(P+4*q)}, v7, s[32:35], s43 offen offset:{(q%2)*2048} {XS}")
    l1 = lq.copy()
    for b in range(8, PSTEP+3):
        if b+4 < 16: prep(b+4)
        a(f"s_waitcnt vmcnt({l1.allowed(b+1)})")
        a("s_barrier")
        if b+4 < 16:
            fire(b+4); l1.add('D', b+4, nins(b+4))
        if b == PSTEP:
            poll_loads(); l1.add('P', 0, 14)
        if b < 12:
            z1_block(b-8)
            if Z1K1: l1.add('S', 0, 1)
    if not cfg.get('tsl'): ts(3)
    a(f"s_waitcnt vmcnt({l1.allowed(PSTEP+4, also=('P',))})")
    a(f"s_branch {L('pchk1')}")
    a.label(L('pchk'))
    a("s_waitcnt vmcnt(0)")
    a.label(L('pchk1'))
    a(f"v_max_u32 v10, v{P}, v{P+1}")
    for q in range(2, 56, 2): a(f"v_max3_u32 v10, v10, v{P+q}, v{P+q+1}")
    a("v_cmp_eq_u32 vcc, -1, v10")
    a("s_add_u32 s88, s88, 1")
    a("s_cmp_ge_u32 s88, 0x20000")
    a(f"s_cbranch_scc1 {L('polled')}")
    a(f"s_cbranch_vccz {L('polled')}")
    poll_loads()
    a(f"s_branch {L('pchk')}")
    a.label(L('polled'))
    if not cfg.get('tsl'): ts(5)
    if ts.on: a("s_mov_b32 s62, s88")
    for q in range(1, 28): a(f"v_pk_add_f32 {r2(P)}, {r2(P)}, {r2(P+2*q)}")
    m, e2 = P, P+1
    a(f"v_mul_f32 v{m}, {hex(f2u(1.0/896))}, v{m}")
    a(f"v_mul_f32 v{e2}, {hex(f2u(1.0/896))}, v{e2}")
    a(f"v_fma_f32 v{e2}, -v{m}, v{m}, v{e2}")
    a(f"v_max_f32 v{e2}, 0, v{e2}")
    a(f"v_add_f32 v{e2}, {hex(f2u(1e-5))}, v{e2}")
    a(f"v_rsq_f32 v{e2}, v{e2}")
    a(f"v_mul_f32 v{m}, v{m}, v{e2}")
    a(f"v_sub_f32 v{m}, 0, v{m}")
    a("v_lshlrev_b32 v7, 3, v9")
    a(f"v_add_u32 v7, {EP}, v7")
    a(f"ds_write_b64 v7, {r2(m)}")
    a("s_waitcnt lgkmcnt(0)")
    a("s_barrier")
    for b in range(PSTEP+4, 16):
        if b+1 <= 15: a("s_waitcnt vmcnt(0)" if b+1 == 15 else f"s_waitcnt vmcnt({8*(15-(b+1))})")
        a("s_barrier")
    a(f"s_branch {L('fin')}")
    a.label(L('spare'))
    a("s_waitcnt lgkmcnt(0)")
    srd(a, 32, 14, WS_END)
    a("s_mul_i32 s43, s18, 28672")
    a("s_lshl_b32 s44, s20, 10")
    a("s_add_u32 s43, s43, s44")
    a(f"s_add_u32 s43, s43, {WS_STAT}")
    a("v_lshlrev_b32 v2, 4, v1")
    for r in range(4, 8): a(f"v_mov_b32 v{r}, -1")
    for q in range(3):
        a("buffer_store_dwordx4 v[4:7], v2, s[32:35], s43 offen sc1")
        a("s_add_u32 s43, s43, 8192")
    a("s_cmp_lt_u32 s20, 4")
    a(f"s_cbranch_scc0 {L('rs3')}")
    a("buffer_store_dwordx4 v[4:7], v2, s[32:35], s43 offen sc1")
    a.label(L('rs3'))
    if cfg.get('fuse', 1):
        lab = L('zf')
        a("s_cmp_eq_u32 s18, 0")
        a(f"s_cbranch_scc0 {lab}")
        a("s_cmp_ge_u32 s20, 5")
        a(f"s_cbranch_scc0 {lab}")
        a("s_sub_u32 s43, s20, 5")
        a("s_lshl_b32 s43, s43, 10")
        a(f"s_add_u32 s43, s43, {WS_FLAG}")
        for r in range(4, 8): a(f"v_mov_b32 v{r}, 0")
        a("buffer_store_dwordx4 v[4:7], v2, s[32:35], s43 offen sc1")
        a.label(lab)
    a("s_waitcnt vmcnt(0)")
    a("s_barrier")
    a("s_cmp_eq_u32 s20, 0")
    a(f"s_cbranch_scc0 {L('rs4')}")
    a("s_lshl_b32 s43, s18, 2")
    a("v_mov_b32 v2, s43")
    a("v_mov_b32 v3, 1")
    a("s_mov_b64 s[52:53], exec")
    a("s_mov_b64 exec, 1")
    a("global_store_dword v2, v3, s[12:13] sc1")
    a("s_mov_b64 exec, s[52:53]")
    a.label(L('rs4'))
    if cfg.get('cpf', 1):
        a("s_and_b32 s43, s17, 1")
        a("s_lshl_b32 s43, s43, 3")
        a("s_add_u32 s43, s43, s20")
        code_prefetch(a, 'gm_k1_kernel', 'gm_code_end', 's43', 3, 'k1', vtmp=200)
    a("s_lshl_b32 s18, s18, 7")
    a("s_lshl_b32 s43, s20, 4")
    a("s_add_u32 s18, s18, s43")
    srd(a, 24, 4, 2048*1024)
    srd(a, 28, 58, 1024)
    srd(a, 32, 14, WS_END)
    a("v_and_b32 v2, 15, v1")
    a("v_lshrrev_b32 v3, 4, v1")
    a("v_lshlrev_b32 v4, 4, v2")
    for q in range(4): a(f"buffer_load_dwordx4 {r4(16+4*q)}, v4, s[28:31], 0 offen offset:{256*q}")
    a("v_add_u32 v5, s18, v3")
    a("v_lshl_add_u32 v5, v5, 10, v4")
    for it in range(4):
        for q in range(4): a(f"buffer_load_dwordx4 {r4(64+16*it+4*q)}, v5, s[24:27], 0 offen offset:{256*q}")
        a("v_add_u32 v5, 4096, v5")
    a("v_add_u32 v6, s18, v3")
    a("v_lshlrev_b32 v6, 2, v6")
    npf2 = 0
    for it in range(4):
        a(f"s_waitcnt vmcnt({4*(3-it)+npf2})")
        b = 64+16*it
        a(f"v_dot2_f32_bf16 v8, v{b}, v16, 0")
        for r in range(1, 16): a(f"v_dot2_f32_bf16 v8, v{b+r}, v{16+r}, v8")
        a("s_nop 2")
        for sh in ('row_shr:8', 'row_shr:4', 'row_shr:2', 'row_shr:1'):
            a(f"v_add_f32_dpp v8, v8, v8 {sh} row_mask:0xf bank_mask:0xf bound_ctrl:1")
        a(f"v_mul_f32 v8, {hex(f2u(-LOG2E))}, v8")
        a("v_exp_f32 v8, v8")
        a("v_add_f32 v8, 1.0, v8")
        a("v_rcp_f32 v8, v8")
        a(f"v_mov_b32 v{32+it}, v8")
    a("v_cmp_eq_u32 s[52:53], 15, v2")
    a("s_mov_b64 s[54:55], exec")
    a("s_and_b64 exec, exec, s[52:53]")
    a(f"s_mov_b32 s51, {WS_G}")
    for it in range(4):
        a(f"buffer_store_dword v{32+it}, v6, s[32:35], s51 offen offset:{16*it}")
    a("s_mov_b64 exec, s[54:55]")
    if cfg.get('pf', 1):
        a("s_lshr_b32 s48, s18, 4")
        a("v_lshlrev_b32 v9, 4, v1")
        srd(a, 36, 60, 512*1024)
        srd(a, 44, 56, 896*1024)
        a("s_lshl_b32 s49, s48, 12")
        for q in range(4): a(f"buffer_load_dwordx4 {r4(128+4*q)}, v9, s[36:39], s49 offen offset:{q*1024}")
        a("s_mul_i32 s49, s48, 7168")
        for q in range(7):
            if q == 4: a("s_add_u32 s49, s49, 4096")
            a(f"buffer_load_dwordx4 {r4(144+4*q)}, v9, s[44:47], s49 offen offset:{(q%4)*1024}")
        srd(a, 80, 10, 2048*4096)
        if cfg.get('pf', 2) == 5:
            a("s_lshl_b32 s43, s48, 15")
            a("s_mov_b32 s50, 0")
            a.label(L('pfl'))
            for q in range(8):
                a(f"buffer_load_dwordx4 {r4(64+4*q)}, v9, s[80:83], s43 offen offset:{(q%4)*1024}")
                if q % 4 == 3: a("s_add_u32 s43, s43, 4096")
            a("s_waitcnt vmcnt(24)")
            a("s_add_u32 s50, s50, 1")
            a("s_cmp_lt_u32 s50, 4")
            a(f"s_cbranch_scc1 {L('pfl')}")
            a("s_lshl_b32 s43, s2, 14")
            a("s_lshl_b32 s44, s20, 11")
            a("s_add_u32 s43, s43, s44")
            a(f"s_add_u32 s43, s43, {4<<20}")
            for q in range(2): a(f"buffer_load_dwordx4 {r4(64+4*q)}, v9, s[80:83], s43 offen offset:{q*1024}")
        else:
            a("s_lshr_b32 s43, s16, 1")
            a("s_lshl_b32 s43, s43, 21")
            a("s_lshl_b32 s44, s17, 16")
            a("s_add_u32 s43, s43, s44")
            a("s_lshl_b32 s44, s20, 13")
            a("s_add_u32 s43, s43, s44")
            for q in range(8):
                a(f"buffer_load_dwordx4 {r4(64+4*q)}, v9, s[80:83], s43 offen offset:{(q%4)*1024}")
                if q == 3: a("s_add_u32 s43, s43, 4096")
        a("s_waitcnt vmcnt(0)")
    a.label(L('fin'))
    if ts.on: a("s_waitcnt vmcnt(0)")
    if not cfg.get('tsc'): ts(7)
    ts.flush()
    a.label(L('fin2'))
    a.label(L('end'))
    a("s_endpgm")
    if cfg.get('lfirst', 1):
        pos = {i.text.strip()[:-1]: k for k, i in enumerate(a.items) if i.cls == 'label'}
        c0, l0, s0 = pos[L('compute')], pos[L('loader')], pos[L('spare')]
        a.items = a.items[:c0] + a.items[l0:s0] + a.items[c0:l0] + a.items[s0:]
    a.check_protected(list(range(4, 16)) + list(range(56, 62)))
    n = a.fix_hazards()
    return a, n
```

```python
from asmlib import *
from common import *

NAME = 'gm_k1_kernel'
SLOT = 32768
NSLOT = 4
EP = NSLOT*SLOT
LDS_BYTES = EP + 1024 + 16384
GRID = 256
BLOCK = 512
VGPRS = 256
HUGE = 0x7ff00000
SENT = 0xffffffff

ACC = 16
X = [128, 144]
W = [160, 176]
XA = [216, 217]
WA = [218+i for i in range(7)]
PK = 192
VX = [16+i for i in range(4)]
VW = [[20+i for i in range(4)], [24+i for i in range(4)]]
def acc(n, tt): return ACC + (n*4+tt)*4
def r4(b): return f"v[{b}:{b+3}]"
def r2(b): return f"v[{b}:{b+1}]"

def gelu_pairs(a, regs, t0, cpair0, cpair1, one, G=4):
    for k in range(0, len(regs), G):
        grp = regs[k:k+G]
        T = [t0 + 2*i for i in range(len(grp))]
        for x, t in zip(grp, T): a(f"v_pk_mul_f32 {r2(t)}, {r2(x)}, {r2(x)}")
        for x, t in zip(grp, T): a(f"v_pk_fma_f32 {r2(t)}, {r2(t)}, {r2(cpair1)}, {r2(cpair0)}")
        for x, t in zip(grp, T): a(f"v_pk_mul_f32 {r2(t)}, {r2(t)}, {r2(x)}")
        for x, t in zip(grp, T):
            a(f"v_exp_f32 v{t}, v{t}"); a(f"v_exp_f32 v{t+1}, v{t+1}")
        for x, t in zip(grp, T): a(f"v_pk_add_f32 {r2(t)}, {r2(t)}, {r2(one)}")
        for x, t in zip(grp, T):
            a(f"v_rcp_f32 v{t}, v{t}"); a(f"v_rcp_f32 v{t+1}, v{t+1}")
        for x, t in zip(grp, T): a(f"v_pk_mul_f32 {r2(x)}, {r2(x)}, {r2(t)}")

def build(cfg):
    a = Asm()
    L = lambda s: f"K1_{s}"
    FL = {0: '', 1: 'sc0 sc1', 2: 'sc1'}
    ST = FL[cfg.get('st1', 2)]
    XS = 'sc1'
    PSTEP = cfg.get('pstep', 10)
    a(f"s_cmp_ge_u32 s2, 256")
    a(f"s_cbranch_scc1 {L('end')}")
    ts = Stamper(a, cfg, 0)
    ts.init()
    for i in range(8): ts(i)
    a(f"s_load_dwordx4 s[4:7], s[0:1], {KA_X}")
    a(f"s_load_dwordx4 s[8:11], s[0:1], {KA_WIN}")
    a(f"s_load_dwordx4 s[12:15], s[0:1], {KA_DBG}")
    a(f"s_load_dwordx4 s[56:59], s[0:1], {KA_WOUT}")
    a(f"s_load_dwordx2 s[60:61], s[0:1], {KA_WO}")
    a("v_lshrrev_b32 v2, 6, v0")
    a("v_and_b32 v1, 63, v0")
    a("v_readfirstlane_b32 s20, v2")
    a("s_and_b32 s16, s2, 7")
    a("s_lshr_b32 s17, s2, 3")
    a("s_lshr_b32 s18, s16, 2")
    a("s_lshl_b32 s18, s18, 3")
    a("s_and_b32 s43, s16, 3")
    a("s_mul_i32 s44, s43, 30")
    a("s_add_u32 s44, s44, s17")
    a("s_lshr_b32 s19, s44, 3")
    a("s_and_b32 s44, s44, 7")
    a("s_lshl_b32 s43, s43, 1")
    a("s_add_u32 s43, s43, s17")
    a("s_sub_u32 s43, s43, 30")
    a("s_cmp_ge_u32 s17, 30")
    a("s_cselect_b32 s44, s43, s44")
    a("s_add_u32 s18, s18, s44")
    a("s_cmp_ge_u32 s17, 30")
    a(f"s_cbranch_scc1 {L('spare')}")
    a("s_cmp_lt_u32 s20, 4")
    a(f"s_cbranch_scc1 {L('compute')}")
    a(f"s_branch {L('loader')}") if not cfg.get('lfirst', 1) else None
    a.label(L('compute'))
    a("s_lshr_b32 s21, s20, 1")
    a("s_and_b32 s22, s20, 1")
    a("s_mul_i32 s43, s18, 14")
    a("s_add_u32 s43, s43, s19")
    a("s_lshl_b32 s43, s43, 11")
    a("s_lshl_b32 s44, s21, 10")
    a("s_add_u32 s43, s43, s44")
    a("s_lshl_b32 s44, s22, 3")
    a("s_add_u32 s43, s43, s44")
    a(f"s_add_u32 s62, s43, {WS_STAT}")
    a("v_and_b32 v2, 15, v1")
    a("v_lshrrev_b32 v3, 4, v1")
    a("v_lshrrev_b32 v4, 1, v2")
    a("v_xor_b32 v4, v4, v3")
    a("s_lshl_b32 s43, s21, 6")
    a("v_add_u32 v5, s43, v2")
    a("v_lshlrev_b32 v5, 7, v5")
    a(f"v_lshl_add_u32 v{XA[0]}, v4, 4, v5")
    a(f"v_xor_b32 v{XA[1]}, 64, v{XA[0]}")
    a("v_lshrrev_b32 v4, 2, v1")
    a("v_and_b32 v4, 7, v4")
    a("v_lshrrev_b32 v5, 5, v1")
    a("v_lshlrev_b32 v5, 11, v5")
    a("v_lshl_add_u32 v5, v4, 7, v5")
    a("v_lshrrev_b32 v4, 1, v4")
    a("v_lshl_add_u32 v5, v4, 5, v5")
    a("v_and_b32 v4, 3, v1")
    a("v_lshl_add_u32 v5, v4, 3, v5")
    a("s_and_b32 s48, s19, 1")
    a("s_lshl_b32 s48, s48, 1")
    a("s_mul_i32 s49, s22, 3")
    a("s_add_u32 s48, s48, s49")
    a("s_lshl_b32 s49, s22, 1")
    a("s_lshl_b32 s50, s22, 2")
    for n in range(7):
        if n < 2: a(f"s_add_u32 s43, s49, {n}"); a(f"s_add_u32 s44, s50, {n}")
        elif n < 4: a(f"s_add_u32 s43, s49, {4+n-2}"); a(f"s_add_u32 s44, s50, {n}")
        else: a(f"s_add_u32 s43, s48, {n-4}"); a(f"s_add_u32 s44, s49, {min(n-4,1)}")
        a("s_cmp_eq_u32 s19, 14")
        a("s_cselect_b32 s43, s44, s43")
        a("s_and_b32 s44, s43, 3")
        a("s_lshl_b32 s44, s44, 5")
        a("s_lshr_b32 s43, s43, 2")
        a("s_lshl_b32 s43, s43, 12")
        a("s_add_u32 s43, s43, 16384")
        a(f"v_xor_b32 v{WA[n]}, s44, v5")
        a(f"v_add_u32 v{WA[n]}, s43, v{WA[n]}")
    for r in range(ACC, ACC+112): a(f"v_mov_b32 v{r}, 0")
    def tiles(ph): return range(4) if ph == 0 else range(4, 7)
    def reads(ph, ks, buf):
        out = []
        for tt in range(4):
            out.append(f"ds_read_b128 {r4(X[buf]+4*tt)}, v{XA[ks]} offset:{tt*2048}")
        for q, n in enumerate(tiles(ph)):
            for s in range(2):
                out.append(f"ds_read_b64_tr_b16 {r2(W[buf]+4*q+2*s)}, v{WA[n]} offset:{ks*8192+s*1024}")
        return out
    def mfmas(ph, buf):
        if cfg.get('nomfma'): return ["s_nop 0"]*4
        return [f"v_mfma_f32_16x16x32_bf16 {r4(acc(n,tt))}, {r4(W[buf]+4*q)}, {r4(X[buf]+4*tt)}, {r4(acc(n,tt))}"
                for q, n in enumerate(tiles(ph)) for tt in range(4)]
    a("s_mov_b32 s40, 0")
    a("s_mov_b32 s41, 0")
    a("s_waitcnt lgkmcnt(0)")
    srd(a, 32, 14, WS_END)
    if cfg.get('l2w', 2) == 1:
        srd(a, 24, 4, 2048*1024)
        srd(a, 28, 6, 512*3072)
        a("s_lshl_b32 s43, s18, 7")
        a("s_and_b32 s44, s19, 3")
        a("s_lshl_b32 s44, s44, 5")
        a("s_add_u32 s43, s43, s44")
        a("s_lshl_b32 s44, s20, 3")
        a("s_add_u32 s43, s43, s44")
        a("s_lshl_b32 s43, s43, 10")
        a("s_and_b32 s44, s18, 7")
        a("s_add_u32 s44, s44, 4")
        a("s_lshl_b32 s44, s44, 7")
        a("v_and_b32 v2, 31, v1")
        a("v_lshlrev_b32 v2, 4, v2")
        a("v_add_u32 v2, s44, v2")
        a("v_and_b32 v2, 1023, v2")
        a("v_lshrrev_b32 v3, 5, v1")
        a("v_lshl_add_u32 v2, v3, 10, v2")
        for q in range(4):
            a(f"buffer_load_dwordx4 {r4(PK+4*q)}, v2, s[24:27], s43 offen offset:{(q%2)*2048}")
            if q == 1: a("s_add_u32 s43, s43, 4096")
        a("s_mul_i32 s44, s19, 3")
        a("s_lshr_b32 s44, s44, 1")
        a("s_lshl_b32 s44, s44, 7")
        a("s_cmp_eq_u32 s19, 14")
        a("s_cselect_b32 s44, 2816, s44")
        a("s_and_b32 s43, s18, 7")
        a("s_lshl_b32 s43, s43, 6")
        a("s_lshl_b32 s45, s20, 4")
        a("s_add_u32 s43, s43, s45")
        a("s_mul_i32 s43, s43, 3072")
        a("s_add_u32 s43, s43, s44")
        a("v_lshrrev_b32 v2, 4, v1")
        a("v_mul_u32_u24 v2, 3072, v2")
        a("v_and_b32 v3, 15, v1")
        a("v_lshl_add_u32 v2, v3, 4, v2")
        for q in range(4):
            a(f"buffer_load_dwordx4 {r4(PK+4*q)}, v2, s[28:31], s43 offen")
            if q < 3: a(f"s_add_u32 s43, s43, {4*3072}")
    ts(1)
    a("s_barrier")
    ts(2)
    for t in reads(0, 0, 0): a(t)
    def adv_addr(regs):
        return [f"v_add_u32 v{r}, s51, v{r}" for r in regs]
    def loop(ph):
        if cfg.get('tsc') == ph + 1:
            a("s_waitcnt lgkmcnt(0)")
            for it in range(8): loop_body(ph, it)
            return
        loop_body(ph, None)
    def loop_body(ph, it):
        lab = L(f'loop{ph}')
        if it is None:
            a("s_waitcnt lgkmcnt(0)")
            a.label(lab)
        else:
            a(f"s_memtime s[{64+2*it}:{65+2*it}]")
        if ph == 1:
            if it is None or it == cfg.get('h1it', 4):
                if cfg.get('h1it', 4) >= 0 and not cfg.get('z1k1', 0):
                    a("s_cmp_eq_u32 s40, s89")
                    a(f"s_cbranch_scc1 {L('h1blk')}")
                    a.label(L('h1back'))
            if it is None or it == PSTEP-4:
                a("s_cmp_eq_u32 s40, s62")
                a(f"s_cbranch_scc1 {L('zfin')}")
                a.label(L('zback'))
        sal = ["s_cmp_eq_u32 s41, %d" % (NSLOT-1), f"s_mov_b32 s51, {SLOT}", f"s_cselect_b32 s51, {(-(NSLOT-1)*SLOT) & 0xffffffff}, s51",
               "s_add_u32 s41, s41, 1", f"s_and_b32 s41, s41, {NSLOT-1}", "s_add_u32 s40, s40, 1"]
        for t in interleave(mfmas(ph, 0), reads(ph, 1, 1) + sal, per=cfg.get('k1per', 2)): a(t)
        a("s_waitcnt lgkmcnt(0)")
        a("s_barrier")
        rd = reads(ph, 0, 0)
        nW = len(list(tiles(ph)))
        fill = [f"v_add_u32 v{XA[0]}, s51, v{XA[0]}"] + rd[:4] + [f"v_add_u32 v{XA[1]}, s51, v{XA[1]}"]
        cur = list(tiles(ph)); oth = [n for n in range(7) if n not in cur]
        for q, n in enumerate(cur):
            fill.append(f"v_add_u32 v{WA[n]}, s51, v{WA[n]}")
            fill += rd[4+2*q:6+2*q]
        fill += adv_addr([WA[n] for n in oth])
        fill += ["s_cmp_lt_u32 s40, 8"]
        for t in interleave(mfmas(ph, 1), fill, per=cfg.get('k1per2', 3)): a(t)
        if ph == 0:
            pass
        a("s_waitcnt lgkmcnt(0)")
        if it is None: a(f"s_cbranch_scc1 {lab}")
    loop(0)
    def h1_store():
        a("s_lshl_b32 s43, s18, 2")
        a("s_lshl_b32 s44, s21, 1")
        a("s_add_u32 s43, s43, s44")
        a("s_mul_i32 s43, s43, 56")
        a("s_lshl_b32 s44, s19, 2")
        a("s_add_u32 s43, s43, s44")
        a("s_lshl_b32 s44, s22, 1")
        a("s_add_u32 s43, s43, s44")
        a("s_lshl_b32 s43, s43, 10")
        a(f"s_add_u32 s54, s43, {WS_H1}")
        a("v_lshlrev_b32 v5, 4, v1")
        for tp in range(2):
            for k, n in enumerate((2, 3)):
                t = PK + 8*tp + 4*k
                for e in range(2):
                    c = acc(n, 2*tp+e)
                    a(f"v_cvt_pk_bf16_f32 v{t+2*e}, v{c}, v{c+1}")
                    a(f"v_cvt_pk_bf16_f32 v{t+2*e+1}, v{c+2}, v{c+3}")
                if k == 0: a(f"s_add_u32 s43, s54, {tp*56*1024}")
                a(f"buffer_store_dwordx4 {r4(t)}, v5, s[32:35], s43 offen offset:{k*1024} {FL[cfg.get('sth1', 2)]}")
    if not cfg.get('tsc'): ts(3)
    a("v_and_b32 v2, 15, v1")
    a("v_lshrrev_b32 v3, 4, v1")
    for t in reads(1, 0, 0): a(t)
    a("s_waitcnt vmcnt(0)")
    a("s_cmp_eq_u32 s19, 14")
    a(f"s_cbranch_scc1 {L('pure_mid')}")
    a("s_lshl_b32 s43, s18, 2")
    a("v_mov_b32 v10, s43")
    a("global_load_dword v11, v10, s[12:13] sc1")
    Z1K1 = cfg.get('z1k1', 0)
    if Z1K1:
        a("s_lshl_b32 s47, s20, 12")
        a(f"s_add_u32 s47, s47, {EP+1024}")
        a("v_lshlrev_b32 v5, 4, v1")
        a("v_add_u32 v5, s47, v5")
        for tp in range(2):
            for k, n in enumerate((2, 3)):
                t = PK + 8*tp + 4*k
                for e in range(2):
                    c = acc(n, 2*tp+e)
                    a(f"v_cvt_pk_bf16_f32 v{t+2*e}, v{c}, v{c+1}")
                    a(f"v_cvt_pk_bf16_f32 v{t+2*e+1}, v{c+2}, v{c+3}")
                a(f"ds_write_b128 v5, {r4(t)} offset:{(tp*2+k)*1024}")
    CP0, CP1, ONE = 226, 228, 230
    for r in (CP0, CP0+1): a(f"v_mov_b32 v{r}, {hex(f2u(GELU_C0))}")
    for r in (CP1, CP1+1): a(f"v_mov_b32 v{r}, {hex(f2u(GELU_C1))}")
    for r in (ONE, ONE+1): a(f"v_mov_b32 v{r}, 1.0")
    zregs = [acc(n, tt) + 2*h for n in range(2) for tt in range(4) for h in range(2)]
    gelu_pairs(a, zregs, PK, CP0, CP1, ONE)
    T = PK
    for tt in range(4):
        z = [acc(0, tt), acc(0, tt)+2, acc(1, tt), acc(1, tt)+2]
        t = T + 6*tt
        a(f"v_pk_add_f32 {r2(t)}, {r2(z[0])}, {r2(z[1])}")
        a(f"v_pk_mul_f32 {r2(t+2)}, {r2(z[0])}, {r2(z[0])}")
        a(f"v_pk_add_f32 {r2(t+4)}, {r2(z[2])}, {r2(z[3])}")
        a(f"v_pk_fma_f32 {r2(t+2)}, {r2(z[1])}, {r2(z[1])}, {r2(t+2)}")
        a(f"v_pk_add_f32 {r2(t)}, {r2(t)}, {r2(t+4)}")
        a(f"v_pk_fma_f32 {r2(t+2)}, {r2(z[2])}, {r2(z[2])}, {r2(t+2)}")
        a(f"v_pk_fma_f32 {r2(t+2)}, {r2(z[3])}, {r2(z[3])}, {r2(t+2)}")
        a(f"v_add_f32 v{t}, v{t}, v{t+1}")
        a(f"v_add_f32 v{t+1}, v{t+2}, v{t+3}")
    V = lambda tt, c: T + 6*tt + c
    for c in range(2):
        a(f"v_permlane32_swap_b32 v{V(0,c)}, v{V(2,c)}")
        a(f"v_permlane32_swap_b32 v{V(1,c)}, v{V(3,c)}")
    for c in range(2):
        a(f"v_add_f32 v{V(0,c)}, v{V(0,c)}, v{V(2,c)}")
        a(f"v_add_f32 v{V(1,c)}, v{V(1,c)}, v{V(3,c)}")
    for c in range(2): a(f"v_permlane16_swap_b32 v{V(0,c)}, v{V(1,c)}")
    a(f"v_add_f32 v4, v{V(0,0)}, v{V(1,0)}")
    a(f"v_add_f32 v5, v{V(0,1)}, v{V(1,1)}")
    a("v_lshlrev_b32 v6, 4, v1")
    a("s_mov_b32 s88, 0")
    a.label(L('fchk'))
    a("s_waitcnt vmcnt(0)")
    a("v_readfirstlane_b32 s43, v11")
    a("s_cmp_lg_u32 s43, 0")
    a(f"s_cbranch_scc1 {L('fok')}")
    a("s_add_u32 s88, s88, 1")
    a("s_cmp_ge_u32 s88, 0x40000")
    a(f"s_cbranch_scc1 {L('fok')}")
    a("global_load_dword v11, v10, s[12:13] sc1")
    a(f"s_branch {L('fchk')}")
    a.label(L('fok'))
    a(f"buffer_store_dwordx2 v[4:5], v6, s[32:35], s62 offen {XS}")
    if not cfg.get('tsc'): ts(4)
    a(f"s_mov_b32 s62, {PSTEP-4}")
    H1IT = cfg.get('h1it', 4)
    if not Z1K1:
        if H1IT < 0:
            h1_store()
        else:
            a(f"s_mov_b32 s63x, {H1IT}".replace('s63x', 's89'))
    a(f"s_branch {L('phase1')}")
    a.label(L('pure_mid'))
    a("s_mov_b32 s62, 99")
    a("s_mov_b32 s89, 99")
    def vq():
        a("s_lshl_b32 s43, s18, 7")
        a("s_lshl_b32 s44, s21, 6")
        a("s_add_u32 s43, s43, s44")
        a("v_add_u32 v4, s43, v2")
        a("v_lshlrev_b32 v4, 5, v4")
        a("v_lshl_add_u32 v4, v3, 3, v4")
    def qkv_out(n, ct_sgpr_expr, T2):
        a("s_cmp_lt_u32 s45, 32")
        a(f"s_cselect_b32 s44, {hex(f2u(QSCALE))}, 1.0")
        a("s_lshl_b32 s43, s45, 16")
        if WS_QKV: a(f"s_add_u32 s43, s43, {WS_QKV}")
        a(f"v_mov_b32 v8, s44")
        a(f"v_mov_b32 v9, s44")
        for tt in range(4):
            c = acc(n, tt); t = T2 + 2*tt
            a(f"v_pk_mul_f32 {r2(c)}, {r2(c)}, v[8:9]")
            a(f"v_pk_mul_f32 {r2(c+2)}, {r2(c+2)}, v[8:9]")
            a(f"v_cvt_pk_bf16_f32 v{t}, v{c}, v{c+1}")
            a(f"v_cvt_pk_bf16_f32 v{t+1}, v{c+2}, v{c+3}")
            a(f"buffer_store_dwordx2 {r2(t)}, v4, s[32:35], s43 offen offset:{tt*512} {ST}")
    vq()
    for n in range(4):
        a("s_lshl_b32 s45, s22, 2")
        a(f"s_add_u32 s45, s45, {84+n}")
        qkv_out(n, None, PK + 8*(n % 3))
    a.label(L('phase1'))
    if cfg.get('pf', 2) == 7:
        srd(a, 24, 10, 2048*4096)
        a("s_lshr_b32 s43, s16, 1")
        a("s_lshl_b32 s43, s43, 21")
        a("s_lshl_b32 s44, s17, 16")
        a("s_add_u32 s43, s43, s44")
        a("s_and_b32 s44, s16, 1")
        a("s_lshl_b32 s44, s44, 11")
        a("s_add_u32 s43, s43, s44")
        a("s_lshl_b32 s44, s20, 14")
        a("s_add_u32 s43, s43, s44")
        a("v_lshlrev_b32 v8, 4, v1")
        for q in range(8):
            a(f"buffer_load_dwordx4 v[228:231], v8, s[24:27], s43 offen offset:{(q%2)*1024}")
            if q % 2 == 1: a("s_add_u32 s43, s43, 4096")
    a("s_mov_b32 s40, 0")
    loop(1)
    if not cfg.get('tsc'): ts(5)
    a("v_and_b32 v2, 15, v1")
    a("v_lshrrev_b32 v3, 4, v1")
    vq()
    a("s_cmp_eq_u32 s19, 14")
    a(f"s_cbranch_scc1 {L('pure_tail')}")
    a("s_mul_i32 s55, s19, 6")
    a("s_mul_i32 s44, s22, 3")
    a("s_add_u32 s55, s55, s44")
    for k in range(3):
        a(f"s_add_u32 s45, s55, {k}")
        qkv_out(4+k, None, W[0] + 8*k)
    a(f"s_branch {L('fin')}")
    if cfg.get('h1it', 4) >= 0 and not cfg.get('z1k1', 0):
        a.label(L('h1blk'))
        h1_store()
        a("s_mov_b32 s89, 99")
        a(f"s_branch {L('h1back')}")
    a.label(L('zfin'))
    ZS, ZT = 232, 240
    a("v_and_b32 v2, 15, v1")
    a("v_lshrrev_b32 v3, 4, v1")
    a("s_lshl_b32 s43, s21, 6")
    a("v_add_u32 v6, s43, v2")
    a("v_lshlrev_b32 v6, 3, v6")
    a(f"v_add_u32 v6, {EP}, v6")
    for tt in range(4): a(f"ds_read_b64 {r2(ZS+2*tt)}, v6 offset:{tt*128}")
    a("s_lshl_b32 s47, s20, 12")
    a(f"s_add_u32 s47, s47, {EP+1024}")
    a("v_lshlrev_b32 v6, 5, v2")
    a("v_lshl_add_u32 v6, v3, 3, v6")
    a("v_add_u32 v6, s47, v6")
    a("s_waitcnt lgkmcnt(0)")
    for n in range(2):
        for tt in range(4):
            c = acc(n, tt); mr, r = ZS+2*tt, ZS+2*tt+1
            for i in range(4): a(f"v_fma_f32 v{c+i}, v{c+i}, v{r}, v{mr}")
            t = PK + 2*(n*4+tt)
            a(f"v_cvt_pk_bf16_f32 v{t}, v{c}, v{c+1}")
            a(f"v_cvt_pk_bf16_f32 v{t+1}, v{c+2}, v{c+3}")
            a(f"ds_write_b64 v6, {r2(t)} offset:{n*2048+tt*512}")
    a("v_lshlrev_b32 v6, 3, v2")
    a("v_lshl_add_u32 v6, v3, 8, v6")
    a("v_add_u32 v6, s47, v6")
    a("s_lshl_b32 s43, s19, 2")
    a("s_lshl_b32 s44, s22, 1")
    a("s_add_u32 s43, s43, s44")
    a("s_lshl_b32 s43, s43, 16")
    a("s_lshl_b32 s44, s18, 2")
    a("s_lshl_b32 s45, s21, 1")
    a("s_add_u32 s44, s44, s45")
    a("s_lshl_b32 s44, s44, 10")
    a("s_add_u32 s43, s43, s44")
    a(f"s_add_u32 s46, s43, {WS_Z2N}")
    a("s_add_u32 s47, s46, 65536")
    a("v_lshlrev_b32 v7, 4, v1")
    a("s_waitcnt lgkmcnt(0)")
    for n in range(2):
        for kk in range(2):
            for sx in range(2):
                a(f"ds_read_b64_tr_b16 {r2(ZT+4*(n*2+kk)+2*sx)}, v6 offset:{n*2048+kk*1024+sx*128}")
    for n in range(2):
        for kk in range(2):
            a(f"s_waitcnt lgkmcnt({6-2*(n*2+kk)})")
            a(f"buffer_store_dwordx4 {r4(ZT+4*(n*2+kk))}, v7, s[32:35], {'s46' if n==0 else 's47'} offen offset:{kk*1024} {FL[cfg.get('stz', 2)]}")
    a("s_mov_b32 s62, 99")
    a(f"s_branch {L('zback')}")
    a.label(L('pure_tail'))
    for k in range(2):
        a("s_lshl_b32 s45, s22, 1")
        a(f"s_add_u32 s45, s45, {92+k}")
        qkv_out(4+k, None, W[0] + 8*k)
    a(f"s_branch {L('fin')}")
    a.label(L('loader'))
    if cfg.get('lprio', 1): a(f"s_setprio {cfg.get('lprio', 1)}")
    a("s_sub_u32 s20, s20, 4")
    ts.role(1)
    a("s_lshr_b32 s21, s20, 1")
    a("s_and_b32 s22, s20, 1")
    a("s_lshl_b32 s43, s19, 7")
    a("s_cmp_eq_u32 s21, 0")
    a("s_cselect_b32 s44, 1792, 0")
    a("s_add_u32 s43, s43, s44")
    a("s_lshl_b32 s44, s21, 7")
    a("s_add_u32 s44, s44, 2688")
    a("s_mul_i32 s45, s19, 3")
    a("s_lshr_b32 s45, s45, 1")
    a("s_add_u32 s45, s45, s21")
    a("s_lshl_b32 s45, s45, 7")
    a("s_cmp_eq_u32 s19, 14")
    a("s_cselect_b32 s43, s44, s43")
    a("s_cselect_b32 s45, 2944, s45")
    a("s_movk_i32 s36, 3584")
    a("s_cselect_b32 s36, 3072, s36")
    a("s_cselect_b32 s46, 0, 1")
    a("v_lshrrev_b32 v2, 3, v1")
    a("v_and_b32 v3, 7, v1")
    a("v_lshrrev_b32 v4, 1, v2")
    a("s_lshl_b32 s44, s18, 7")
    a("s_lshl_b32 s47, s20, 5")
    a("s_add_u32 s44, s44, s47")
    a("v_add_u32 v5, s44, v2")
    a("v_lshlrev_b32 v5, 10, v5")
    a("v_xor_b32 v6, v3, v4")
    a("v_xor_b32 v7, 4, v6")
    a("v_lshl_add_u32 v6, v6, 4, v5")
    a("v_lshl_add_u32 v7, v7, 4, v5")
    a(f"v_mov_b32 v{VX[0]}, v6")
    a(f"v_add_u32 v{VX[1]}, 7168, v7")
    a(f"v_add_u32 v{VX[2]}, {2*7168}, v6")
    a(f"v_add_u32 v{VX[3]}, {3*7168}, v7")
    a("v_and_b32 v5, 3, v2")
    a("v_lshrrev_b32 v6, 2, v2")
    a("v_lshl_add_u32 v5, v6, 3, v5")
    a("v_lshlrev_b32 v6, 1, v4")
    a("v_xor_b32 v6, v3, v6")
    a("v_lshlrev_b32 v6, 4, v6")
    a("s_lshl_b32 s48, s22, 5")
    a("v_add_u32 v5, s48, v5")
    def vw_setup(ph):
        st = 's36' if ph == 0 else 's37'
        if ph == 1: a("s_movk_i32 s37, 3072")
        a(f"v_mul_lo_u32 v7, v12, {st}")
        a("v_add_u32 v7, v7, v13")
        for b in range(4):
            h, s = b >> 1, b & 1
            a(f"s_mul_i32 s92, {st}, {16*h+4*s}")
            a(f"s_sub_u32 s92, s92, {b*1024}")
            a(f"v_add_u32 v{VW[ph][b]}, s92, v7")
    a("v_mov_b32 v12, v5")
    a("v_mov_b32 v13, v6")
    a("s_mov_b32 s93, s45")
    vw_setup(0)
    a("s_lshl_b32 s47, s20, 12")
    a("s_lshl_b32 s48, s22, 13")
    a("s_lshl_b32 s49, s21, 12")
    a("s_add_u32 s48, s48, s49")
    a("s_add_u32 s48, s48, 16384")
    a("s_cmp_eq_u32 s46, 1")
    a("s_waitcnt lgkmcnt(0)")
    a("s_cselect_b32 s28, s8, s6")
    a("s_cselect_b32 s29, s9, s7")
    a("s_add_u32 s28, s28, s43")
    a("s_addc_u32 s29, s29, 0")
    a("s_lshl_b32 s30, s36, 9")
    a("s_sub_u32 s30, s30, s43")
    a("s_mov_b32 s31, 0x20000")
    srd(a, 84, 4, 2048*1024)
    def late_setup():
        vw_setup(1)
        a("s_add_u32 s24, s6, s93")
        a("s_addc_u32 s25, s7, 0")
        a(f"s_mov_b32 s26, {512*3072}")
        a("s_sub_u32 s26, s26, s93")
        a("s_mov_b32 s27, 0x20000")
        srd(a, 32, 14, WS_END)
    LD = cfg.get('ld1', '')
    XR = cfg.get('xreuse', 1)
    def koff(s_): return s_ if s_ < 8 else ((s_-4 if s_ < 12 else s_-12) if XR else s_-8)
    def hasx(s_): return not (XR and 8 <= s_ < 12)
    def nins(s_): return 8 if hasx(s_) else 4
    def prep(s_):
        ph = s_ >> 3; base = (s_ % NSLOT)*SLOT
        a(f"s_add_u32 s45, s23, {koff(s_)}")
        a("s_and_b32 s45, s45, 7")
        a("s_lshl_b32 s46, s45, 7")
        a(f"s_mul_i32 s44, s45, {'s38' if ph == 0 else 's39'}")
        if cfg.get('nodma'): a("s_mov_b32 s46, 0x7ff00000"); a("s_mov_b32 s44, 0x7ff00000")
        a(f"s_add_u32 s49, s48, {base}")
        if hasx(s_): a(f"s_add_u32 m0, s47, {base}")
        else: a("s_mov_b32 m0, s49")
    def fire(s_):
        ph = s_ >> 3
        if hasx(s_):
            for i in range(4): a(f"buffer_load_dwordx4 v{VX[i]}, s[84:87], s46 offen offset:{i*1024} {LD} lds")
            a("s_mov_b32 m0, s49")
        S = 's[28:31]' if ph == 0 else 's[24:27]'
        for b in range(4): a(f"buffer_load_dwordx4 v{VW[ph][b]}, {S}, s44 offen offset:{b*1024} {LD} lds")
    class LQ:
        def __init__(self, q=None): self.q = list(q or [])
        def add(self, kind, key, n): self.q.append((kind, key, n))
        def allowed(self, step, also=()):
            idx = max([k for k, e in enumerate(self.q) if (e[0] == 'D' and e[1] <= step) or e[0] in also], default=-1)
            return sum(e[2] for e in self.q[idx+1:])
        def copy(self): return LQ(self.q)
    lq = LQ()
    a("s_lshl_b32 s38, s36, 6")
    a(f"s_mov_b32 s39, {64*3072}")
    rot = cfg.get('k1rot', 1)
    if rot == 0: a("s_mov_b32 s23, 0")
    elif rot == 1: a("s_and_b32 s23, s18, 7")
    elif rot == 2: a("s_and_b32 s23, s18, 1"); a("s_lshl_b32 s23, s23, 2")
    elif rot == 3: a("s_and_b32 s23, s18, 3"); a("s_lshl_b32 s23, s23, 1")
    elif rot == 4: a("s_mov_b32 s23, s16")
    elif rot == 5:
        a("s_and_b32 s23, s16, 3"); a("s_lshl_b32 s23, s23, 1"); a("s_lshr_b32 s43, s16, 2"); a("s_add_u32 s23, s23, s43")
    elif rot == 6:
        a("s_and_b32 s23, s18, 1"); a("s_lshl_b32 s23, s23, 2"); a("s_add_u32 s23, s23, s16")
    elif rot == 7:
        a("s_and_b32 s23, s18, 7"); a("s_lshl_b32 s43, s16, 1"); a("s_add_u32 s23, s23, s43")
    for st_ in (0, 1):
        prep(st_); fire(st_); lq.add('D', st_, 8)
    late_setup()
    ts(1)
    prep(2)
    a(f"s_waitcnt vmcnt({lq.allowed(0)})")
    a("s_barrier")
    ts(2)
    fire(2); lq.add('D', 2, 8)
    prep(3); fire(3); lq.add('D', 3, 8)
    NW = 0
    if cfg.get('l2w', 2) == 2:
        NW = 8
        lq.add('W', 0, 8)
        a("s_lshl_b32 s43, s18, 7")
        a("s_and_b32 s44, s19, 3")
        a("s_lshl_b32 s44, s44, 5")
        a("s_add_u32 s43, s43, s44")
        a("s_lshl_b32 s44, s20, 3")
        a("s_add_u32 s43, s43, s44")
        a("s_lshl_b32 s43, s43, 10")
        a("s_add_u32 s44, s23, 4")
        a("s_lshl_b32 s44, s44, 7")
        a("v_and_b32 v2, 31, v1")
        a("v_lshlrev_b32 v2, 4, v2")
        a("v_add_u32 v2, s44, v2")
        a("v_and_b32 v2, 1023, v2")
        a("v_lshrrev_b32 v3, 5, v1")
        a("v_lshl_add_u32 v2, v3, 10, v2")
        for q in range(4):
            a(f"buffer_load_dwordx4 {r4(32+4*q)}, v2, s[84:87], s43 offen offset:{(q%2)*2048}")
            if q == 1: a("s_add_u32 s43, s43, 4096")
        a("s_mul_i32 s44, s19, 3")
        a("s_lshr_b32 s44, s44, 1")
        a("s_lshl_b32 s44, s44, 7")
        a("s_cmp_eq_u32 s19, 14")
        a("s_cselect_b32 s44, 2816, s44")
        a("s_and_b32 s43, s18, 7")
        a("s_lshl_b32 s43, s43, 6")
        a("s_lshl_b32 s45, s20, 4")
        a("s_add_u32 s43, s43, s45")
        a("s_mul_i32 s43, s43, 3072")
        a("s_add_u32 s43, s43, s44")
        srd(a, 80, 6, 512*3072)
        a("v_lshrrev_b32 v2, 4, v1")
        a("v_mul_u32_u24 v2, 3072, v2")
        a("v_and_b32 v3, 15, v1")
        a("v_lshl_add_u32 v2, v3, 4, v2")
        for q in range(4):
            a(f"buffer_load_dwordx4 {r4(48+4*q)}, v2, s[80:83], s43 offen")
            if q < 3: a(f"s_add_u32 s43, s43, {4*3072}")
    PF3 = cfg.get('pf', 2) == 3
    if PF3:
        srd(a, 92, 10, 2048*4096)
        a("s_lshr_b32 s90, s16, 1")
        a("s_lshl_b32 s90, s90, 21")
        a("s_lshl_b32 s43, s17, 16")
        a("s_add_u32 s90, s90, s43")
        a("s_lshl_b32 s43, s20, 14")
        a("s_add_u32 s90, s90, s43")
        a("v_lshlrev_b32 v8, 4, v1")
    for b in range(8):
        prep(b+4)
        a(f"s_waitcnt vmcnt({lq.allowed(b+1)})")
        if cfg.get('tsl') and b < 4: ts(3 + b)
        a("s_barrier")
        fire(b+4); lq.add('D', b+4, nins(b+4))
        if PF3 and b >= 4:
            for q in range(4): a(f"buffer_load_dwordx4 {r4(64+4*q)}, v8, s[92:95], s90 offen offset:{q*1024}")
            a("s_add_u32 s90, s90, 4096")
            lq.add('F', 0, 4)
    a("s_cmp_eq_u32 s19, 14")
    a(f"s_cbranch_scc1 {L('lpure')}")
    a("s_lshl_b32 s43, s20, 12")
    a(f"s_add_u32 s43, s43, {EP+1024}")
    a("v_lshlrev_b32 v5, 4, v1")
    a("v_add_u32 v6, s43, v5")
    HP, HC, HT = 32, 48, 80
    C0, C1, C2 = 90, 92, 94
    for r in (C0, C0+1): a(f"v_mov_b32 v{r}, {hex(f2u(GELU_C0))}")
    for r in (C1, C1+1): a(f"v_mov_b32 v{r}, {hex(f2u(GELU_C1))}")
    for r in (C2, C2+1): a(f"v_mov_b32 v{r}, 1.0")
    a("s_lshl_b32 s43, s18, 2")
    a("s_lshl_b32 s44, s21, 1")
    a("s_add_u32 s43, s43, s44")
    a("s_mul_i32 s43, s43, 56")
    a("s_lshl_b32 s44, s19, 2")
    a("s_add_u32 s43, s43, s44")
    a("s_lshl_b32 s44, s22, 1")
    a("s_add_u32 s43, s43, s44")
    a("s_lshl_b32 s43, s43, 10")
    a(f"s_add_u32 s52, s43, {WS_H1}")
    a(f"s_add_u32 s53, s52, {56*1024}")
    def z1_block(q):
        if not Z1K1: return
        a(f"ds_read_b128 {r4(HP)}, v6 offset:{q*1024}")
        a("s_waitcnt lgkmcnt(0)")
        for e in range(4):
            a(f"v_lshlrev_b32 v{HC+2*e}, 16, v{HP+e}")
            a(f"v_and_b32 v{HC+2*e+1}, 0xffff0000, v{HP+e}")
        gelu_pairs(a, [HC+2*e for e in range(4)], HT, C0, C1, C2, G=4)
        t = HP + 4 + 4*(q % 2)
        for e in range(4): a(f"v_cvt_pk_bf16_f32 v{t+e}, v{HC+2*e}, v{HC+2*e+1}")
        a(f"buffer_store_dwordx4 {r4(t)}, v5, s[32:35], {'s52' if q < 2 else 's53'} offen offset:{(q%2)*1024} {FL[cfg.get('sth1', 2)]}")
    a("s_cmp_lt_u32 s20, 2")
    a(f"s_cbranch_scc1 {L('lx')}")
    l2 = lq.copy()
    for b in (8, 9, 10, 11):
        prep(b+4)
        a(f"s_waitcnt vmcnt({l2.allowed(b+1)})")
        a("s_barrier")
        fire(b+4); l2.add('D', b+4, nins(b+4))
        z1_block(b-8)
        if Z1K1: l2.add('S', 0, 1)
    a(f"s_branch {L('lb12m')}")
    a.label(L('lpure'))
    l3 = lq.copy()
    for b in (8, 9, 10, 11):
        prep(b+4)
        a(f"s_waitcnt vmcnt({l3.allowed(b+1)})")
        a("s_barrier")
        fire(b+4); l3.add('D', b+4, nins(b+4))
    a.label(L('lb12m'))
    PFN = {2: 8, 4: 4, 5: 2, 6: 4}.get(cfg.get('pf', 2), 0)
    PF6 = cfg.get('pf', 2) == 6
    if PF6:
        srd(a, 80, 10, 2048*4096)
        a("s_lshr_b32 s43, s16, 1")
        a("s_lshl_b32 s43, s43, 21")
        a("s_lshl_b32 s44, s17, 16")
        a("s_add_u32 s43, s43, s44")
        a("s_and_b32 s44, s16, 1")
        a("s_lshl_b32 s44, s44, 11")
        a("s_add_u32 s43, s43, s44")
        a("s_and_b32 s44, s20, 1")
        a("s_lshl_b32 s44, s44, 15")
        a("s_add_u32 s43, s43, s44")
        a("v_and_b32 v8, 63, v1")
        a("v_lshlrev_b32 v8, 4, v8")
        if cfg.get('k2rotmode', 5) in (9, 10, 11):
            mul = {9: 4, 10: 2, 11: 1}[cfg['k2rotmode']]
            a("s_lshr_b32 s44, s17, 2")
            a(f"s_mul_i32 s44, s44, {mul*128}")
            a("s_and_b32 s45, s16, 1")
            a("s_lshl_b32 s45, s45, 11")
            a("s_sub_u32 s43, s43, s45")
            a("s_add_u32 s44, s44, s45")
            a("v_add_u32 v9, s44, v8")
            a("v_and_b32 v8, 4095, v9")
            a("v_add_u32 v9, 1024, v9")
            a("v_and_b32 v9, 4095, v9")
    elif PFN == 2:
        srd(a, 80, 10, 2048*4096)
        a("s_lshl_b32 s43, s2, 14")
        a("s_and_b32 s44, s20, 1")
        a("s_lshl_b32 s44, s44, 13")
        a("s_add_u32 s43, s43, s44")
        a(f"s_add_u32 s43, s43, {4<<20}")
        a("v_lshlrev_b32 v8, 4, v1")
    elif PFN:
        srd(a, 80, 10, 2048*4096)
        a("s_lshr_b32 s43, s16, 1")
        a("s_lshl_b32 s43, s43, 21")
        a("s_lshl_b32 s44, s17, 16")
        a("s_add_u32 s43, s43, s44")
        if PFN == 8:
            a("s_and_b32 s44, s20, 1")
            a("s_lshl_b32 s44, s44, 15")
        else:
            a("s_and_b32 s44, s16, 1")
            a("s_lshl_b32 s44, s44, 15")
            a("s_add_u32 s43, s43, s44")
            a("s_and_b32 s44, s20, 1")
            a("s_lshl_b32 s44, s44, 14")
        a("s_add_u32 s43, s43, s44")
        a("v_lshlrev_b32 v8, 4, v1")
    def pf_batch():
        if PF6:
            wrap = cfg.get('k2rotmode', 5) in (9, 10, 11)
            for q in range(4):
                if wrap: a(f"buffer_load_dwordx4 {r4(64+4*q)}, v{8+(q%2)}, s[80:83], s43 offen")
                else: a(f"buffer_load_dwordx4 {r4(64+4*q)}, v8, s[80:83], s43 offen offset:{(q%2)*1024}")
                if q % 2 == 1: a("s_add_u32 s43, s43, 4096")
            return
        for q in range(PFN):
            a(f"buffer_load_dwordx4 {r4(64+4*q)}, v8, s[80:83], s43 offen offset:{(q%4)*1024}")
            if q % 4 == 3 or q == PFN-1: a(f"s_add_u32 s43, s43, {1024*min(4, PFN)}")
    a("s_waitcnt vmcnt(16)")
    a("s_barrier")
    pf_batch()
    a(f"s_waitcnt vmcnt({8+PFN})")
    a("s_barrier")
    pf_batch()
    a(f"s_waitcnt vmcnt({2*PFN})")
    a("s_barrier")
    pf_batch()
    a("s_barrier")
    pf_batch()
    if cfg.get('xw', 0):
        a(f"s_mul_i32 s43, s2, {cfg['xw']*1024}")
        a(f"s_add_u32 s43, s43, 0x2000000")
        a(f"s_mov_b32 s90, s14"); a("s_mov_b32 s91, s15")
        a("s_mov_b32 s92, 0x8000000"); a("s_mov_b32 s93, 0x20000")
        a("s_mov_b32 s88, s14"); a("s_mov_b32 s89, s15"); a("s_mov_b32 s90, 0x8000000"); a("s_mov_b32 s91, 0x20000")
        a("s_and_b32 s44, s20, 1")
        a(f"s_mul_i32 s44, s44, {cfg['xw']*512}")
        a("s_add_u32 s43, s43, s44")
        for q in range(cfg['xw']//2):
            a(f"buffer_store_dwordx4 v[64:67], v8, s[88:91], s43 offen offset:{(q%4)*1024} {'sc1' if cfg.get('xwsc',1) else ''}")
            if q % 4 == 3: a("s_add_u32 s43, s43, 4096")
    if cfg.get('pfwait', 1): a("s_waitcnt vmcnt(0)")
    a(f"s_branch {L('fin2') if not cfg.get('pfwait', 1) else L('fin')}")
    a.label(L('lx'))
    a("s_lshl_b32 s43, s20, 6")
    a("v_add_u32 v9, s43, v1")
    a("v_lshlrev_b32 v7, 4, v9")
    a("s_mul_i32 s54, s18, 28672")
    a(f"s_add_u32 s54, s54, {WS_STAT}")
    a("s_mov_b32 s88, 0")
    P = 96
    def poll_loads():
        a("s_mov_b32 s43, s54")
        for q in range(14):
            if q % 2 == 0 and q: a("s_add_u32 s43, s43, 4096")
            a(f"buffer_load_dwordx4 {r4(P+4*q)}, v7, s[32:35], s43 offen offset:{(q%2)*2048} {XS}")
    l1 = lq.copy()
    for b in range(8, PSTEP+3):
        if b+4 < 16: prep(b+4)
        a(f"s_waitcnt vmcnt({l1.allowed(b+1)})")
        a("s_barrier")
        if b+4 < 16:
            fire(b+4); l1.add('D', b+4, nins(b+4))
        if b == PSTEP:
            poll_loads(); l1.add('P', 0, 14)
        if b < 12:
            z1_block(b-8)
            if Z1K1: l1.add('S', 0, 1)
    if not cfg.get('tsl'): ts(3)
    a(f"s_waitcnt vmcnt({l1.allowed(PSTEP+4, also=('P',))})")
    a(f"s_branch {L('pchk1')}")
    a.label(L('pchk'))
    a("s_waitcnt vmcnt(0)")
    a.label(L('pchk1'))
    a(f"v_max_u32 v10, v{P}, v{P+1}")
    for q in range(2, 56, 2): a(f"v_max3_u32 v10, v10, v{P+q}, v{P+q+1}")
    a("v_cmp_eq_u32 vcc, -1, v10")
    a("s_add_u32 s88, s88, 1")
    a("s_cmp_ge_u32 s88, 0x20000")
    a(f"s_cbranch_scc1 {L('polled')}")
    a(f"s_cbranch_vccz {L('polled')}")
    poll_loads()
    a(f"s_branch {L('pchk')}")
    a.label(L('polled'))
    if not cfg.get('tsl'): ts(5)
    if ts.on: a("s_mov_b32 s62, s88")
    for q in range(1, 28): a(f"v_pk_add_f32 {r2(P)}, {r2(P)}, {r2(P+2*q)}")
    m, e2 = P, P+1
    a(f"v_mul_f32 v{m}, {hex(f2u(1.0/896))}, v{m}")
    a(f"v_mul_f32 v{e2}, {hex(f2u(1.0/896))}, v{e2}")
    a(f"v_fma_f32 v{e2}, -v{m}, v{m}, v{e2}")
    a(f"v_max_f32 v{e2}, 0, v{e2}")
    a(f"v_add_f32 v{e2}, {hex(f2u(1e-5))}, v{e2}")
    a(f"v_rsq_f32 v{e2}, v{e2}")
    a(f"v_mul_f32 v{m}, v{m}, v{e2}")
    a(f"v_sub_f32 v{m}, 0, v{m}")
    a("v_lshlrev_b32 v7, 3, v9")
    a(f"v_add_u32 v7, {EP}, v7")
    a(f"ds_write_b64 v7, {r2(m)}")
    a("s_waitcnt lgkmcnt(0)")
    a("s_barrier")
    for b in range(PSTEP+4, 16):
        if b+1 <= 15: a("s_waitcnt vmcnt(0)" if b+1 == 15 else f"s_waitcnt vmcnt({8*(15-(b+1))})")
        a("s_barrier")
    a(f"s_branch {L('fin')}")
    a.label(L('spare'))
    a("s_waitcnt lgkmcnt(0)")
    srd(a, 32, 14, WS_END)
    a("s_mul_i32 s43, s18, 28672")
    a("s_lshl_b32 s44, s20, 10")
    a("s_add_u32 s43, s43, s44")
    a(f"s_add_u32 s43, s43, {WS_STAT}")
    a("v_lshlrev_b32 v2, 4, v1")
    for r in range(4, 8): a(f"v_mov_b32 v{r}, -1")
    for q in range(3):
        a("buffer_store_dwordx4 v[4:7], v2, s[32:35], s43 offen sc1")
        a("s_add_u32 s43, s43, 8192")
    a("s_cmp_lt_u32 s20, 4")
    a(f"s_cbranch_scc0 {L('rs3')}")
    a("buffer_store_dwordx4 v[4:7], v2, s[32:35], s43 offen sc1")
    a.label(L('rs3'))
    if cfg.get('fuse', 1):
        lab = L('zf')
        a("s_cmp_eq_u32 s18, 0")
        a(f"s_cbranch_scc0 {lab}")
        a("s_cmp_ge_u32 s20, 5")
        a(f"s_cbranch_scc0 {lab}")
        a("s_sub_u32 s43, s20, 5")
        a("s_lshl_b32 s43, s43, 10")
        a(f"s_add_u32 s43, s43, {WS_FLAG}")
        for r in range(4, 8): a(f"v_mov_b32 v{r}, 0")
        a("buffer_store_dwordx4 v[4:7], v2, s[32:35], s43 offen sc1")
        a.label(lab)
    a("s_waitcnt vmcnt(0)")
    a("s_barrier")
    a("s_cmp_eq_u32 s20, 0")
    a(f"s_cbranch_scc0 {L('rs4')}")
    a("s_lshl_b32 s43, s18, 2")
    a("v_mov_b32 v2, s43")
    a("v_mov_b32 v3, 1")
    a("s_mov_b64 s[52:53], exec")
    a("s_mov_b64 exec, 1")
    a("global_store_dword v2, v3, s[12:13] sc1")
    a("s_mov_b64 exec, s[52:53]")
    a.label(L('rs4'))
    if cfg.get('cpf', 1):
        a("s_and_b32 s43, s17, 1")
        a("s_lshl_b32 s43, s43, 3")
        a("s_add_u32 s43, s43, s20")
        code_prefetch(a, 'gm_k1_kernel', 'gm_code_end', 's43', 3, 'k1', vtmp=200)
    a("s_lshl_b32 s18, s18, 7")
    a("s_lshl_b32 s43, s20, 4")
    a("s_add_u32 s18, s18, s43")
    srd(a, 24, 4, 2048*1024)
    srd(a, 28, 58, 1024)
    srd(a, 32, 14, WS_END)
    a("v_and_b32 v2, 15, v1")
    a("v_lshrrev_b32 v3, 4, v1")
    a("v_lshlrev_b32 v4, 4, v2")
    for q in range(4): a(f"buffer_load_dwordx4 {r4(16+4*q)}, v4, s[28:31], 0 offen offset:{256*q}")
    a("v_add_u32 v5, s18, v3")
    a("v_lshl_add_u32 v5, v5, 10, v4")
    for it in range(4):
        for q in range(4): a(f"buffer_load_dwordx4 {r4(64+16*it+4*q)}, v5, s[24:27], 0 offen offset:{256*q}")
        a("v_add_u32 v5, 4096, v5")
    a("v_add_u32 v6, s18, v3")
    a("v_lshlrev_b32 v6, 2, v6")
    npf2 = 0
    for it in range(4):
        a(f"s_waitcnt vmcnt({4*(3-it)+npf2})")
        b = 64+16*it
        a(f"v_dot2_f32_bf16 v8, v{b}, v16, 0")
        for r in range(1, 16): a(f"v_dot2_f32_bf16 v8, v{b+r}, v{16+r}, v8")
        a("s_nop 2")
        for sh in ('row_shr:8', 'row_shr:4', 'row_shr:2', 'row_shr:1'):
            a(f"v_add_f32_dpp v8, v8, v8 {sh} row_mask:0xf bank_mask:0xf bound_ctrl:1")
        a(f"v_mul_f32 v8, {hex(f2u(-LOG2E))}, v8")
        a("v_exp_f32 v8, v8")
        a("v_add_f32 v8, 1.0, v8")
        a("v_rcp_f32 v8, v8")
        a(f"v_mov_b32 v{32+it}, v8")
    a("v_cmp_eq_u32 s[52:53], 15, v2")
    a("s_mov_b64 s[54:55], exec")
    a("s_and_b64 exec, exec, s[52:53]")
    a(f"s_mov_b32 s51, {WS_G}")
    for it in range(4):
        a(f"buffer_store_dword v{32+it}, v6, s[32:35], s51 offen offset:{16*it}")
    a("s_mov_b64 exec, s[54:55]")
    if cfg.get('pf', 1):
        a("s_lshr_b32 s48, s18, 4")
        a("v_lshlrev_b32 v9, 4, v1")
        srd(a, 36, 60, 512*1024)
        srd(a, 44, 56, 896*1024)
        a("s_lshl_b32 s49, s48, 12")
        for q in range(4): a(f"buffer_load_dwordx4 {r4(128+4*q)}, v9, s[36:39], s49 offen offset:{q*1024}")
        a("s_mul_i32 s49, s48, 7168")
        for q in range(7):
            if q == 4: a("s_add_u32 s49, s49, 4096")
            a(f"buffer_load_dwordx4 {r4(144+4*q)}, v9, s[44:47], s49 offen offset:{(q%4)*1024}")
        srd(a, 80, 10, 2048*4096)
        if cfg.get('pf', 2) == 5:
            a("s_lshl_b32 s43, s48, 15")
            a("s_mov_b32 s50, 0")
            a.label(L('pfl'))
            for q in range(8):
                a(f"buffer_load_dwordx4 {r4(64+4*q)}, v9, s[80:83], s43 offen offset:{(q%4)*1024}")
                if q % 4 == 3: a("s_add_u32 s43, s43, 4096")
            a("s_waitcnt vmcnt(24)")
            a("s_add_u32 s50, s50, 1")
            a("s_cmp_lt_u32 s50, 4")
            a(f"s_cbranch_scc1 {L('pfl')}")
            a("s_lshl_b32 s43, s2, 14")
            a("s_lshl_b32 s44, s20, 11")
            a("s_add_u32 s43, s43, s44")
            a(f"s_add_u32 s43, s43, {4<<20}")
            for q in range(2): a(f"buffer_load_dwordx4 {r4(64+4*q)}, v9, s[80:83], s43 offen offset:{q*1024}")
        else:
            a("s_lshr_b32 s43, s16, 1")
            a("s_lshl_b32 s43, s43, 21")
            a("s_lshl_b32 s44, s17, 16")
            a("s_add_u32 s43, s43, s44")
            a("s_lshl_b32 s44, s20, 13")
            a("s_add_u32 s43, s43, s44")
            for q in range(8):
                a(f"buffer_load_dwordx4 {r4(64+4*q)}, v9, s[80:83], s43 offen offset:{(q%4)*1024}")
                if q == 3: a("s_add_u32 s43, s43, 4096")
        a("s_waitcnt vmcnt(0)")
    a.label(L('fin'))
    if ts.on: a("s_waitcnt vmcnt(0)")
    if not cfg.get('tsc'): ts(7)
    ts.flush()
    a.label(L('fin2'))
    a.label(L('end'))
    a("s_endpgm")
    if cfg.get('lfirst', 1):
        pos = {i.text.strip()[:-1]: k for k, i in enumerate(a.items) if i.cls == 'label'}
        c0, l0, s0 = pos[L('compute')], pos[L('loader')], pos[L('spare')]
        a.items = a.items[:c0] + a.items[l0:s0] + a.items[c0:l0] + a.items[s0:]
    a.check_protected(list(range(4, 16)) + list(range(56, 62)))
    n = a.fix_hazards()
    return a, n
```

```python
from asmlib import *
from common import *

NAME = 'gm_k1_kernel'
SLOT = 32768
NSLOT = 4
EP = NSLOT*SLOT
LDS_BYTES = EP + 1024 + 16384
GRID = 256
BLOCK = 512
VGPRS = 256
HUGE = 0x7ff00000
SENT = 0xffffffff

ACC = 16
X = [128, 144]
W = [160, 176]
XA = [216, 217]
WA = [218+i for i in range(7)]
PK = 192
VX = [16+i for i in range(4)]
VW = [[20+i for i in range(4)], [24+i for i in range(4)]]
def acc(n, tt): return ACC + (n*4+tt)*4
def r4(b): return f"v[{b}:{b+3}]"
def r2(b): return f"v[{b}:{b+1}]"

def gelu_pairs(a, regs, t0, cpair0, cpair1, one, G=4):
    for k in range(0, len(regs), G):
        grp = regs[k:k+G]
        T = [t0 + 2*i for i in range(len(grp))]
        for x, t in zip(grp, T): a(f"v_pk_mul_f32 {r2(t)}, {r2(x)}, {r2(x)}")
        for x, t in zip(grp, T): a(f"v_pk_fma_f32 {r2(t)}, {r2(t)}, {r2(cpair1)}, {r2(cpair0)}")
        for x, t in zip(grp, T): a(f"v_pk_mul_f32 {r2(t)}, {r2(t)}, {r2(x)}")
        for x, t in zip(grp, T):
            a(f"v_exp_f32 v{t}, v{t}"); a(f"v_exp_f32 v{t+1}, v{t+1}")
        for x, t in zip(grp, T): a(f"v_pk_add_f32 {r2(t)}, {r2(t)}, {r2(one)}")
        for x, t in zip(grp, T):
            a(f"v_rcp_f32 v{t}, v{t}"); a(f"v_rcp_f32 v{t+1}, v{t+1}")
        for x, t in zip(grp, T): a(f"v_pk_mul_f32 {r2(x)}, {r2(x)}, {r2(t)}")

def build(cfg):
    a = Asm()
    L = lambda s: f"K1_{s}"
    FL = {0: '', 1: 'sc0 sc1', 2: 'sc1'}
    ST = FL[cfg.get('st1', 2)]
    XS = 'sc1'
    PSTEP = cfg.get('pstep', 10)
    a(f"s_cmp_ge_u32 s2, 256")
    a(f"s_cbranch_scc1 {L('end')}")
    ts = Stamper(a, cfg, 0)
    ts.init()
    for i in range(8): ts(i)
    a(f"s_load_dwordx4 s[4:7], s[0:1], {KA_X}")
    a(f"s_load_dwordx4 s[8:11], s[0:1], {KA_WIN}")
    a(f"s_load_dwordx4 s[12:15], s[0:1], {KA_DBG}")
    a(f"s_load_dwordx4 s[56:59], s[0:1], {KA_WOUT}")
    a(f"s_load_dwordx2 s[60:61], s[0:1], {KA_WO}")
    a("v_lshrrev_b32 v2, 6, v0")
    a("v_and_b32 v1, 63, v0")
    a("v_readfirstlane_b32 s20, v2")
    a("s_and_b32 s16, s2, 7")
    a("s_lshr_b32 s17, s2, 3")
    a("s_lshr_b32 s18, s16, 2")
    a("s_lshl_b32 s18, s18, 3")
    a("s_and_b32 s43, s16, 3")
    a("s_mul_i32 s44, s43, 30")
    a("s_add_u32 s44, s44, s17")
    a("s_lshr_b32 s19, s44, 3")
    a("s_and_b32 s44, s44, 7")
    a("s_lshl_b32 s43, s43, 1")
    a("s_add_u32 s43, s43, s17")
    a("s_sub_u32 s43, s43, 30")
    a("s_cmp_ge_u32 s17, 30")
    a("s_cselect_b32 s44, s43, s44")
    a("s_add_u32 s18, s18, s44")
    a("s_cmp_ge_u32 s17, 30")
    a(f"s_cbranch_scc1 {L('spare')}")
    a("s_cmp_lt_u32 s20, 4")
    a(f"s_cbranch_scc1 {L('compute')}")
    a(f"s_branch {L('loader')}") if not cfg.get('lfirst', 1) else None
    a.label(L('compute'))
    a("s_lshr_b32 s21, s20, 1")
    a("s_and_b32 s22, s20, 1")
    a("s_mul_i32 s43, s18, 14")
    a("s_add_u32 s43, s43, s19")
    a("s_lshl_b32 s43, s43, 11")
    a("s_lshl_b32 s44, s21, 10")
    a("s_add_u32 s43, s43, s44")
    a("s_lshl_b32 s44, s22, 3")
    a("s_add_u32 s43, s43, s44")
    a(f"s_add_u32 s62, s43, {WS_STAT}")
    a("v_and_b32 v2, 15, v1")
    a("v_lshrrev_b32 v3, 4, v1")
    a("v_lshrrev_b32 v4, 1, v2")
    a("v_xor_b32 v4, v4, v3")
    a("s_lshl_b32 s43, s21, 6")
    a("v_add_u32 v5, s43, v2")
    a("v_lshlrev_b32 v5, 7, v5")
    a(f"v_lshl_add_u32 v{XA[0]}, v4, 4, v5")
    a(f"v_xor_b32 v{XA[1]}, 64, v{XA[0]}")
    a("v_lshrrev_b32 v4, 2, v1")
    a("v_and_b32 v4, 7, v4")
    a("v_lshrrev_b32 v5, 5, v1")
    a("v_lshlrev_b32 v5, 11, v5")
    a("v_lshl_add_u32 v5, v4, 7, v5")
    a("v_lshrrev_b32 v4, 1, v4")
    a("v_lshl_add_u32 v5, v4, 5, v5")
    a("v_and_b32 v4, 3, v1")
    a("v_lshl_add_u32 v5, v4, 3, v5")
    a("s_and_b32 s48, s19, 1")
    a("s_lshl_b32 s48, s48, 1")
    a("s_mul_i32 s49, s22, 3")
    a("s_add_u32 s48, s48, s49")
    a("s_lshl_b32 s49, s22, 1")
    a("s_lshl_b32 s50, s22, 2")
    for n in range(7):
        if n < 2: a(f"s_add_u32 s43, s49, {n}"); a(f"s_add_u32 s44, s50, {n}")
        elif n < 4: a(f"s_add_u32 s43, s49, {4+n-2}"); a(f"s_add_u32 s44, s50, {n}")
        else: a(f"s_add_u32 s43, s48, {n-4}"); a(f"s_add_u32 s44, s49, {min(n-4,1)}")
        a("s_cmp_eq_u32 s19, 14")
        a("s_cselect_b32 s43, s44, s43")
        a("s_and_b32 s44, s43, 3")
        a("s_lshl_b32 s44, s44, 5")
        a("s_lshr_b32 s43, s43, 2")
        a("s_lshl_b32 s43, s43, 12")
        a("s_add_u32 s43, s43, 16384")
        a(f"v_xor_b32 v{WA[n]}, s44, v5")
        a(f"v_add_u32 v{WA[n]}, s43, v{WA[n]}")
    for r in range(ACC, ACC+112): a(f"v_mov_b32 v{r}, 0")
    def tiles(ph): return range(4) if ph == 0 else range(4, 7)
    def reads(ph, ks, buf):
        out = []
        for tt in range(4):
            out.append(f"ds_read_b128 {r4(X[buf]+4*tt)}, v{XA[ks]} offset:{tt*2048}")
        for q, n in enumerate(tiles(ph)):
            for s in range(2):
                out.append(f"ds_read_b64_tr_b16 {r2(W[buf]+4*q+2*s)}, v{WA[n]} offset:{ks*8192+s*1024}")
        return out
    def mfmas(ph, buf):
        if cfg.get('nomfma'): return ["s_nop 0"]*4
        return [f"v_mfma_f32_16x16x32_bf16 {r4(acc(n,tt))}, {r4(W[buf]+4*q)}, {r4(X[buf]+4*tt)}, {r4(acc(n,tt))}"
                for q, n in enumerate(tiles(ph)) for tt in range(4)]
    a("s_mov_b32 s40, 0")
    a("s_mov_b32 s41, 0")
    a("s_waitcnt lgkmcnt(0)")
    srd(a, 32, 14, WS_END)
    if cfg.get('l2w', 2) == 1:
        srd(a, 24, 4, 2048*1024)
        srd(a, 28, 6, 512*3072)
        a("s_lshl_b32 s43, s18, 7")
        a("s_and_b32 s44, s19, 3")
        a("s_lshl_b32 s44, s44, 5")
        a("s_add_u32 s43, s43, s44")
        a("s_lshl_b32 s44, s20, 3")
        a("s_add_u32 s43, s43, s44")
        a("s_lshl_b32 s43, s43, 10")
        a("s_and_b32 s44, s18, 7")
        a("s_add_u32 s44, s44, 4")
        a("s_lshl_b32 s44, s44, 7")
        a("v_and_b32 v2, 31, v1")
        a("v_lshlrev_b32 v2, 4, v2")
        a("v_add_u32 v2, s44, v2")
        a("v_and_b32 v2, 1023, v2")
        a("v_lshrrev_b32 v3, 5, v1")
        a("v_lshl_add_u32 v2, v3, 10, v2")
        for q in range(4):
            a(f"buffer_load_dwordx4 {r4(PK+4*q)}, v2, s[24:27], s43 offen offset:{(q%2)*2048}")
            if q == 1: a("s_add_u32 s43, s43, 4096")
        a("s_mul_i32 s44, s19, 3")
        a("s_lshr_b32 s44, s44, 1")
        a("s_lshl_b32 s44, s44, 7")
        a("s_cmp_eq_u32 s19, 14")
        a("s_cselect_b32 s44, 2816, s44")
        a("s_and_b32 s43, s18, 7")
        a("s_lshl_b32 s43, s43, 6")
        a("s_lshl_b32 s45, s20, 4")
        a("s_add_u32 s43, s43, s45")
        a("s_mul_i32 s43, s43, 3072")
        a("s_add_u32 s43, s43, s44")
        a("v_lshrrev_b32 v2, 4, v1")
        a("v_mul_u32_u24 v2, 3072, v2")
        a("v_and_b32 v3, 15, v1")
        a("v_lshl_add_u32 v2, v3, 4, v2")
        for q in range(4):
            a(f"buffer_load_dwordx4 {r4(PK+4*q)}, v2, s[28:31], s43 offen")
            if q < 3: a(f"s_add_u32 s43, s43, {4*3072}")
    ts(1)
    a("s_barrier")
    ts(2)
    for t in reads(0, 0, 0): a(t)
    def adv_addr(regs):
        return [f"v_add_u32 v{r}, s51, v{r}" for r in regs]
    def loop(ph):
        if cfg.get('tsc') == ph + 1:
            a("s_waitcnt lgkmcnt(0)")
            for it in range(8): loop_body(ph, it)
            return
        loop_body(ph, None)
    def loop_body(ph, it):
        lab = L(f'loop{ph}')
        if it is None:
            a("s_waitcnt lgkmcnt(0)")
            a.label(lab)
        else:
            a(f"s_memtime s[{64+2*it}:{65+2*it}]")
        if ph == 1:
            if it is None or it == cfg.get('h1it', 4):
                if cfg.get('h1it', 4) >= 0 and not cfg.get('z1k1', 0):
                    a("s_cmp_eq_u32 s40, s89")
                    a(f"s_cbranch_scc1 {L('h1blk')}")
                    a.label(L('h1back'))
            if it is None or it == PSTEP-4:
                a("s_cmp_eq_u32 s40, s62")
                a(f"s_cbranch_scc1 {L('zfin')}")
                a.label(L('zback'))
        sal = ["s_cmp_eq_u32 s41, %d" % (NSLOT-1), f"s_mov_b32 s51, {SLOT}", f"s_cselect_b32 s51, {(-(NSLOT-1)*SLOT) & 0xffffffff}, s51",
               "s_add_u32 s41, s41, 1", f"s_and_b32 s41, s41, {NSLOT-1}", "s_add_u32 s40, s40, 1"]
        for t in interleave(mfmas(ph, 0), reads(ph, 1, 1) + sal, per=cfg.get('k1per', 2)): a(t)
        a("s_waitcnt lgkmcnt(0)")
        a("s_barrier")
        rd = reads(ph, 0, 0)
        nW = len(list(tiles(ph)))
        fill = [f"v_add_u32 v{XA[0]}, s51, v{XA[0]}"] + rd[:4] + [f"v_add_u32 v{XA[1]}, s51, v{XA[1]}"]
        cur = list(tiles(ph)); oth = [n for n in range(7) if n not in cur]
        for q, n in enumerate(cur):
            fill.append(f"v_add_u32 v{WA[n]}, s51, v{WA[n]}")
            fill += rd[4+2*q:6+2*q]
        fill += adv_addr([WA[n] for n in oth])
        fill += ["s_cmp_lt_u32 s40, 8"]
        for t in interleave(mfmas(ph, 1), fill, per=cfg.get('k1per2', 3)): a(t)
        if ph == 0:
            pass
        a("s_waitcnt lgkmcnt(0)")
        if it is None: a(f"s_cbranch_scc1 {lab}")
    loop(0)
    def h1_store():
        a("s_lshl_b32 s43, s18, 2")
        a("s_lshl_b32 s44, s21, 1")
        a("s_add_u32 s43, s43, s44")
        a("s_mul_i32 s43, s43, 56")
        a("s_lshl_b32 s44, s19, 2")
        a("s_add_u32 s43, s43, s44")
        a("s_lshl_b32 s44, s22, 1")
        a("s_add_u32 s43, s43, s44")
        a("s_lshl_b32 s43, s43, 10")
        a(f"s_add_u32 s54, s43, {WS_H1}")
        a("v_lshlrev_b32 v5, 4, v1")
        for tp in range(2):
            for k, n in enumerate((2, 3)):
                t = PK + 8*tp + 4*k
                for e in range(2):
                    c = acc(n, 2*tp+e)
                    a(f"v_cvt_pk_bf16_f32 v{t+2*e}, v{c}, v{c+1}")
                    a(f"v_cvt_pk_bf16_f32 v{t+2*e+1}, v{c+2}, v{c+3}")
                if k == 0: a(f"s_add_u32 s43, s54, {tp*56*1024}")
                a(f"buffer_store_dwordx4 {r4(t)}, v5, s[32:35], s43 offen offset:{k*1024} {FL[cfg.get('sth1', 2)]}")
    if not cfg.get('tsc'): ts(3)
    a("v_and_b32 v2, 15, v1")
    a("v_lshrrev_b32 v3, 4, v1")
    for t in reads(1, 0, 0): a(t)
    a("s_waitcnt vmcnt(0)")
    a("s_cmp_eq_u32 s19, 14")
    a(f"s_cbranch_scc1 {L('pure_mid')}")
    a("s_lshl_b32 s43, s18, 2")
    a("v_mov_b32 v10, s43")
    a("global_load_dword v11, v10, s[12:13] sc1")
    Z1K1 = cfg.get('z1k1', 0)
    if Z1K1:
        a("s_lshl_b32 s47, s20, 12")
        a(f"s_add_u32 s47, s47, {EP+1024}")
        a("v_lshlrev_b32 v5, 4, v1")
        a("v_add_u32 v5, s47, v5")
        for tp in range(2):
            for k, n in enumerate((2, 3)):
                t = PK + 8*tp + 4*k
                for e in range(2):
                    c = acc(n, 2*tp+e)
                    a(f"v_cvt_pk_bf16_f32 v{t+2*e}, v{c}, v{c+1}")
                    a(f"v_cvt_pk_bf16_f32 v{t+2*e+1}, v{c+2}, v{c+3}")
                a(f"ds_write_b128 v5, {r4(t)} offset:{(tp*2+k)*1024}")
    CP0, CP1, ONE = 226, 228, 230
    for r in (CP0, CP0+1): a(f"v_mov_b32 v{r}, {hex(f2u(GELU_C0))}")
    for r in (CP1, CP1+1): a(f"v_mov_b32 v{r}, {hex(f2u(GELU_C1))}")
    for r in (ONE, ONE+1): a(f"v_mov_b32 v{r}, 1.0")
    zregs = [acc(n, tt) + 2*h for n in range(2) for tt in range(4) for h in range(2)]
    gelu_pairs(a, zregs, PK, CP0, CP1, ONE)
    T = PK
    for tt in range(4):
        z = [acc(0, tt), acc(0, tt)+2, acc(1, tt), acc(1, tt)+2]
        t = T + 6*tt
        a(f"v_pk_add_f32 {r2(t)}, {r2(z[0])}, {r2(z[1])}")
        a(f"v_pk_mul_f32 {r2(t+2)}, {r2(z[0])}, {r2(z[0])}")
        a(f"v_pk_add_f32 {r2(t+4)}, {r2(z[2])}, {r2(z[3])}")
        a(f"v_pk_fma_f32 {r2(t+2)}, {r2(z[1])}, {r2(z[1])}, {r2(t+2)}")
        a(f"v_pk_add_f32 {r2(t)}, {r2(t)}, {r2(t+4)}")
        a(f"v_pk_fma_f32 {r2(t+2)}, {r2(z[2])}, {r2(z[2])}, {r2(t+2)}")
        a(f"v_pk_fma_f32 {r2(t+2)}, {r2(z[3])}, {r2(z[3])}, {r2(t+2)}")
        a(f"v_add_f32 v{t}, v{t}, v{t+1}")
        a(f"v_add_f32 v{t+1}, v{t+2}, v{t+3}")
    V = lambda tt, c: T + 6*tt + c
    for c in range(2):
        a(f"v_permlane32_swap_b32 v{V(0,c)}, v{V(2,c)}")
        a(f"v_permlane32_swap_b32 v{V(1,c)}, v{V(3,c)}")
    for c in range(2):
        a(f"v_add_f32 v{V(0,c)}, v{V(0,c)}, v{V(2,c)}")
        a(f"v_add_f32 v{V(1,c)}, v{V(1,c)}, v{V(3,c)}")
    for c in range(2): a(f"v_permlane16_swap_b32 v{V(0,c)}, v{V(1,c)}")
    a(f"v_add_f32 v4, v{V(0,0)}, v{V(1,0)}")
    a(f"v_add_f32 v5, v{V(0,1)}, v{V(1,1)}")
    a("v_lshlrev_b32 v6, 4, v1")
    a("s_mov_b32 s88, 0")
    a.label(L('fchk'))
    a("s_waitcnt vmcnt(0)")
    a("v_readfirstlane_b32 s43, v11")
    a("s_cmp_lg_u32 s43, 0")
    a(f"s_cbranch_scc1 {L('fok')}")
    a("s_add_u32 s88, s88, 1")
    a("s_cmp_ge_u32 s88, 0x40000")
    a(f"s_cbranch_scc1 {L('fok')}")
    a("global_load_dword v11, v10, s[12:13] sc1")
    a(f"s_branch {L('fchk')}")
    a.label(L('fok'))
    a(f"buffer_store_dwordx2 v[4:5], v6, s[32:35], s62 offen {XS}")
    if not cfg.get('tsc'): ts(4)
    a(f"s_mov_b32 s62, {PSTEP-4}")
    H1IT = cfg.get('h1it', 4)
    if not Z1K1:
        if H1IT < 0:
            h1_store()
        else:
            a(f"s_mov_b32 s63x, {H1IT}".replace('s63x', 's89'))
    a(f"s_branch {L('phase1')}")
    a.label(L('pure_mid'))
    a("s_mov_b32 s62, 99")
    a("s_mov_b32 s89, 99")
    def vq():
        a("s_lshl_b32 s43, s18, 7")
        a("s_lshl_b32 s44, s21, 6")
        a("s_add_u32 s43, s43, s44")
        a("v_add_u32 v4, s43, v2")
        a("v_lshlrev_b32 v4, 5, v4")
        a("v_lshl_add_u32 v4, v3, 3, v4")
    def qkv_out(n, ct_sgpr_expr, T2):
        a("s_cmp_lt_u32 s45, 32")
        a(f"s_cselect_b32 s44, {hex(f2u(QSCALE))}, 1.0")
        a("s_lshl_b32 s43, s45, 16")
        if WS_QKV: a(f"s_add_u32 s43, s43, {WS_QKV}")
        a(f"v_mov_b32 v8, s44")
        a(f"v_mov_b32 v9, s44")
        for tt in range(4):
            c = acc(n, tt); t = T2 + 2*tt
            a(f"v_pk_mul_f32 {r2(c)}, {r2(c)}, v[8:9]")
            a(f"v_pk_mul_f32 {r2(c+2)}, {r2(c+2)}, v[8:9]")
            a(f"v_cvt_pk_bf16_f32 v{t}, v{c}, v{c+1}")
            a(f"v_cvt_pk_bf16_f32 v{t+1}, v{c+2}, v{c+3}")
            a(f"buffer_store_dwordx2 {r2(t)}, v4, s[32:35], s43 offen offset:{tt*512} {ST}")
    vq()
    for n in range(4):
        a("s_lshl_b32 s45, s22, 2")
        a(f"s_add_u32 s45, s45, {84+n}")
        qkv_out(n, None, PK + 8*(n % 3))
    a.label(L('phase1'))
    if cfg.get('pf', 2) == 7:
        srd(a, 24, 10, 2048*4096)
        a("s_lshr_b32 s43, s16, 1")
        a("s_lshl_b32 s43, s43, 21")
        a("s_lshl_b32 s44, s17, 16")
        a("s_add_u32 s43, s43, s44")
        a("s_and_b32 s44, s16, 1")
        a("s_lshl_b32 s44, s44, 11")
        a("s_add_u32 s43, s43, s44")
        a("s_lshl_b32 s44, s20, 14")
        a("s_add_u32 s43, s43, s44")
        a("v_lshlrev_b32 v8, 4, v1")
        for q in range(8):
            a(f"buffer_load_dwordx4 v[228:231], v8, s[24:27], s43 offen offset:{(q%2)*1024}")
            if q % 2 == 1: a("s_add_u32 s43, s43, 4096")
    a("s_mov_b32 s40, 0")
    loop(1)
    if not cfg.get('tsc'): ts(5)
    a("v_and_b32 v2, 15, v1")
    a("v_lshrrev_b32 v3, 4, v1")
    vq()
    a("s_cmp_eq_u32 s19, 14")
    a(f"s_cbranch_scc1 {L('pure_tail')}")
    a("s_mul_i32 s55, s19, 6")
    a("s_mul_i32 s44, s22, 3")
    a("s_add_u32 s55, s55, s44")
    for k in range(3):
        a(f"s_add_u32 s45, s55, {k}")
        qkv_out(4+k, None, W[0] + 8*k)
    a(f"s_branch {L('fin')}")
    if cfg.get('h1it', 4) >= 0 and not cfg.get('z1k1', 0):
        a.label(L('h1blk'))
        h1_store()
        a("s_mov_b32 s89, 99")
        a(f"s_branch {L('h1back')}")
    a.label(L('zfin'))
    ZS, ZT = 232, 240
    a("v_and_b32 v2, 15, v1")
    a("v_lshrrev_b32 v3, 4, v1")
    a("s_lshl_b32 s43, s21, 6")
    a("v_add_u32 v6, s43, v2")
    a("v_lshlrev_b32 v6, 3, v6")
    a(f"v_add_u32 v6, {EP}, v6")
    for tt in range(4): a(f"ds_read_b64 {r2(ZS+2*tt)}, v6 offset:{tt*128}")
    a("s_lshl_b32 s47, s20, 12")
    a(f"s_add_u32 s47, s47, {EP+1024}")
    a("v_lshlrev_b32 v6, 5, v2")
    a("v_lshl_add_u32 v6, v3, 3, v6")
    a("v_add_u32 v6, s47, v6")
    a("s_waitcnt lgkmcnt(0)")
    for n in range(2):
        for tt in range(4):
            c = acc(n, tt); mr, r = ZS+2*tt, ZS+2*tt+1
            for i in range(4): a(f"v_fma_f32 v{c+i}, v{c+i}, v{r}, v{mr}")
            t = PK + 2*(n*4+tt)
            a(f"v_cvt_pk_bf16_f32 v{t}, v{c}, v{c+1}")
            a(f"v_cvt_pk_bf16_f32 v{t+1}, v{c+2}, v{c+3}")
            a(f"ds_write_b64 v6, {r2(t)} offset:{n*2048+tt*512}")
    a("v_lshlrev_b32 v6, 3, v2")
    a("v_lshl_add_u32 v6, v3, 8, v6")
    a("v_add_u32 v6, s47, v6")
    a("s_lshl_b32 s43, s19, 2")
    a("s_lshl_b32 s44, s22, 1")
    a("s_add_u32 s43, s43, s44")
    a("s_lshl_b32 s43, s43, 16")
    a("s_lshl_b32 s44, s18, 2")
    a("s_lshl_b32 s45, s21, 1")
    a("s_add_u32 s44, s44, s45")
    a("s_lshl_b32 s44, s44, 10")
    a("s_add_u32 s43, s43, s44")
    a(f"s_add_u32 s46, s43, {WS_Z2N}")
    a("s_add_u32 s47, s46, 65536")
    a("v_lshlrev_b32 v7, 4, v1")
    a("s_waitcnt lgkmcnt(0)")
    for n in range(2):
        for kk in range(2):
            for sx in range(2):
                a(f"ds_read_b64_tr_b16 {r2(ZT+4*(n*2+kk)+2*sx)}, v6 offset:{n*2048+kk*1024+sx*128}")
    for n in range(2):
        for kk in range(2):
            a(f"s_waitcnt lgkmcnt({6-2*(n*2+kk)})")
            a(f"buffer_store_dwordx4 {r4(ZT+4*(n*2+kk))}, v7, s[32:35], {'s46' if n==0 else 's47'} offen offset:{kk*1024} {FL[cfg.get('stz', 2)]}")
    a("s_mov_b32 s62, 99")
    a(f"s_branch {L('zback')}")
    a.label(L('pure_tail'))
    for k in range(2):
        a("s_lshl_b32 s45, s22, 1")
        a(f"s_add_u32 s45, s45, {92+k}")
        qkv_out(4+k, None, W[0] + 8*k)
    a(f"s_branch {L('fin')}")
    a.label(L('loader'))
    if cfg.get('lprio', 1): a(f"s_setprio {cfg.get('lprio', 1)}")
    a("s_sub_u32 s20, s20, 4")
    ts.role(1)
    a("s_lshr_b32 s21, s20, 1")
    a("s_and_b32 s22, s20, 1")
    a("s_lshl_b32 s43, s19, 7")
    a("s_cmp_eq_u32 s21, 0")
    a("s_cselect_b32 s44, 1792, 0")
    a("s_add_u32 s43, s43, s44")
    a("s_lshl_b32 s44, s21, 7")
    a("s_add_u32 s44, s44, 2688")
    a("s_mul_i32 s45, s19, 3")
    a("s_lshr_b32 s45, s45, 1")
    a("s_add_u32 s45, s45, s21")
    a("s_lshl_b32 s45, s45, 7")
    a("s_cmp_eq_u32 s19, 14")
    a("s_cselect_b32 s43, s44, s43")
    a("s_cselect_b32 s45, 2944, s45")
    a("s_movk_i32 s36, 3584")
    a("s_cselect_b32 s36, 3072, s36")
    a("s_cselect_b32 s46, 0, 1")
    a("v_lshrrev_b32 v2, 3, v1")
    a("v_and_b32 v3, 7, v1")
    a("v_lshrrev_b32 v4, 1, v2")
    a("s_lshl_b32 s44, s18, 7")
    a("s_lshl_b32 s47, s20, 5")
    a("s_add_u32 s44, s44, s47")
    a("v_add_u32 v5, s44, v2")
    a("v_lshlrev_b32 v5, 10, v5")
    a("v_xor_b32 v6, v3, v4")
    a("v_xor_b32 v7, 4, v6")
    a("v_lshl_add_u32 v6, v6, 4, v5")
    a("v_lshl_add_u32 v7, v7, 4, v5")
    a(f"v_mov_b32 v{VX[0]}, v6")
    a(f"v_add_u32 v{VX[1]}, 7168, v7")
    a(f"v_add_u32 v{VX[2]}, {2*7168}, v6")
    a(f"v_add_u32 v{VX[3]}, {3*7168}, v7")
    a("v_and_b32 v5, 3, v2")
    a("v_lshrrev_b32 v6, 2, v2")
    a("v_lshl_add_u32 v5, v6, 3, v5")
    a("v_lshlrev_b32 v6, 1, v4")
    a("v_xor_b32 v6, v3, v6")
    a("v_lshlrev_b32 v6, 4, v6")
    a("s_lshl_b32 s48, s22, 5")
    a("v_add_u32 v5, s48, v5")
    def vw_setup(ph):
        st = 's36' if ph == 0 else 's37'
        if ph == 1: a("s_movk_i32 s37, 3072")
        a(f"v_mul_lo_u32 v7, v12, {st}")
        a("v_add_u32 v7, v7, v13")
        for b in range(4):
            h, s = b >> 1, b & 1
            a(f"s_mul_i32 s92, {st}, {16*h+4*s}")
            a(f"s_sub_u32 s92, s92, {b*1024}")
            a(f"v_add_u32 v{VW[ph][b]}, s92, v7")
    a("v_mov_b32 v12, v5")
    a("v_mov_b32 v13, v6")
    a("s_mov_b32 s93, s45")
    vw_setup(0)
    a("s_lshl_b32 s47, s20, 12")
    a("s_lshl_b32 s48, s22, 13")
    a("s_lshl_b32 s49, s21, 12")
    a("s_add_u32 s48, s48, s49")
    a("s_add_u32 s48, s48, 16384")
    a("s_cmp_eq_u32 s46, 1")
    a("s_waitcnt lgkmcnt(0)")
    a("s_cselect_b32 s28, s8, s6")
    a("s_cselect_b32 s29, s9, s7")
    a("s_add_u32 s28, s28, s43")
    a("s_addc_u32 s29, s29, 0")
    a("s_lshl_b32 s30, s36, 9")
    a("s_sub_u32 s30, s30, s43")
    a("s_mov_b32 s31, 0x20000")
    srd(a, 84, 4, 2048*1024)
    def late_setup():
        vw_setup(1)
        a("s_add_u32 s24, s6, s93")
        a("s_addc_u32 s25, s7, 0")
        a(f"s_mov_b32 s26, {512*3072}")
        a("s_sub_u32 s26, s26, s93")
        a("s_mov_b32 s27, 0x20000")
        srd(a, 32, 14, WS_END)
    LD = cfg.get('ld1', '')
    XR = cfg.get('xreuse', 1)
    def koff(s_): return s_ if s_ < 8 else ((s_-4 if s_ < 12 else s_-12) if XR else s_-8)
    def hasx(s_): return not (XR and 8 <= s_ < 12)
    def nins(s_): return 8 if hasx(s_) else 4
    def prep(s_):
        ph = s_ >> 3; base = (s_ % NSLOT)*SLOT
        a(f"s_add_u32 s45, s23, {koff(s_)}")
        a("s_and_b32 s45, s45, 7")
        a("s_lshl_b32 s46, s45, 7")
        a(f"s_mul_i32 s44, s45, {'s38' if ph == 0 else 's39'}")
        if cfg.get('nodma'): a("s_mov_b32 s46, 0x7ff00000"); a("s_mov_b32 s44, 0x7ff00000")
        a(f"s_add_u32 s49, s48, {base}")
        if hasx(s_): a(f"s_add_u32 m0, s47, {base}")
        else: a("s_mov_b32 m0, s49")
    def fire(s_):
        ph = s_ >> 3
        if hasx(s_):
            for i in range(4): a(f"buffer_load_dwordx4 v{VX[i]}, s[84:87], s46 offen offset:{i*1024} {LD} lds")
            a("s_mov_b32 m0, s49")
        S = 's[28:31]' if ph == 0 else 's[24:27]'
        for b in range(4): a(f"buffer_load_dwordx4 v{VW[ph][b]}, {S}, s44 offen offset:{b*1024} {LD} lds")
    class LQ:
        def __init__(self, q=None): self.q = list(q or [])
        def add(self, kind, key, n): self.q.append((kind, key, n))
        def allowed(self, step, also=()):
            idx = max([k for k, e in enumerate(self.q) if (e[0] == 'D' and e[1] <= step) or e[0] in also], default=-1)
            return sum(e[2] for e in self.q[idx+1:])
        def copy(self): return LQ(self.q)
    lq = LQ()
    a("s_lshl_b32 s38, s36, 6")
    a(f"s_mov_b32 s39, {64*3072}")
    rot = cfg.get('k1rot', 1)
    if rot == 0: a("s_mov_b32 s23, 0")
    elif rot == 1: a("s_and_b32 s23, s18, 7")
    elif rot == 2: a("s_and_b32 s23, s18, 1"); a("s_lshl_b32 s23, s23, 2")
    elif rot == 3: a("s_and_b32 s23, s18, 3"); a("s_lshl_b32 s23, s23, 1")
    elif rot == 4: a("s_mov_b32 s23, s16")
    elif rot == 5:
        a("s_and_b32 s23, s16, 3"); a("s_lshl_b32 s23, s23, 1"); a("s_lshr_b32 s43, s16, 2"); a("s_add_u32 s23, s23, s43")
    elif rot == 6:
        a("s_and_b32 s23, s18, 1"); a("s_lshl_b32 s23, s23, 2"); a("s_add_u32 s23, s23, s16")
    elif rot == 7:
        a("s_and_b32 s23, s18, 7"); a("s_lshl_b32 s43, s16, 1"); a("s_add_u32 s23, s23, s43")
    for st_ in (0, 1):
        prep(st_); fire(st_); lq.add('D', st_, 8)
    late_setup()
    ts(1)
    prep(2)
    a(f"s_waitcnt vmcnt({lq.allowed(0)})")
    a("s_barrier")
    ts(2)
    fire(2); lq.add('D', 2, 8)
    prep(3); fire(3); lq.add('D', 3, 8)
    NW = 0
    if cfg.get('l2w', 2) == 2:
        NW = 8
        lq.add('W', 0, 8)
        a("s_lshl_b32 s43, s18, 7")
        a("s_and_b32 s44, s19, 3")
        a("s_lshl_b32 s44, s44, 5")
        a("s_add_u32 s43, s43, s44")
        a("s_lshl_b32 s44, s20, 3")
        a("s_add_u32 s43, s43, s44")
        a("s_lshl_b32 s43, s43, 10")
        a("s_add_u32 s44, s23, 4")
        a("s_lshl_b32 s44, s44, 7")
        a("v_and_b32 v2, 31, v1")
        a("v_lshlrev_b32 v2, 4, v2")
        a("v_add_u32 v2, s44, v2")
        a("v_and_b32 v2, 1023, v2")
        a("v_lshrrev_b32 v3, 5, v1")
        a("v_lshl_add_u32 v2, v3, 10, v2")
        for q in range(4):
            a(f"buffer_load_dwordx4 {r4(32+4*q)}, v2, s[84:87], s43 offen offset:{(q%2)*2048}")
            if q == 1: a("s_add_u32 s43, s43, 4096")
        a("s_mul_i32 s44, s19, 3")
        a("s_lshr_b32 s44, s44, 1")
        a("s_lshl_b32 s44, s44, 7")
        a("s_cmp_eq_u32 s19, 14")
        a("s_cselect_b32 s44, 2816, s44")
        a("s_and_b32 s43, s18, 7")
        a("s_lshl_b32 s43, s43, 6")
        a("s_lshl_b32 s45, s20, 4")
        a("s_add_u32 s43, s43, s45")
        a("s_mul_i32 s43, s43, 3072")
        a("s_add_u32 s43, s43, s44")
        srd(a, 80, 6, 512*3072)
        a("v_lshrrev_b32 v2, 4, v1")
        a("v_mul_u32_u24 v2, 3072, v2")
        a("v_and_b32 v3, 15, v1")
        a("v_lshl_add_u32 v2, v3, 4, v2")
        for q in range(4):
            a(f"buffer_load_dwordx4 {r4(48+4*q)}, v2, s[80:83], s43 offen")
            if q < 3: a(f"s_add_u32 s43, s43, {4*3072}")
    PF3 = cfg.get('pf', 2) == 3
    if PF3:
        srd(a, 92, 10, 2048*4096)
        a("s_lshr_b32 s90, s16, 1")
        a("s_lshl_b32 s90, s90, 21")
        a("s_lshl_b32 s43, s17, 16")
        a("s_add_u32 s90, s90, s43")
        a("s_lshl_b32 s43, s20, 14")
        a("s_add_u32 s90, s90, s43")
        a("v_lshlrev_b32 v8, 4, v1")
    for b in range(8):
        prep(b+4)
        a(f"s_waitcnt vmcnt({lq.allowed(b+1)})")
        if cfg.get('tsl') and b < 4: ts(3 + b)
        a("s_barrier")
        fire(b+4); lq.add('D', b+4, nins(b+4))
        if PF3 and b >= 4:
            for q in range(4): a(f"buffer_load_dwordx4 {r4(64+4*q)}, v8, s[92:95], s90 offen offset:{q*1024}")
            a("s_add_u32 s90, s90, 4096")
            lq.add('F', 0, 4)
    a("s_cmp_eq_u32 s19, 14")
    a(f"s_cbranch_scc1 {L('lpure')}")
    a("s_lshl_b32 s43, s20, 12")
    a(f"s_add_u32 s43, s43, {EP+1024}")
    a("v_lshlrev_b32 v5, 4, v1")
    a("v_add_u32 v6, s43, v5")
    HP, HC, HT = 32, 48, 80
    C0, C1, C2 = 90, 92, 94
    for r in (C0, C0+1): a(f"v_mov_b32 v{r}, {hex(f2u(GELU_C0))}")
    for r in (C1, C1+1): a(f"v_mov_b32 v{r}, {hex(f2u(GELU_C1))}")
    for r in (C2, C2+1): a(f"v_mov_b32 v{r}, 1.0")
    a("s_lshl_b32 s43, s18, 2")
    a("s_lshl_b32 s44, s21, 1")
    a("s_add_u32 s43, s43, s44")
    a("s_mul_i32 s43, s43, 56")
    a("s_lshl_b32 s44, s19, 2")
    a("s_add_u32 s43, s43, s44")
    a("s_lshl_b32 s44, s22, 1")
    a("s_add_u32 s43, s43, s44")
    a("s_lshl_b32 s43, s43, 10")
    a(f"s_add_u32 s52, s43, {WS_H1}")
    a(f"s_add_u32 s53, s52, {56*1024}")
    def z1_block(q):
        if not Z1K1: return
        a(f"ds_read_b128 {r4(HP)}, v6 offset:{q*1024}")
        a("s_waitcnt lgkmcnt(0)")
        for e in range(4):
            a(f"v_lshlrev_b32 v{HC+2*e}, 16, v{HP+e}")
            a(f"v_and_b32 v{HC+2*e+1}, 0xffff0000, v{HP+e}")
        gelu_pairs(a, [HC+2*e for e in range(4)], HT, C0, C1, C2, G=4)
        t = HP + 4 + 4*(q % 2)
        for e in range(4): a(f"v_cvt_pk_bf16_f32 v{t+e}, v{HC+2*e}, v{HC+2*e+1}")
        a(f"buffer_store_dwordx4 {r4(t)}, v5, s[32:35], {'s52' if q < 2 else 's53'} offen offset:{(q%2)*1024} {FL[cfg.get('sth1', 2)]}")
    a("s_cmp_lt_u32 s20, 2")
    a(f"s_cbranch_scc1 {L('lx')}")
    l2 = lq.copy()
    for b in (8, 9, 10, 11):
        prep(b+4)
        a(f"s_waitcnt vmcnt({l2.allowed(b+1)})")
        a("s_barrier")
        fire(b+4); l2.add('D', b+4, nins(b+4))
        z1_block(b-8)
        if Z1K1: l2.add('S', 0, 1)
    a(f"s_branch {L('lb12m')}")
    a.label(L('lpure'))
    l3 = lq.copy()
    for b in (8, 9, 10, 11):
        prep(b+4)
        a(f"s_waitcnt vmcnt({l3.allowed(b+1)})")
        a("s_barrier")
        fire(b+4); l3.add('D', b+4, nins(b+4))
    a.label(L('lb12m'))
    PFN = {2: 8, 4: 4, 5: 2, 6: 4}.get(cfg.get('pf', 2), 0)
    PF6 = cfg.get('pf', 2) == 6
    if PF6:
        srd(a, 80, 10, 2048*4096)
        a("s_lshr_b32 s43, s16, 1")
        a("s_lshl_b32 s43, s43, 21")
        a("s_lshl_b32 s44, s17, 16")
        a("s_add_u32 s43, s43, s44")
        a("s_and_b32 s44, s16, 1")
        a("s_lshl_b32 s44, s44, 11")
        a("s_add_u32 s43, s43, s44")
        a("s_and_b32 s44, s20, 1")
        a("s_lshl_b32 s44, s44, 15")
        a("s_add_u32 s43, s43, s44")
        a("v_and_b32 v8, 63, v1")
        a("v_lshlrev_b32 v8, 4, v8")
        if cfg.get('k2rotmode', 5) in (9, 10, 11):
            mul = {9: 4, 10: 2, 11: 1}[cfg['k2rotmode']]
            a("s_lshr_b32 s44, s17, 2")
            a(f"s_mul_i32 s44, s44, {mul*128}")
            a("s_and_b32 s45, s16, 1")
            a("s_lshl_b32 s45, s45, 11")
            a("s_sub_u32 s43, s43, s45")
            a("s_add_u32 s44, s44, s45")
            a("v_add_u32 v9, s44, v8")
            a("v_and_b32 v8, 4095, v9")
            a("v_add_u32 v9, 1024, v9")
            a("v_and_b32 v9, 4095, v9")
    elif PFN == 2:
        srd(a, 80, 10, 2048*4096)
        a("s_lshl_b32 s43, s2, 14")
        a("s_and_b32 s44, s20, 1")
        a("s_lshl_b32 s44, s44, 13")
        a("s_add_u32 s43, s43, s44")
        a(f"s_add_u32 s43, s43, {4<<20}")
        a("v_lshlrev_b32 v8, 4, v1")
    elif PFN:
        srd(a, 80, 10, 2048*4096)
        a("s_lshr_b32 s43, s16, 1")
        a("s_lshl_b32 s43, s43, 21")
        a("s_lshl_b32 s44, s17, 16")
        a("s_add_u32 s43, s43, s44")
        if PFN == 8:
            a("s_and_b32 s44, s20, 1")
            a("s_lshl_b32 s44, s44, 15")
        else:
            a("s_and_b32 s44, s16, 1")
            a("s_lshl_b32 s44, s44, 15")
            a("s_add_u32 s43, s43, s44")
            a("s_and_b32 s44, s20, 1")
            a("s_lshl_b32 s44, s44, 14")
        a("s_add_u32 s43, s43, s44")
        a("v_lshlrev_b32 v8, 4, v1")
    def pf_batch():
        if PF6:
            wrap = cfg.get('k2rotmode', 5) in (9, 10, 11)
            for q in range(4):
                if wrap: a(f"buffer_load_dwordx4 {r4(64+4*q)}, v{8+(q%2)}, s[80:83], s43 offen")
                else: a(f"buffer_load_dwordx4 {r4(64+4*q)}, v8, s[80:83], s43 offen offset:{(q%2)*1024}")
                if q % 2 == 1: a("s_add_u32 s43, s43, 4096")
            return
        for q in range(PFN):
            a(f"buffer_load_dwordx4 {r4(64+4*q)}, v8, s[80:83], s43 offen offset:{(q%4)*1024}")
            if q % 4 == 3 or q == PFN-1: a(f"s_add_u32 s43, s43, {1024*min(4, PFN)}")
    a("s_waitcnt vmcnt(16)")
    a("s_barrier")
    pf_batch()
    a(f"s_waitcnt vmcnt({8+PFN})")
    a("s_barrier")
    pf_batch()
    a(f"s_waitcnt vmcnt({2*PFN})")
    a("s_barrier")
    pf_batch()
    a("s_barrier")
    pf_batch()
    if cfg.get('cpf2', 1):
        lab2 = L('nocp2')
        a("s_cmp_eq_u32 s20, 3")
        a(f"s_cbranch_scc0 {lab2}")
        code_prefetch(a, 'gm_k2_kernel', 'gm_code_end', 's17', 1, 'k1b', vtmp=100)
        a.label(lab2)
    if cfg.get('xw', 0):
        a(f"s_mul_i32 s43, s2, {cfg['xw']*1024}")
        a(f"s_add_u32 s43, s43, 0x2000000")
        a(f"s_mov_b32 s90, s14"); a("s_mov_b32 s91, s15")
        a("s_mov_b32 s92, 0x8000000"); a("s_mov_b32 s93, 0x20000")
        a("s_mov_b32 s88, s14"); a("s_mov_b32 s89, s15"); a("s_mov_b32 s90, 0x8000000"); a("s_mov_b32 s91, 0x20000")
        a("s_and_b32 s44, s20, 1")
        a(f"s_mul_i32 s44, s44, {cfg['xw']*512}")
        a("s_add_u32 s43, s43, s44")
        for q in range(cfg['xw']//2):
            a(f"buffer_store_dwordx4 v[64:67], v8, s[88:91], s43 offen offset:{(q%4)*1024} {'sc1' if cfg.get('xwsc',1) else ''}")
            if q % 4 == 3: a("s_add_u32 s43, s43, 4096")
    if cfg.get('pfwait', 1): a("s_waitcnt vmcnt(0)")
    a(f"s_branch {L('fin2') if not cfg.get('pfwait', 1) else L('fin')}")
    a.label(L('lx'))
    a("s_lshl_b32 s43, s20, 6")
    a("v_add_u32 v9, s43, v1")
    a("v_lshlrev_b32 v7, 4, v9")
    a("s_mul_i32 s54, s18, 28672")
    a(f"s_add_u32 s54, s54, {WS_STAT}")
    a("s_mov_b32 s88, 0")
    P = 96
    def poll_loads():
        a("s_mov_b32 s43, s54")
        for q in range(14):
            if q % 2 == 0 and q: a("s_add_u32 s43, s43, 4096")
            a(f"buffer_load_dwordx4 {r4(P+4*q)}, v7, s[32:35], s43 offen offset:{(q%2)*2048} {XS}")
    l1 = lq.copy()
    for b in range(8, PSTEP+3):
        if b+4 < 16: prep(b+4)
        a(f"s_waitcnt vmcnt({l1.allowed(b+1)})")
        a("s_barrier")
        if b+4 < 16:
            fire(b+4); l1.add('D', b+4, nins(b+4))
        if b == PSTEP:
            poll_loads(); l1.add('P', 0, 14)
        if b < 12:
            z1_block(b-8)
            if Z1K1: l1.add('S', 0, 1)
    if not cfg.get('tsl'): ts(3)
    a(f"s_waitcnt vmcnt({l1.allowed(PSTEP+4, also=('P',))})")
    a(f"s_branch {L('pchk1')}")
    a.label(L('pchk'))
    a("s_waitcnt vmcnt(0)")
    a.label(L('pchk1'))
    a(f"v_max_u32 v10, v{P}, v{P+1}")
    for q in range(2, 56, 2): a(f"v_max3_u32 v10, v10, v{P+q}, v{P+q+1}")
    a("v_cmp_eq_u32 vcc, -1, v10")
    a("s_add_u32 s88, s88, 1")
    a("s_cmp_ge_u32 s88, 0x20000")
    a(f"s_cbranch_scc1 {L('polled')}")
    a(f"s_cbranch_vccz {L('polled')}")
    poll_loads()
    a(f"s_branch {L('pchk')}")
    a.label(L('polled'))
    if not cfg.get('tsl'): ts(5)
    if ts.on: a("s_mov_b32 s62, s88")
    for q in range(1, 28): a(f"v_pk_add_f32 {r2(P)}, {r2(P)}, {r2(P+2*q)}")
    m, e2 = P, P+1
    a(f"v_mul_f32 v{m}, {hex(f2u(1.0/896))}, v{m}")
    a(f"v_mul_f32 v{e2}, {hex(f2u(1.0/896))}, v{e2}")
    a(f"v_fma_f32 v{e2}, -v{m}, v{m}, v{e2}")
    a(f"v_max_f32 v{e2}, 0, v{e2}")
    a(f"v_add_f32 v{e2}, {hex(f2u(1e-5))}, v{e2}")
    a(f"v_rsq_f32 v{e2}, v{e2}")
    a(f"v_mul_f32 v{m}, v{m}, v{e2}")
    a(f"v_sub_f32 v{m}, 0, v{m}")
    a("v_lshlrev_b32 v7, 3, v9")
    a(f"v_add_u32 v7, {EP}, v7")
    a(f"ds_write_b64 v7, {r2(m)}")
    a("s_waitcnt lgkmcnt(0)")
    a("s_barrier")
    for b in range(PSTEP+4, 16):
        if b+1 <= 15: a("s_waitcnt vmcnt(0)" if b+1 == 15 else f"s_waitcnt vmcnt({8*(15-(b+1))})")
        a("s_barrier")
    a(f"s_branch {L('fin')}")
    a.label(L('spare'))
    def spare_cpf():
        if cfg.get('cpf', 1):
            a("s_and_b32 s43, s17, 1")
            a("s_lshl_b32 s43, s43, 3")
            a("s_add_u32 s43, s43, s20")
            code_prefetch(a, 'gm_k1_kernel', 'gm_code_end', 's43', 3, 'k1', vtmp=200)
    if cfg.get('cpfirst', 1): spare_cpf()
    a("s_waitcnt lgkmcnt(0)")
    srd(a, 32, 14, WS_END)
    a("s_mul_i32 s43, s18, 28672")
    a("s_lshl_b32 s44, s20, 10")
    a("s_add_u32 s43, s43, s44")
    a(f"s_add_u32 s43, s43, {WS_STAT}")
    a("v_lshlrev_b32 v2, 4, v1")
    for r in range(4, 8): a(f"v_mov_b32 v{r}, -1")
    for q in range(3):
        a("buffer_store_dwordx4 v[4:7], v2, s[32:35], s43 offen sc1")
        a("s_add_u32 s43, s43, 8192")
    a("s_cmp_lt_u32 s20, 4")
    a(f"s_cbranch_scc0 {L('rs3')}")
    a("buffer_store_dwordx4 v[4:7], v2, s[32:35], s43 offen sc1")
    a.label(L('rs3'))
    if cfg.get('fuse', 1):
        lab = L('zf')
        a("s_cmp_eq_u32 s18, 0")
        a(f"s_cbranch_scc0 {lab}")
        a("s_cmp_ge_u32 s20, 5")
        a(f"s_cbranch_scc0 {lab}")
        a("s_sub_u32 s43, s20, 5")
        a("s_lshl_b32 s43, s43, 10")
        a(f"s_add_u32 s43, s43, {WS_FLAG}")
        for r in range(4, 8): a(f"v_mov_b32 v{r}, 0")
        a("buffer_store_dwordx4 v[4:7], v2, s[32:35], s43 offen sc1")
        a.label(lab)
    a("s_waitcnt vmcnt(0)")
    a("s_barrier")
    a("s_cmp_eq_u32 s20, 0")
    a(f"s_cbranch_scc0 {L('rs4')}")
    a("s_lshl_b32 s43, s18, 2")
    a("v_mov_b32 v2, s43")
    a("v_mov_b32 v3, 1")
    a("s_mov_b64 s[52:53], exec")
    a("s_mov_b64 exec, 1")
    a("global_store_dword v2, v3, s[12:13] sc1")
    a("s_mov_b64 exec, s[52:53]")
    a.label(L('rs4'))
    if not cfg.get('cpfirst', 1): spare_cpf()
    a("s_lshl_b32 s18, s18, 7")
    a("s_lshl_b32 s43, s20, 4")
    a("s_add_u32 s18, s18, s43")
    srd(a, 24, 4, 2048*1024)
    srd(a, 28, 58, 1024)
    srd(a, 32, 14, WS_END)
    a("v_and_b32 v2, 15, v1")
    a("v_lshrrev_b32 v3, 4, v1")
    a("v_lshlrev_b32 v4, 4, v2")
    for q in range(4): a(f"buffer_load_dwordx4 {r4(16+4*q)}, v4, s[28:31], 0 offen offset:{256*q}")
    a("v_add_u32 v5, s18, v3")
    a("v_lshl_add_u32 v5, v5, 10, v4")
    for it in range(4):
        for q in range(4): a(f"buffer_load_dwordx4 {r4(64+16*it+4*q)}, v5, s[24:27], 0 offen offset:{256*q}")
        a("v_add_u32 v5, 4096, v5")
    a("v_add_u32 v6, s18, v3")
    a("v_lshlrev_b32 v6, 2, v6")
    npf2 = 0
    for it in range(4):
        a(f"s_waitcnt vmcnt({4*(3-it)+npf2})")
        b = 64+16*it
        a(f"v_dot2_f32_bf16 v8, v{b}, v16, 0")
        for r in range(1, 16): a(f"v_dot2_f32_bf16 v8, v{b+r}, v{16+r}, v8")
        a("s_nop 2")
        for sh in ('row_shr:8', 'row_shr:4', 'row_shr:2', 'row_shr:1'):
            a(f"v_add_f32_dpp v8, v8, v8 {sh} row_mask:0xf bank_mask:0xf bound_ctrl:1")
        a(f"v_mul_f32 v8, {hex(f2u(-LOG2E))}, v8")
        a("v_exp_f32 v8, v8")
        a("v_add_f32 v8, 1.0, v8")
        a("v_rcp_f32 v8, v8")
        a(f"v_mov_b32 v{32+it}, v8")
    a("v_cmp_eq_u32 s[52:53], 15, v2")
    a("s_mov_b64 s[54:55], exec")
    a("s_and_b64 exec, exec, s[52:53]")
    a(f"s_mov_b32 s51, {WS_G}")
    for it in range(4):
        a(f"buffer_store_dword v{32+it}, v6, s[32:35], s51 offen offset:{16*it}")
    a("s_mov_b64 exec, s[54:55]")
    if cfg.get('pf', 1):
        a("s_lshr_b32 s48, s18, 4")
        a("v_lshlrev_b32 v9, 4, v1")
        srd(a, 36, 60, 512*1024)
        srd(a, 44, 56, 896*1024)
        a("s_lshl_b32 s49, s48, 12")
        for q in range(4): a(f"buffer_load_dwordx4 {r4(128+4*q)}, v9, s[36:39], s49 offen offset:{q*1024}")
        a("s_mul_i32 s49, s48, 7168")
        for q in range(7):
            if q == 4: a("s_add_u32 s49, s49, 4096")
            a(f"buffer_load_dwordx4 {r4(144+4*q)}, v9, s[44:47], s49 offen offset:{(q%4)*1024}")
        srd(a, 80, 10, 2048*4096)
        if cfg.get('pf', 2) == 5:
            a("s_lshl_b32 s43, s48, 15")
            a("s_mov_b32 s50, 0")
            a.label(L('pfl'))
            for q in range(8):
                a(f"buffer_load_dwordx4 {r4(64+4*q)}, v9, s[80:83], s43 offen offset:{(q%4)*1024}")
                if q % 4 == 3: a("s_add_u32 s43, s43, 4096")
            a("s_waitcnt vmcnt(24)")
            a("s_add_u32 s50, s50, 1")
            a("s_cmp_lt_u32 s50, 4")
            a(f"s_cbranch_scc1 {L('pfl')}")
            a("s_lshl_b32 s43, s2, 14")
            a("s_lshl_b32 s44, s20, 11")
            a("s_add_u32 s43, s43, s44")
            a(f"s_add_u32 s43, s43, {4<<20}")
            for q in range(2): a(f"buffer_load_dwordx4 {r4(64+4*q)}, v9, s[80:83], s43 offen offset:{q*1024}")
        else:
            a("s_lshr_b32 s43, s16, 1")
            a("s_lshl_b32 s43, s43, 21")
            a("s_lshl_b32 s44, s17, 16")
            a("s_add_u32 s43, s43, s44")
            a("s_lshl_b32 s44, s20, 13")
            a("s_add_u32 s43, s43, s44")
            for q in range(8):
                a(f"buffer_load_dwordx4 {r4(64+4*q)}, v9, s[80:83], s43 offen offset:{(q%4)*1024}")
                if q == 3: a("s_add_u32 s43, s43, 4096")
        a("s_waitcnt vmcnt(0)")
    a.label(L('fin'))
    if ts.on: a("s_waitcnt vmcnt(0)")
    if not cfg.get('tsc'): ts(7)
    ts.flush()
    a.label(L('fin2'))
    a.label(L('end'))
    a("s_endpgm")
    if cfg.get('lfirst', 1):
        pos = {i.text.strip()[:-1]: k for k, i in enumerate(a.items) if i.cls == 'label'}
        c0, l0, s0 = pos[L('compute')], pos[L('loader')], pos[L('spare')]
        a.items = a.items[:c0] + a.items[l0:s0] + a.items[c0:l0] + a.items[s0:]
    a.check_protected(list(range(4, 16)) + list(range(56, 62)))
    n = a.fix_hazards()
    return a, n
```

```python
S = 2048; D = 512
import os as _os
WS_BASE = int(_os.environ.get('WSBASE', '0'), 0)
WS_QKV  = WS_BASE + 0x0000000
WS_H1   = WS_BASE + 0x0600000
WS_Z2N  = WS_BASE + 0x0A00000
WS_A3   = WS_BASE + 0x0E00000
WS_STAT = WS_BASE + 0x1400000
WS_G    = WS_BASE + 0x1480000
WS_FLAG = WS_BASE + 0x1490000
WS_END  = WS_BASE + 0x1500000
KA_X, KA_WQKV, KA_WO, KA_BX, KA_WIN, KA_WSP, KA_BSP, KA_WOUT, KA_GATE, KA_OUT, KA_DBG, KA_WS = [8*i for i in range(12)]
import math
LOG2E = 1.4426950408889634
def f2u(x):
    import struct
    return struct.unpack('<I', struct.pack('<f', x))[0]
GELU_C0 = -2.0*math.sqrt(2.0/math.pi)*LOG2E
GELU_C1 = GELU_C0*0.044715
QSCALE = 0.25*LOG2E

def kernel_header(name):
    return f""".globl {name}
.p2align 8
.type {name},@function
{name}:
"""
def kernel_desc(name, vgpr, agpr=0, sgpr=102):
    acc = (vgpr + 3)//4*4
    return f""".amdhsa_kernel {name}
  .amdhsa_next_free_vgpr {acc + agpr}
  .amdhsa_next_free_sgpr {sgpr}
  .amdhsa_accum_offset {acc}
  .amdhsa_group_segment_fixed_size 0
  .amdhsa_kernarg_size 96
  .amdhsa_user_sgpr_count 2
  .amdhsa_user_sgpr_kernarg_segment_ptr 1
  .amdhsa_system_sgpr_workgroup_id_x 1
  .amdhsa_float_denorm_mode_32 3
.end_amdhsa_kernel
"""
def srd(a, s, ptr, nbytes, add=None):
    if add is None:
        a(f"s_mov_b32 s{s}, s{ptr}")
        a(f"s_mov_b32 s{s+1}, s{ptr+1}")
    else:
        a(f"s_add_u32 s{s}, s{ptr}, {add}")
        a(f"s_addc_u32 s{s+1}, s{ptr+1}, 0")
    a(f"s_mov_b32 s{s+2}, {nbytes}")
    a(f"s_mov_b32 s{s+3}, 0x20000")

WS_TS = WS_BASE + 0x1600000
class Stamper:
    def __init__(self, a, cfg, kidx):
        self.a = a; self.on = cfg.get('ts', False); self.k = kidx; self.n = 0; self.xcc = cfg.get('xcc', 0)
    def init(self):
        if self.on: self.a("s_mov_b32 s63, 0")
    def role(self, r):
        if self.on: self.a(f"s_mov_b32 s63, {32*r}")
    def __call__(self, idx):
        if self.on == 3 and idx not in (0, 7): return
        if self.on: self.a(f"{'s_memtime' if self.on == 2 else 's_memrealtime'} s[{64+2*idx}:{65+2*idx}]")
    def flush(self, wave_sgpr='s20', nst=8):
        if not self.on: return
        a = self.a
        if getattr(self, 'xcc', False):
            a("s_waitcnt lgkmcnt(0)")
            a("s_getreg_b32 s76, hwreg(HW_REG_XCC_ID)")
            a("s_getreg_b32 s77, hwreg(HW_REG_HW_ID)")
            a("s_and_b32 s76, s76, 15")
            a("s_lshl_b32 s77, s77, 4")
            a("s_or_b32 s76, s76, s77")
        lab = 'TS_k%d' % self.k
        a(f"s_cmp_eq_u32 {wave_sgpr}, 0")
        a(f"s_cbranch_scc0 {lab}")
        a("s_waitcnt lgkmcnt(0)")
        a(f"s_load_dwordx2 s[96:97], s[0:1], {KA_WS}")
        a("s_lshl_b32 s98, s2, 6")
        a(f"s_add_u32 s98, s98, {WS_TS + self.k*32768}")
        a("s_add_u32 s98, s98, s63")
        a("s_waitcnt lgkmcnt(0)")
        a("s_add_u32 s96, s96, s98")
        a("s_addc_u32 s97, s97, 0")
        a("v_mov_b32 v250, 0")
        for i in range(nst):
            a(f"v_mov_b32 v251, s{64+2*i}")
            a(f"global_store_dword v250, v251, s[96:97] offset:{4*i}")
        a("s_cmp_eq_u32 s63, 0")
        a(f"s_cbranch_scc1 {lab}")
        a("s_waitcnt vmcnt(0)")
        a("v_mov_b32 v251, s62")
        a("global_store_dword v250, v251, s[96:97] offset:28")
        a.label(lab)

def code_prefetch(a, first_label, last_label, idx_sgpr, nper, uid, vtmp=96, dst=None):
    lab = f"PC_{uid}"
    a("s_getpc_b64 s[92:93]")
    a.label(lab)
    a(f"s_mov_b32 s94, {first_label}-{lab}")
    a("s_ashr_i32 s95, s94, 31")
    a("s_add_u32 s92, s92, s94")
    a("s_addc_u32 s93, s93, s95")
    a(f"s_mov_b32 s94, {last_label}-{first_label}")
    a("s_mov_b32 s95, 0x20000")
    a(f"s_mul_i32 s91, {idx_sgpr}, {nper*1024}")
    a(f"v_lshlrev_b32 v{vtmp}, 4, v1")
    for q in range(nper):
        if dst is None: a(f"buffer_load_dwordx4 v[{vtmp+4+4*q}:{vtmp+7+4*q}], v{vtmp}, s[92:95], s91 offen offset:{(q%4)*1024}")
        else: a(f"buffer_load_dword v{dst}, v{vtmp}, s[92:95], s91 offen offset:{(q%4)*1024}")
        if q % 4 == 3: a("s_add_u32 s91, s91, 4096")
```

```python
import sys, importlib
sys.path.insert(0, 'gen')
from common import *
import k1

DOC = """;
;
"""

def make(cfg=None, kernels=('k1','k2','k3')):
    base = dict(k2U=4, prio_attn=0, prio_attn_after=0, prio_gemm=1, k1rot=1, pf=6, k2hide=0, st1=0, pstep=10, h1it=-1, z1k1=0, fast=1, k2rotmode=5, glstep=-1, ant=0, hnt=0, l2w=0, prio_attn_loop=0, prio_k3=0, inplace=0, ppoll=0, skew=0, cpfirst=0, cpf2=0, cpf3=0, align=1)
    base.update(cfg or {})
    cfg = base
    mods = []
    for k in kernels:
        mods.append(importlib.import_module(k))
    hdr = open('gated_mix__sliding_block__mixer_gmlp__prompt.s.ref').read().split('\n')
    top = [l for l in hdr if l.startswith(';') and '@launch' not in l and 'Override launch' not in l and 'grid=ceil' not in l]
    top = top[:14]
    out = '\n'.join(top) + '\n'
    out += DOC
    for m in mods:
        out += f"; @launch kernel={m.NAME} grid=({m.GRID},1,1) block=({m.BLOCK},1,1) lds={m.LDS_BYTES}\n"
    out += '.amdgcn_target "amdgcn-amd-amdhsa--gfx950"\n.text\n'
    descs = ''
    seen = set()
    for m in mods:
        if m.NAME in seen: continue
        seen.add(m.NAME)
        a, n = m.build(cfg)
        if cfg.get('align'): a.align_labels = ('K1_loop0', 'K1_loop1', 'K2_gloop_2', 'K2_gloop_1', 'K2_aloop')
        out += kernel_header(m.NAME) + a.text()
        descs += '.p2align 6\n' + (f'gm_kd_local_{len(seen)-1}:\n' if cfg.get('kdpf') else '') + kernel_desc(m.NAME, m.VGPRS, getattr(m, 'AGPRS', 0))
    out += 'gm_code_end:\n    s_endpgm\n'
    out += '.section .rodata,"a"\n' + descs
    return out
if __name__ == '__main__':
    ks = sys.argv[2].split(',') if len(sys.argv) > 2 else ('k1','k2')
    cfg = {}
    if 'k3' in ks: cfg['fuse'] = 0
    for kv in sys.argv[3:]:
        k, v = kv.split('='); cfg[k] = int(v)
    txt = make(cfg, ks)
    path = sys.argv[1] if len(sys.argv) > 1 else 'gated_mix__sliding_block__mixer_gmlp__prompt.s'
    open(path, 'w').write(txt)
    print('wrote', path, len(txt), 'bytes')
```

```python
from asmlib import *
from common import *

NAME = 'gm_k1_kernel'
SLOT = 32768
NSLOT = 4
EP = NSLOT*SLOT
LDS_BYTES = EP + 1024 + 16384
GRID = 256
BLOCK = 512
VGPRS = 256
HUGE = 0x7ff00000
SENT = 0xffffffff

ACC = 16
X = [128, 144]
W = [160, 176]
XA = [216, 217]
WA = [218+i for i in range(7)]
PK = 192
VX = [16+i for i in range(4)]
VW = [[20+i for i in range(4)], [24+i for i in range(4)]]
def acc(n, tt): return ACC + (n*4+tt)*4
def r4(b): return f"v[{b}:{b+3}]"
def r2(b): return f"v[{b}:{b+1}]"

def gelu_pairs(a, regs, t0, cpair0, cpair1, one, G=4):
    for k in range(0, len(regs), G):
        grp = regs[k:k+G]
        T = [t0 + 2*i for i in range(len(grp))]
        for x, t in zip(grp, T): a(f"v_pk_mul_f32 {r2(t)}, {r2(x)}, {r2(x)}")
        for x, t in zip(grp, T): a(f"v_pk_fma_f32 {r2(t)}, {r2(t)}, {r2(cpair1)}, {r2(cpair0)}")
        for x, t in zip(grp, T): a(f"v_pk_mul_f32 {r2(t)}, {r2(t)}, {r2(x)}")
        for x, t in zip(grp, T):
            a(f"v_exp_f32 v{t}, v{t}"); a(f"v_exp_f32 v{t+1}, v{t+1}")
        for x, t in zip(grp, T): a(f"v_pk_add_f32 {r2(t)}, {r2(t)}, {r2(one)}")
        for x, t in zip(grp, T):
            a(f"v_rcp_f32 v{t}, v{t}"); a(f"v_rcp_f32 v{t+1}, v{t+1}")
        for x, t in zip(grp, T): a(f"v_pk_mul_f32 {r2(x)}, {r2(x)}, {r2(t)}")

def build(cfg):
    a = Asm()
    L = lambda s: f"K1_{s}"
    FL = {0: '', 1: 'sc0 sc1', 2: 'sc1'}
    ST = FL[cfg.get('st1', 2)]
    XS = 'sc1'
    PSTEP = cfg.get('pstep', 10)
    a(f"s_cmp_ge_u32 s2, 256")
    a(f"s_cbranch_scc1 {L('end')}")
    ts = Stamper(a, cfg, 0)
    ts.init()
    for i in range(8): ts(i)
    a(f"s_load_dwordx4 s[4:7], s[0:1], {KA_X}")
    a(f"s_load_dwordx4 s[8:11], s[0:1], {KA_WIN}")
    a(f"s_load_dwordx4 s[12:15], s[0:1], {KA_DBG}")
    a(f"s_load_dwordx4 s[56:59], s[0:1], {KA_WOUT}")
    a(f"s_load_dwordx2 s[60:61], s[0:1], {KA_WO}")
    a("v_lshrrev_b32 v2, 6, v0")
    a("v_and_b32 v1, 63, v0")
    a("v_readfirstlane_b32 s20, v2")
    a("s_and_b32 s16, s2, 7")
    a("s_lshr_b32 s17, s2, 3")
    a("s_lshr_b32 s18, s16, 2")
    a("s_lshl_b32 s18, s18, 3")
    a("s_and_b32 s43, s16, 3")
    a("s_mul_i32 s44, s43, 30")
    a("s_add_u32 s44, s44, s17")
    a("s_lshr_b32 s19, s44, 3")
    a("s_and_b32 s44, s44, 7")
    a("s_lshl_b32 s43, s43, 1")
    a("s_add_u32 s43, s43, s17")
    a("s_sub_u32 s43, s43, 30")
    a("s_cmp_ge_u32 s17, 30")
    a("s_cselect_b32 s44, s43, s44")
    a("s_add_u32 s18, s18, s44")
    a("s_cmp_ge_u32 s17, 30")
    a(f"s_cbranch_scc1 {L('spare')}")
    a("s_cmp_lt_u32 s20, 4")
    a(f"s_cbranch_scc1 {L('compute')}")
    a(f"s_branch {L('loader')}") if not cfg.get('lfirst', 1) else None
    a.label(L('compute'))
    a("s_lshr_b32 s21, s20, 1")
    a("s_and_b32 s22, s20, 1")
    a("s_mul_i32 s43, s18, 14")
    a("s_add_u32 s43, s43, s19")
    a("s_lshl_b32 s43, s43, 11")
    a("s_lshl_b32 s44, s21, 10")
    a("s_add_u32 s43, s43, s44")
    a("s_lshl_b32 s44, s22, 3")
    a("s_add_u32 s43, s43, s44")
    a(f"s_add_u32 s62, s43, {WS_STAT}")
    a("v_and_b32 v2, 15, v1")
    a("v_lshrrev_b32 v3, 4, v1")
    a("v_lshrrev_b32 v4, 1, v2")
    a("v_xor_b32 v4, v4, v3")
    a("s_lshl_b32 s43, s21, 6")
    a("v_add_u32 v5, s43, v2")
    a("v_lshlrev_b32 v5, 7, v5")
    a(f"v_lshl_add_u32 v{XA[0]}, v4, 4, v5")
    a(f"v_xor_b32 v{XA[1]}, 64, v{XA[0]}")
    a("v_lshrrev_b32 v4, 2, v1")
    a("v_and_b32 v4, 7, v4")
    a("v_lshrrev_b32 v5, 5, v1")
    a("v_lshlrev_b32 v5, 11, v5")
    a("v_lshl_add_u32 v5, v4, 7, v5")
    a("v_lshrrev_b32 v4, 1, v4")
    a("v_lshl_add_u32 v5, v4, 5, v5")
    a("v_and_b32 v4, 3, v1")
    a("v_lshl_add_u32 v5, v4, 3, v5")
    a("s_and_b32 s48, s19, 1")
    a("s_lshl_b32 s48, s48, 1")
    a("s_mul_i32 s49, s22, 3")
    a("s_add_u32 s48, s48, s49")
    a("s_lshl_b32 s49, s22, 1")
    a("s_lshl_b32 s50, s22, 2")
    for n in range(7):
        if n < 2: a(f"s_add_u32 s43, s49, {n}"); a(f"s_add_u32 s44, s50, {n}")
        elif n < 4: a(f"s_add_u32 s43, s49, {4+n-2}"); a(f"s_add_u32 s44, s50, {n}")
        else: a(f"s_add_u32 s43, s48, {n-4}"); a(f"s_add_u32 s44, s49, {min(n-4,1)}")
        a("s_cmp_eq_u32 s19, 14")
        a("s_cselect_b32 s43, s44, s43")
        a("s_and_b32 s44, s43, 3")
        a("s_lshl_b32 s44, s44, 5")
        a("s_lshr_b32 s43, s43, 2")
        a("s_lshl_b32 s43, s43, 12")
        a("s_add_u32 s43, s43, 16384")
        a(f"v_xor_b32 v{WA[n]}, s44, v5")
        a(f"v_add_u32 v{WA[n]}, s43, v{WA[n]}")
    for r in range(ACC, ACC+112): a(f"v_mov_b32 v{r}, 0")
    def tiles(ph): return range(4) if ph == 0 else range(4, 7)
    def reads(ph, ks, buf):
        out = []
        for tt in range(4):
            out.append(f"ds_read_b128 {r4(X[buf]+4*tt)}, v{XA[ks]} offset:{tt*2048}")
        for q, n in enumerate(tiles(ph)):
            for s in range(2):
                out.append(f"ds_read_b64_tr_b16 {r2(W[buf]+4*q+2*s)}, v{WA[n]} offset:{ks*8192+s*1024}")
        return out
    def mfmas(ph, buf):
        if cfg.get('nomfma'): return ["s_nop 0"]*4
        return [f"v_mfma_f32_16x16x32_bf16 {r4(acc(n,tt))}, {r4(W[buf]+4*q)}, {r4(X[buf]+4*tt)}, {r4(acc(n,tt))}"
                for q, n in enumerate(tiles(ph)) for tt in range(4)]
    a("s_mov_b32 s40, 0")
    a("s_mov_b32 s41, 0")
    a("s_waitcnt lgkmcnt(0)")
    srd(a, 32, 14, WS_END)
    if cfg.get('l2w', 2) == 1:
        srd(a, 24, 4, 2048*1024)
        srd(a, 28, 6, 512*3072)
        a("s_lshl_b32 s43, s18, 7")
        a("s_and_b32 s44, s19, 3")
        a("s_lshl_b32 s44, s44, 5")
        a("s_add_u32 s43, s43, s44")
        a("s_lshl_b32 s44, s20, 3")
        a("s_add_u32 s43, s43, s44")
        a("s_lshl_b32 s43, s43, 10")
        a("s_and_b32 s44, s18, 7")
        a("s_add_u32 s44, s44, 4")
        a("s_lshl_b32 s44, s44, 7")
        a("v_and_b32 v2, 31, v1")
        a("v_lshlrev_b32 v2, 4, v2")
        a("v_add_u32 v2, s44, v2")
        a("v_and_b32 v2, 1023, v2")
        a("v_lshrrev_b32 v3, 5, v1")
        a("v_lshl_add_u32 v2, v3, 10, v2")
        for q in range(4):
            a(f"buffer_load_dwordx4 {r4(PK+4*q)}, v2, s[24:27], s43 offen offset:{(q%2)*2048}")
            if q == 1: a("s_add_u32 s43, s43, 4096")
        a("s_mul_i32 s44, s19, 3")
        a("s_lshr_b32 s44, s44, 1")
        a("s_lshl_b32 s44, s44, 7")
        a("s_cmp_eq_u32 s19, 14")
        a("s_cselect_b32 s44, 2816, s44")
        a("s_and_b32 s43, s18, 7")
        a("s_lshl_b32 s43, s43, 6")
        a("s_lshl_b32 s45, s20, 4")
        a("s_add_u32 s43, s43, s45")
        a("s_mul_i32 s43, s43, 3072")
        a("s_add_u32 s43, s43, s44")
        a("v_lshrrev_b32 v2, 4, v1")
        a("v_mul_u32_u24 v2, 3072, v2")
        a("v_and_b32 v3, 15, v1")
        a("v_lshl_add_u32 v2, v3, 4, v2")
        for q in range(4):
            a(f"buffer_load_dwordx4 {r4(PK+4*q)}, v2, s[28:31], s43 offen")
            if q < 3: a(f"s_add_u32 s43, s43, {4*3072}")
    ts(1)
    a("s_barrier")
    ts(2)
    for t in reads(0, 0, 0): a(t)
    def adv_addr(regs):
        return [f"v_add_u32 v{r}, s51, v{r}" for r in regs]
    def loop(ph):
        if cfg.get('tsc') == ph + 1:
            a("s_waitcnt lgkmcnt(0)")
            for it in range(8): loop_body(ph, it)
            return
        loop_body(ph, None)
    def loop_body(ph, it):
        lab = L(f'loop{ph}')
        if it is None:
            a("s_waitcnt lgkmcnt(0)")
            a.label(lab)
        else:
            a(f"s_memtime s[{64+2*it}:{65+2*it}]")
        if ph == 1:
            if it is None or it == cfg.get('h1it', 4):
                if cfg.get('h1it', 4) >= 0 and not cfg.get('z1k1', 0):
                    a("s_cmp_eq_u32 s40, s89")
                    a(f"s_cbranch_scc1 {L('h1blk')}")
                    a.label(L('h1back'))
            if it is None or it == PSTEP-4:
                a("s_cmp_eq_u32 s40, s62")
                a(f"s_cbranch_scc1 {L('zfin')}")
                a.label(L('zback'))
        sal = ["s_cmp_eq_u32 s41, %d" % (NSLOT-1), f"s_mov_b32 s51, {SLOT}", f"s_cselect_b32 s51, {(-(NSLOT-1)*SLOT) & 0xffffffff}, s51",
               "s_add_u32 s41, s41, 1", f"s_and_b32 s41, s41, {NSLOT-1}", "s_add_u32 s40, s40, 1"]
        for t in interleave(mfmas(ph, 0), reads(ph, 1, 1) + sal, per=cfg.get('k1per', 2)): a(t)
        a("s_waitcnt lgkmcnt(0)")
        a("s_barrier")
        rd = reads(ph, 0, 0)
        nW = len(list(tiles(ph)))
        fill = [f"v_add_u32 v{XA[0]}, s51, v{XA[0]}"] + rd[:4] + [f"v_add_u32 v{XA[1]}, s51, v{XA[1]}"]
        cur = list(tiles(ph)); oth = [n for n in range(7) if n not in cur]
        for q, n in enumerate(cur):
            fill.append(f"v_add_u32 v{WA[n]}, s51, v{WA[n]}")
            fill += rd[4+2*q:6+2*q]
        fill += adv_addr([WA[n] for n in oth])
        fill += ["s_cmp_lt_u32 s40, 8"]
        for t in interleave(mfmas(ph, 1), fill, per=cfg.get('k1per2', 3)): a(t)
        if ph == 0:
            pass
        a("s_waitcnt lgkmcnt(0)")
        if it is None: a(f"s_cbranch_scc1 {lab}")
    loop(0)
    def h1_store():
        a("s_lshl_b32 s43, s18, 2")
        a("s_lshl_b32 s44, s21, 1")
        a("s_add_u32 s43, s43, s44")
        a("s_mul_i32 s43, s43, 56")
        a("s_lshl_b32 s44, s19, 2")
        a("s_add_u32 s43, s43, s44")
        a("s_lshl_b32 s44, s22, 1")
        a("s_add_u32 s43, s43, s44")
        a("s_lshl_b32 s43, s43, 10")
        a(f"s_add_u32 s54, s43, {WS_H1}")
        a("v_lshlrev_b32 v5, 4, v1")
        for tp in range(2):
            for k, n in enumerate((2, 3)):
                t = PK + 8*tp + 4*k
                for e in range(2):
                    c = acc(n, 2*tp+e)
                    a(f"v_cvt_pk_bf16_f32 v{t+2*e}, v{c}, v{c+1}")
                    a(f"v_cvt_pk_bf16_f32 v{t+2*e+1}, v{c+2}, v{c+3}")
                if k == 0: a(f"s_add_u32 s43, s54, {tp*56*1024}")
                a(f"buffer_store_dwordx4 {r4(t)}, v5, s[32:35], s43 offen offset:{k*1024} {FL[cfg.get('sth1', 2)]}")
    if not cfg.get('tsc'): ts(3)
    a("v_and_b32 v2, 15, v1")
    a("v_lshrrev_b32 v3, 4, v1")
    for t in reads(1, 0, 0): a(t)
    a("s_waitcnt vmcnt(0)")
    a("s_cmp_eq_u32 s19, 14")
    a(f"s_cbranch_scc1 {L('pure_mid')}")
    a("s_lshl_b32 s43, s18, 2")
    a("v_mov_b32 v10, s43")
    a("global_load_dword v11, v10, s[12:13] sc1")
    Z1K1 = cfg.get('z1k1', 0)
    if Z1K1:
        a("s_lshl_b32 s47, s20, 12")
        a(f"s_add_u32 s47, s47, {EP+1024}")
        a("v_lshlrev_b32 v5, 4, v1")
        a("v_add_u32 v5, s47, v5")
        for tp in range(2):
            for k, n in enumerate((2, 3)):
                t = PK + 8*tp + 4*k
                for e in range(2):
                    c = acc(n, 2*tp+e)
                    a(f"v_cvt_pk_bf16_f32 v{t+2*e}, v{c}, v{c+1}")
                    a(f"v_cvt_pk_bf16_f32 v{t+2*e+1}, v{c+2}, v{c+3}")
                a(f"ds_write_b128 v5, {r4(t)} offset:{(tp*2+k)*1024}")
    CP0, CP1, ONE = 226, 228, 230
    for r in (CP0, CP0+1): a(f"v_mov_b32 v{r}, {hex(f2u(GELU_C0))}")
    for r in (CP1, CP1+1): a(f"v_mov_b32 v{r}, {hex(f2u(GELU_C1))}")
    for r in (ONE, ONE+1): a(f"v_mov_b32 v{r}, 1.0")
    zregs = [acc(n, tt) + 2*h for n in range(2) for tt in range(4) for h in range(2)]
    gelu_pairs(a, zregs, PK, CP0, CP1, ONE)
    T = PK
    for tt in range(4):
        z = [acc(0, tt), acc(0, tt)+2, acc(1, tt), acc(1, tt)+2]
        t = T + 6*tt
        a(f"v_pk_add_f32 {r2(t)}, {r2(z[0])}, {r2(z[1])}")
        a(f"v_pk_mul_f32 {r2(t+2)}, {r2(z[0])}, {r2(z[0])}")
        a(f"v_pk_add_f32 {r2(t+4)}, {r2(z[2])}, {r2(z[3])}")
        a(f"v_pk_fma_f32 {r2(t+2)}, {r2(z[1])}, {r2(z[1])}, {r2(t+2)}")
        a(f"v_pk_add_f32 {r2(t)}, {r2(t)}, {r2(t+4)}")
        a(f"v_pk_fma_f32 {r2(t+2)}, {r2(z[2])}, {r2(z[2])}, {r2(t+2)}")
        a(f"v_pk_fma_f32 {r2(t+2)}, {r2(z[3])}, {r2(z[3])}, {r2(t+2)}")
        a(f"v_add_f32 v{t}, v{t}, v{t+1}")
        a(f"v_add_f32 v{t+1}, v{t+2}, v{t+3}")
    V = lambda tt, c: T + 6*tt + c
    for c in range(2):
        a(f"v_permlane32_swap_b32 v{V(0,c)}, v{V(2,c)}")
        a(f"v_permlane32_swap_b32 v{V(1,c)}, v{V(3,c)}")
    for c in range(2):
        a(f"v_add_f32 v{V(0,c)}, v{V(0,c)}, v{V(2,c)}")
        a(f"v_add_f32 v{V(1,c)}, v{V(1,c)}, v{V(3,c)}")
    for c in range(2): a(f"v_permlane16_swap_b32 v{V(0,c)}, v{V(1,c)}")
    a(f"v_add_f32 v4, v{V(0,0)}, v{V(1,0)}")
    a(f"v_add_f32 v5, v{V(0,1)}, v{V(1,1)}")
    a("v_lshlrev_b32 v6, 4, v1")
    a("s_mov_b32 s88, 0")
    a.label(L('fchk'))
    a("s_waitcnt vmcnt(0)")
    a("v_readfirstlane_b32 s43, v11")
    a("s_cmp_lg_u32 s43, 0")
    a(f"s_cbranch_scc1 {L('fok')}")
    a("s_add_u32 s88, s88, 1")
    a("s_cmp_ge_u32 s88, 0x40000")
    a(f"s_cbranch_scc1 {L('fok')}")
    a("global_load_dword v11, v10, s[12:13] sc1")
    a(f"s_branch {L('fchk')}")
    a.label(L('fok'))
    a(f"buffer_store_dwordx2 v[4:5], v6, s[32:35], s62 offen {XS}")
    if not cfg.get('tsc'): ts(4)
    a(f"s_mov_b32 s62, {PSTEP-4}")
    H1IT = cfg.get('h1it', 4)
    if not Z1K1:
        if H1IT < 0:
            h1_store()
        else:
            a(f"s_mov_b32 s63x, {H1IT}".replace('s63x', 's89'))
    a(f"s_branch {L('phase1')}")
    a.label(L('pure_mid'))
    a("s_mov_b32 s62, 99")
    a("s_mov_b32 s89, 99")
    def vq():
        a("s_lshl_b32 s43, s18, 7")
        a("s_lshl_b32 s44, s21, 6")
        a("s_add_u32 s43, s43, s44")
        a("v_add_u32 v4, s43, v2")
        a("v_lshlrev_b32 v4, 5, v4")
        a("v_lshl_add_u32 v4, v3, 3, v4")
    def qkv_out(n, ct_sgpr_expr, T2):
        a("s_cmp_lt_u32 s45, 32")
        a(f"s_cselect_b32 s44, {hex(f2u(QSCALE))}, 1.0")
        a("s_lshl_b32 s43, s45, 16")
        if WS_QKV: a(f"s_add_u32 s43, s43, {WS_QKV}")
        a(f"v_mov_b32 v8, s44")
        a(f"v_mov_b32 v9, s44")
        for tt in range(4):
            c = acc(n, tt); t = T2 + 2*tt
            a(f"v_pk_mul_f32 {r2(c)}, {r2(c)}, v[8:9]")
            a(f"v_pk_mul_f32 {r2(c+2)}, {r2(c+2)}, v[8:9]")
            a(f"v_cvt_pk_bf16_f32 v{t}, v{c}, v{c+1}")
            a(f"v_cvt_pk_bf16_f32 v{t+1}, v{c+2}, v{c+3}")
            a(f"buffer_store_dwordx2 {r2(t)}, v4, s[32:35], s43 offen offset:{tt*512} {ST}")
    vq()
    for n in range(4):
        a("s_lshl_b32 s45, s22, 2")
        a(f"s_add_u32 s45, s45, {84+n}")
        qkv_out(n, None, PK + 8*(n % 3))
    a.label(L('phase1'))
    if cfg.get('pf', 2) == 7:
        srd(a, 24, 10, 2048*4096)
        a("s_lshr_b32 s43, s16, 1")
        a("s_lshl_b32 s43, s43, 21")
        a("s_lshl_b32 s44, s17, 16")
        a("s_add_u32 s43, s43, s44")
        a("s_and_b32 s44, s16, 1")
        a("s_lshl_b32 s44, s44, 11")
        a("s_add_u32 s43, s43, s44")
        a("s_lshl_b32 s44, s20, 14")
        a("s_add_u32 s43, s43, s44")
        a("v_lshlrev_b32 v8, 4, v1")
        for q in range(8):
            a(f"buffer_load_dwordx4 v[228:231], v8, s[24:27], s43 offen offset:{(q%2)*1024}")
            if q % 2 == 1: a("s_add_u32 s43, s43, 4096")
    a("s_mov_b32 s40, 0")
    loop(1)
    if not cfg.get('tsc'): ts(5)
    a("v_and_b32 v2, 15, v1")
    a("v_lshrrev_b32 v3, 4, v1")
    vq()
    a("s_cmp_eq_u32 s19, 14")
    a(f"s_cbranch_scc1 {L('pure_tail')}")
    a("s_mul_i32 s55, s19, 6")
    a("s_mul_i32 s44, s22, 3")
    a("s_add_u32 s55, s55, s44")
    for k in range(3):
        a(f"s_add_u32 s45, s55, {k}")
        qkv_out(4+k, None, W[0] + 8*k)
    a(f"s_branch {L('fin')}")
    if cfg.get('h1it', 4) >= 0 and not cfg.get('z1k1', 0):
        a.label(L('h1blk'))
        h1_store()
        a("s_mov_b32 s89, 99")
        a(f"s_branch {L('h1back')}")
    a.label(L('zfin'))
    ZS, ZT = 232, 240
    a("v_and_b32 v2, 15, v1")
    a("v_lshrrev_b32 v3, 4, v1")
    a("s_lshl_b32 s43, s21, 6")
    a("v_add_u32 v6, s43, v2")
    a("v_lshlrev_b32 v6, 3, v6")
    a(f"v_add_u32 v6, {EP}, v6")
    for tt in range(4): a(f"ds_read_b64 {r2(ZS+2*tt)}, v6 offset:{tt*128}")
    a("s_lshl_b32 s47, s20, 12")
    a(f"s_add_u32 s47, s47, {EP+1024}")
    a("v_lshlrev_b32 v6, 5, v2")
    a("v_lshl_add_u32 v6, v3, 3, v6")
    a("v_add_u32 v6, s47, v6")
    a("s_waitcnt lgkmcnt(0)")
    for n in range(2):
        for tt in range(4):
            c = acc(n, tt); mr, r = ZS+2*tt, ZS+2*tt+1
            for i in range(4): a(f"v_fma_f32 v{c+i}, v{c+i}, v{r}, v{mr}")
            t = PK + 2*(n*4+tt)
            a(f"v_cvt_pk_bf16_f32 v{t}, v{c}, v{c+1}")
            a(f"v_cvt_pk_bf16_f32 v{t+1}, v{c+2}, v{c+3}")
            a(f"ds_write_b64 v6, {r2(t)} offset:{n*2048+tt*512}")
    a("v_lshlrev_b32 v6, 3, v2")
    a("v_lshl_add_u32 v6, v3, 8, v6")
    a("v_add_u32 v6, s47, v6")
    a("s_lshl_b32 s43, s19, 2")
    a("s_lshl_b32 s44, s22, 1")
    a("s_add_u32 s43, s43, s44")
    a("s_lshl_b32 s43, s43, 16")
    a("s_lshl_b32 s44, s18, 2")
    a("s_lshl_b32 s45, s21, 1")
    a("s_add_u32 s44, s44, s45")
    a("s_lshl_b32 s44, s44, 10")
    a("s_add_u32 s43, s43, s44")
    a(f"s_add_u32 s46, s43, {WS_Z2N}")
    a("s_add_u32 s47, s46, 65536")
    a("v_lshlrev_b32 v7, 4, v1")
    a("s_waitcnt lgkmcnt(0)")
    for n in range(2):
        for kk in range(2):
            for sx in range(2):
                a(f"ds_read_b64_tr_b16 {r2(ZT+4*(n*2+kk)+2*sx)}, v6 offset:{n*2048+kk*1024+sx*128}")
    for n in range(2):
        for kk in range(2):
            a(f"s_waitcnt lgkmcnt({6-2*(n*2+kk)})")
            a(f"buffer_store_dwordx4 {r4(ZT+4*(n*2+kk))}, v7, s[32:35], {'s46' if n==0 else 's47'} offen offset:{kk*1024} {FL[cfg.get('stz', 2)]}")
    a("s_mov_b32 s62, 99")
    a(f"s_branch {L('zback')}")
    a.label(L('pure_tail'))
    for k in range(2):
        a("s_lshl_b32 s45, s22, 1")
        a(f"s_add_u32 s45, s45, {92+k}")
        qkv_out(4+k, None, W[0] + 8*k)
    a(f"s_branch {L('fin')}")
    a.label(L('loader'))
    if cfg.get('lprio', 1): a(f"s_setprio {cfg.get('lprio', 1)}")
    a("s_sub_u32 s20, s20, 4")
    ts.role(1)
    a("s_lshr_b32 s21, s20, 1")
    a("s_and_b32 s22, s20, 1")
    a("s_lshl_b32 s43, s19, 7")
    a("s_cmp_eq_u32 s21, 0")
    a("s_cselect_b32 s44, 1792, 0")
    a("s_add_u32 s43, s43, s44")
    a("s_lshl_b32 s44, s21, 7")
    a("s_add_u32 s44, s44, 2688")
    a("s_mul_i32 s45, s19, 3")
    a("s_lshr_b32 s45, s45, 1")
    a("s_add_u32 s45, s45, s21")
    a("s_lshl_b32 s45, s45, 7")
    a("s_cmp_eq_u32 s19, 14")
    a("s_cselect_b32 s43, s44, s43")
    a("s_cselect_b32 s45, 2944, s45")
    a("s_movk_i32 s36, 3584")
    a("s_cselect_b32 s36, 3072, s36")
    a("s_cselect_b32 s46, 0, 1")
    a("v_lshrrev_b32 v2, 3, v1")
    a("v_and_b32 v3, 7, v1")
    a("v_lshrrev_b32 v4, 1, v2")
    a("s_lshl_b32 s44, s18, 7")
    a("s_lshl_b32 s47, s20, 5")
    a("s_add_u32 s44, s44, s47")
    a("v_add_u32 v5, s44, v2")
    a("v_lshlrev_b32 v5, 10, v5")
    a("v_xor_b32 v6, v3, v4")
    a("v_xor_b32 v7, 4, v6")
    a("v_lshl_add_u32 v6, v6, 4, v5")
    a("v_lshl_add_u32 v7, v7, 4, v5")
    a(f"v_mov_b32 v{VX[0]}, v6")
    a(f"v_add_u32 v{VX[1]}, 7168, v7")
    a(f"v_add_u32 v{VX[2]}, {2*7168}, v6")
    a(f"v_add_u32 v{VX[3]}, {3*7168}, v7")
    a("v_and_b32 v5, 3, v2")
    a("v_lshrrev_b32 v6, 2, v2")
    a("v_lshl_add_u32 v5, v6, 3, v5")
    a("v_lshlrev_b32 v6, 1, v4")
    a("v_xor_b32 v6, v3, v6")
    a("v_lshlrev_b32 v6, 4, v6")
    a("s_lshl_b32 s48, s22, 5")
    a("v_add_u32 v5, s48, v5")
    def vw_setup(ph):
        st = 's36' if ph == 0 else 's37'
        if ph == 1: a("s_movk_i32 s37, 3072")
        a(f"v_mul_lo_u32 v7, v12, {st}")
        a("v_add_u32 v7, v7, v13")
        for b in range(4):
            h, s = b >> 1, b & 1
            a(f"s_mul_i32 s92, {st}, {16*h+4*s}")
            a(f"s_sub_u32 s92, s92, {b*1024}")
            a(f"v_add_u32 v{VW[ph][b]}, s92, v7")
    a("v_mov_b32 v12, v5")
    a("v_mov_b32 v13, v6")
    a("s_mov_b32 s93, s45")
    vw_setup(0)
    a("s_lshl_b32 s47, s20, 12")
    a("s_lshl_b32 s48, s22, 13")
    a("s_lshl_b32 s49, s21, 12")
    a("s_add_u32 s48, s48, s49")
    a("s_add_u32 s48, s48, 16384")
    a("s_cmp_eq_u32 s46, 1")
    a("s_waitcnt lgkmcnt(0)")
    a("s_cselect_b32 s28, s8, s6")
    a("s_cselect_b32 s29, s9, s7")
    a("s_add_u32 s28, s28, s43")
    a("s_addc_u32 s29, s29, 0")
    a("s_lshl_b32 s30, s36, 9")
    a("s_sub_u32 s30, s30, s43")
    a("s_mov_b32 s31, 0x20000")
    srd(a, 84, 4, 2048*1024)
    def late_setup():
        vw_setup(1)
        a("s_add_u32 s24, s6, s93")
        a("s_addc_u32 s25, s7, 0")
        a(f"s_mov_b32 s26, {512*3072}")
        a("s_sub_u32 s26, s26, s93")
        a("s_mov_b32 s27, 0x20000")
        srd(a, 32, 14, WS_END)
    LD = cfg.get('ld1', '')
    XR = cfg.get('xreuse', 1)
    def koff(s_): return s_ if s_ < 8 else ((s_-4 if s_ < 12 else s_-12) if XR else s_-8)
    def hasx(s_): return not (XR and 8 <= s_ < 12)
    def nins(s_): return 8 if hasx(s_) else 4
    def prep(s_):
        ph = s_ >> 3; base = (s_ % NSLOT)*SLOT
        a(f"s_add_u32 s45, s23, {koff(s_)}")
        a("s_and_b32 s45, s45, 7")
        a("s_lshl_b32 s46, s45, 7")
        a(f"s_mul_i32 s44, s45, {'s38' if ph == 0 else 's39'}")
        if cfg.get('nodma'): a("s_mov_b32 s46, 0x7ff00000"); a("s_mov_b32 s44, 0x7ff00000")
        a(f"s_add_u32 s49, s48, {base}")
        if hasx(s_): a(f"s_add_u32 m0, s47, {base}")
        else: a("s_mov_b32 m0, s49")
    def fire(s_):
        ph = s_ >> 3
        if hasx(s_):
            for i in range(4): a(f"buffer_load_dwordx4 v{VX[i]}, s[84:87], s46 offen offset:{i*1024} {LD} lds")
            a("s_mov_b32 m0, s49")
        S = 's[28:31]' if ph == 0 else 's[24:27]'
        for b in range(4): a(f"buffer_load_dwordx4 v{VW[ph][b]}, {S}, s44 offen offset:{b*1024} {LD} lds")
    class LQ:
        def __init__(self, q=None): self.q = list(q or [])
        def add(self, kind, key, n): self.q.append((kind, key, n))
        def allowed(self, step, also=()):
            idx = max([k for k, e in enumerate(self.q) if (e[0] == 'D' and e[1] <= step) or e[0] in also], default=-1)
            return sum(e[2] for e in self.q[idx+1:])
        def copy(self): return LQ(self.q)
    lq = LQ()
    a("s_lshl_b32 s38, s36, 6")
    a(f"s_mov_b32 s39, {64*3072}")
    rot = cfg.get('k1rot', 1)
    if rot == 0: a("s_mov_b32 s23, 0")
    elif rot == 1: a("s_and_b32 s23, s18, 7")
    elif rot == 2: a("s_and_b32 s23, s18, 1"); a("s_lshl_b32 s23, s23, 2")
    elif rot == 3: a("s_and_b32 s23, s18, 3"); a("s_lshl_b32 s23, s23, 1")
    elif rot == 4: a("s_mov_b32 s23, s16")
    elif rot == 5:
        a("s_and_b32 s23, s16, 3"); a("s_lshl_b32 s23, s23, 1"); a("s_lshr_b32 s43, s16, 2"); a("s_add_u32 s23, s23, s43")
    elif rot == 6:
        a("s_and_b32 s23, s18, 1"); a("s_lshl_b32 s23, s23, 2"); a("s_add_u32 s23, s23, s16")
    elif rot == 7:
        a("s_and_b32 s23, s18, 7"); a("s_lshl_b32 s43, s16, 1"); a("s_add_u32 s23, s23, s43")
    for st_ in (0, 1):
        prep(st_); fire(st_); lq.add('D', st_, 8)
    late_setup()
    ts(1)
    prep(2)
    a(f"s_waitcnt vmcnt({lq.allowed(0)})")
    a("s_barrier")
    ts(2)
    fire(2); lq.add('D', 2, 8)
    prep(3); fire(3); lq.add('D', 3, 8)
    NW = 0
    if cfg.get('l2w', 2) == 2:
        NW = 8
        lq.add('W', 0, 8)
        a("s_lshl_b32 s43, s18, 7")
        a("s_and_b32 s44, s19, 3")
        a("s_lshl_b32 s44, s44, 5")
        a("s_add_u32 s43, s43, s44")
        a("s_lshl_b32 s44, s20, 3")
        a("s_add_u32 s43, s43, s44")
        a("s_lshl_b32 s43, s43, 10")
        a("s_add_u32 s44, s23, 4")
        a("s_lshl_b32 s44, s44, 7")
        a("v_and_b32 v2, 31, v1")
        a("v_lshlrev_b32 v2, 4, v2")
        a("v_add_u32 v2, s44, v2")
        a("v_and_b32 v2, 1023, v2")
        a("v_lshrrev_b32 v3, 5, v1")
        a("v_lshl_add_u32 v2, v3, 10, v2")
        for q in range(4):
            a(f"buffer_load_dwordx4 {r4(32+4*q)}, v2, s[84:87], s43 offen offset:{(q%2)*2048}")
            if q == 1: a("s_add_u32 s43, s43, 4096")
        a("s_mul_i32 s44, s19, 3")
        a("s_lshr_b32 s44, s44, 1")
        a("s_lshl_b32 s44, s44, 7")
        a("s_cmp_eq_u32 s19, 14")
        a("s_cselect_b32 s44, 2816, s44")
        a("s_and_b32 s43, s18, 7")
        a("s_lshl_b32 s43, s43, 6")
        a("s_lshl_b32 s45, s20, 4")
        a("s_add_u32 s43, s43, s45")
        a("s_mul_i32 s43, s43, 3072")
        a("s_add_u32 s43, s43, s44")
        srd(a, 80, 6, 512*3072)
        a("v_lshrrev_b32 v2, 4, v1")
        a("v_mul_u32_u24 v2, 3072, v2")
        a("v_and_b32 v3, 15, v1")
        a("v_lshl_add_u32 v2, v3, 4, v2")
        for q in range(4):
            a(f"buffer_load_dwordx4 {r4(48+4*q)}, v2, s[80:83], s43 offen")
            if q < 3: a(f"s_add_u32 s43, s43, {4*3072}")
    PF3 = cfg.get('pf', 2) == 3
    if PF3:
        srd(a, 92, 10, 2048*4096)
        a("s_lshr_b32 s90, s16, 1")
        a("s_lshl_b32 s90, s90, 21")
        a("s_lshl_b32 s43, s17, 16")
        a("s_add_u32 s90, s90, s43")
        a("s_lshl_b32 s43, s20, 14")
        a("s_add_u32 s90, s90, s43")
        a("v_lshlrev_b32 v8, 4, v1")
    for b in range(8):
        prep(b+4)
        a(f"s_waitcnt vmcnt({lq.allowed(b+1)})")
        if cfg.get('tsl') and b < 4: ts(3 + b)
        a("s_barrier")
        fire(b+4); lq.add('D', b+4, nins(b+4))
        if PF3 and b >= 4:
            for q in range(4): a(f"buffer_load_dwordx4 {r4(64+4*q)}, v8, s[92:95], s90 offen offset:{q*1024}")
            a("s_add_u32 s90, s90, 4096")
            lq.add('F', 0, 4)
    a("s_cmp_eq_u32 s19, 14")
    a(f"s_cbranch_scc1 {L('lpure')}")
    a("s_lshl_b32 s43, s20, 12")
    a(f"s_add_u32 s43, s43, {EP+1024}")
    a("v_lshlrev_b32 v5, 4, v1")
    a("v_add_u32 v6, s43, v5")
    HP, HC, HT = 32, 48, 80
    C0, C1, C2 = 90, 92, 94
    for r in (C0, C0+1): a(f"v_mov_b32 v{r}, {hex(f2u(GELU_C0))}")
    for r in (C1, C1+1): a(f"v_mov_b32 v{r}, {hex(f2u(GELU_C1))}")
    for r in (C2, C2+1): a(f"v_mov_b32 v{r}, 1.0")
    a("s_lshl_b32 s43, s18, 2")
    a("s_lshl_b32 s44, s21, 1")
    a("s_add_u32 s43, s43, s44")
    a("s_mul_i32 s43, s43, 56")
    a("s_lshl_b32 s44, s19, 2")
    a("s_add_u32 s43, s43, s44")
    a("s_lshl_b32 s44, s22, 1")
    a("s_add_u32 s43, s43, s44")
    a("s_lshl_b32 s43, s43, 10")
    a(f"s_add_u32 s52, s43, {WS_H1}")
    a(f"s_add_u32 s53, s52, {56*1024}")
    def z1_block(q):
        if not Z1K1: return
        a(f"ds_read_b128 {r4(HP)}, v6 offset:{q*1024}")
        a("s_waitcnt lgkmcnt(0)")
        for e in range(4):
            a(f"v_lshlrev_b32 v{HC+2*e}, 16, v{HP+e}")
            a(f"v_and_b32 v{HC+2*e+1}, 0xffff0000, v{HP+e}")
        gelu_pairs(a, [HC+2*e for e in range(4)], HT, C0, C1, C2, G=4)
        t = HP + 4 + 4*(q % 2)
        for e in range(4): a(f"v_cvt_pk_bf16_f32 v{t+e}, v{HC+2*e}, v{HC+2*e+1}")
        a(f"buffer_store_dwordx4 {r4(t)}, v5, s[32:35], {'s52' if q < 2 else 's53'} offen offset:{(q%2)*1024} {FL[cfg.get('sth1', 2)]}")
    a("s_cmp_lt_u32 s20, 2")
    a(f"s_cbranch_scc1 {L('lx')}")
    l2 = lq.copy()
    for b in (8, 9, 10, 11):
        prep(b+4)
        a(f"s_waitcnt vmcnt({l2.allowed(b+1)})")
        a("s_barrier")
        fire(b+4); l2.add('D', b+4, nins(b+4))
        z1_block(b-8)
        if Z1K1: l2.add('S', 0, 1)
    a(f"s_branch {L('lb12m')}")
    a.label(L('lpure'))
    l3 = lq.copy()
    for b in (8, 9, 10, 11):
        prep(b+4)
        a(f"s_waitcnt vmcnt({l3.allowed(b+1)})")
        a("s_barrier")
        fire(b+4); l3.add('D', b+4, nins(b+4))
    a.label(L('lb12m'))
    PFN = {2: 8, 4: 4, 5: 2, 6: 4}.get(cfg.get('pf', 2), 0)
    PF6 = cfg.get('pf', 2) == 6
    if PF6:
        srd(a, 80, 10, 2048*4096)
        a("s_lshr_b32 s43, s16, 1")
        a("s_lshl_b32 s43, s43, 21")
        a("s_lshl_b32 s44, s17, 16")
        a("s_add_u32 s43, s43, s44")
        a("s_and_b32 s44, s16, 1")
        a("s_lshl_b32 s44, s44, 11")
        a("s_add_u32 s43, s43, s44")
        a("s_and_b32 s44, s20, 1")
        a("s_lshl_b32 s44, s44, 15")
        a("s_add_u32 s43, s43, s44")
        a("v_and_b32 v8, 63, v1")
        a("v_lshlrev_b32 v8, 4, v8")
        if cfg.get('k2rotmode', 5) in (9, 10, 11):
            mul = {9: 4, 10: 2, 11: 1}[cfg['k2rotmode']]
            a("s_lshr_b32 s44, s17, 2")
            a(f"s_mul_i32 s44, s44, {mul*128}")
            a("s_and_b32 s45, s16, 1")
            a("s_lshl_b32 s45, s45, 11")
            a("s_sub_u32 s43, s43, s45")
            a("s_add_u32 s44, s44, s45")
            a("v_add_u32 v9, s44, v8")
            a("v_and_b32 v8, 4095, v9")
            a("v_add_u32 v9, 1024, v9")
            a("v_and_b32 v9, 4095, v9")
    elif PFN == 2:
        srd(a, 80, 10, 2048*4096)
        a("s_lshl_b32 s43, s2, 14")
        a("s_and_b32 s44, s20, 1")
        a("s_lshl_b32 s44, s44, 13")
        a("s_add_u32 s43, s43, s44")
        a(f"s_add_u32 s43, s43, {4<<20}")
        a("v_lshlrev_b32 v8, 4, v1")
    elif PFN:
        srd(a, 80, 10, 2048*4096)
        a("s_lshr_b32 s43, s16, 1")
        a("s_lshl_b32 s43, s43, 21")
        a("s_lshl_b32 s44, s17, 16")
        a("s_add_u32 s43, s43, s44")
        if PFN == 8:
            a("s_and_b32 s44, s20, 1")
            a("s_lshl_b32 s44, s44, 15")
        else:
            a("s_and_b32 s44, s16, 1")
            a("s_lshl_b32 s44, s44, 15")
            a("s_add_u32 s43, s43, s44")
            a("s_and_b32 s44, s20, 1")
            a("s_lshl_b32 s44, s44, 14")
        a("s_add_u32 s43, s43, s44")
        a("v_lshlrev_b32 v8, 4, v1")
    def pf_batch():
        if PF6:
            wrap = cfg.get('k2rotmode', 5) in (9, 10, 11)
            for q in range(4):
                if wrap: a(f"buffer_load_dwordx4 {r4(64+4*q)}, v{8+(q%2)}, s[80:83], s43 offen")
                else: a(f"buffer_load_dwordx4 {r4(64+4*q)}, v8, s[80:83], s43 offen offset:{(q%2)*1024}")
                if q % 2 == 1: a("s_add_u32 s43, s43, 4096")
            return
        for q in range(PFN):
            a(f"buffer_load_dwordx4 {r4(64+4*q)}, v8, s[80:83], s43 offen offset:{(q%4)*1024}")
            if q % 4 == 3 or q == PFN-1: a(f"s_add_u32 s43, s43, {1024*min(4, PFN)}")
    PE = cfg.get('pfearly', 0)
    sched = {0: [0, 1, 1, 1, 1], 1: [4, 0, 0, 0, 0], 2: [2, 2, 0, 0, 0], 3: [1, 1, 1, 1, 0], 4: [0, 4, 0, 0, 0], 5: [0, 2, 2, 0, 0], 6: [0, 0, 1, 1, 2], 7: [0, 0, 0, 2, 2], 8: [0, 0, 0, 0, 4], 9: [0, 0, 2, 1, 1]}[PE]
    done = 0
    for _ in range(sched[0]): pf_batch()
    done += sched[0]
    a(f"s_waitcnt vmcnt({16 + done*PFN})")
    a("s_barrier")
    for _ in range(sched[1]): pf_batch()
    done += sched[1]
    a(f"s_waitcnt vmcnt({8 + done*PFN})")
    a("s_barrier")
    for _ in range(sched[2]): pf_batch()
    done += sched[2]
    a(f"s_waitcnt vmcnt({done*PFN})")
    a("s_barrier")
    for _ in range(sched[3]): pf_batch()
    a("s_barrier")
    for _ in range(sched[4]): pf_batch()
    if cfg.get('cpf2', 1):
        lab2 = L('nocp2')
        a("s_cmp_eq_u32 s20, 3")
        a(f"s_cbranch_scc0 {lab2}")
        code_prefetch(a, 'gm_k2_kernel', 'gm_code_end', 's17', 1, 'k1b', vtmp=100)
        a.label(lab2)
    if cfg.get('xw', 0):
        a(f"s_mul_i32 s43, s2, {cfg['xw']*1024}")
        a(f"s_add_u32 s43, s43, 0x2000000")
        a(f"s_mov_b32 s90, s14"); a("s_mov_b32 s91, s15")
        a("s_mov_b32 s92, 0x8000000"); a("s_mov_b32 s93, 0x20000")
        a("s_mov_b32 s88, s14"); a("s_mov_b32 s89, s15"); a("s_mov_b32 s90, 0x8000000"); a("s_mov_b32 s91, 0x20000")
        a("s_and_b32 s44, s20, 1")
        a(f"s_mul_i32 s44, s44, {cfg['xw']*512}")
        a("s_add_u32 s43, s43, s44")
        for q in range(cfg['xw']//2):
            a(f"buffer_store_dwordx4 v[64:67], v8, s[88:91], s43 offen offset:{(q%4)*1024} {'sc1' if cfg.get('xwsc',1) else ''}")
            if q % 4 == 3: a("s_add_u32 s43, s43, 4096")
    if cfg.get('pfwait', 1): a("s_waitcnt vmcnt(0)")
    a(f"s_branch {L('fin2') if not cfg.get('pfwait', 1) else L('fin')}")
    a.label(L('lx'))
    a("s_lshl_b32 s43, s20, 6")
    a("v_add_u32 v9, s43, v1")
    a("v_lshlrev_b32 v7, 4, v9")
    a("s_mul_i32 s54, s18, 28672")
    a(f"s_add_u32 s54, s54, {WS_STAT}")
    a("s_mov_b32 s88, 0")
    P = 96
    def poll_loads():
        a("s_mov_b32 s43, s54")
        for q in range(14):
            if q % 2 == 0 and q: a("s_add_u32 s43, s43, 4096")
            a(f"buffer_load_dwordx4 {r4(P+4*q)}, v7, s[32:35], s43 offen offset:{(q%2)*2048} {XS}")
    l1 = lq.copy()
    for b in range(8, PSTEP+3):
        if b+4 < 16: prep(b+4)
        a(f"s_waitcnt vmcnt({l1.allowed(b+1)})")
        a("s_barrier")
        if b+4 < 16:
            fire(b+4); l1.add('D', b+4, nins(b+4))
        if b == PSTEP:
            poll_loads(); l1.add('P', 0, 14)
        if b < 12:
            z1_block(b-8)
            if Z1K1: l1.add('S', 0, 1)
    if not cfg.get('tsl'): ts(3)
    a(f"s_waitcnt vmcnt({l1.allowed(PSTEP+4, also=('P',))})")
    a(f"s_branch {L('pchk1')}")
    a.label(L('pchk'))
    a("s_waitcnt vmcnt(0)")
    a.label(L('pchk1'))
    a(f"v_max_u32 v10, v{P}, v{P+1}")
    for q in range(2, 56, 2): a(f"v_max3_u32 v10, v10, v{P+q}, v{P+q+1}")
    a("v_cmp_eq_u32 vcc, -1, v10")
    a("s_add_u32 s88, s88, 1")
    a("s_cmp_ge_u32 s88, 0x20000")
    a(f"s_cbranch_scc1 {L('polled')}")
    a(f"s_cbranch_vccz {L('polled')}")
    poll_loads()
    a(f"s_branch {L('pchk')}")
    a.label(L('polled'))
    if not cfg.get('tsl'): ts(5)
    if ts.on: a("s_mov_b32 s62, s88")
    for q in range(1, 28): a(f"v_pk_add_f32 {r2(P)}, {r2(P)}, {r2(P+2*q)}")
    m, e2 = P, P+1
    a(f"v_mul_f32 v{m}, {hex(f2u(1.0/896))}, v{m}")
    a(f"v_mul_f32 v{e2}, {hex(f2u(1.0/896))}, v{e2}")
    a(f"v_fma_f32 v{e2}, -v{m}, v{m}, v{e2}")
    a(f"v_max_f32 v{e2}, 0, v{e2}")
    a(f"v_add_f32 v{e2}, {hex(f2u(1e-5))}, v{e2}")
    a(f"v_rsq_f32 v{e2}, v{e2}")
    a(f"v_mul_f32 v{m}, v{m}, v{e2}")
    a(f"v_sub_f32 v{m}, 0, v{m}")
    a("v_lshlrev_b32 v7, 3, v9")
    a(f"v_add_u32 v7, {EP}, v7")
    a(f"ds_write_b64 v7, {r2(m)}")
    a("s_waitcnt lgkmcnt(0)")
    a("s_barrier")
    for b in range(PSTEP+4, 16):
        if b+1 <= 15: a("s_waitcnt vmcnt(0)" if b+1 == 15 else f"s_waitcnt vmcnt({8*(15-(b+1))})")
        a("s_barrier")
    a(f"s_branch {L('fin')}")
    a.label(L('spare'))
    def spare_cpf():
        if cfg.get('cpf', 1):
            a("s_and_b32 s43, s17, 1")
            a("s_lshl_b32 s43, s43, 3")
            a("s_add_u32 s43, s43, s20")
            code_prefetch(a, 'gm_k1_kernel', 'gm_code_end', 's43', 3, 'k1', vtmp=200)
    if cfg.get('cpfirst', 1): spare_cpf()
    a("s_waitcnt lgkmcnt(0)")
    srd(a, 32, 14, WS_END)
    if cfg.get('tlbw', 0):
        G = cfg['tlbw']
        a(f"v_lshlrev_b32 v20, {G}, v1")
        a("s_cmp_lt_u32 s20, 6")
        a(f"s_cbranch_scc0 {L('tl1')}")
        a(f"s_lshl_b32 s43, s20, {G+6}")
        if WS_BASE: a(f"s_add_u32 s43, s43, {WS_BASE}")
        a("buffer_load_dword v21, v20, s[32:35], s43 offen")
        a(f"s_branch {L('tl2')}")
        a.label(L('tl1'))
        a(f"s_load_dwordx2 s[90:91], s[0:1], {KA_OUT}")
        a("s_waitcnt lgkmcnt(0)")
        a("s_mov_b32 s84, s90"); a("s_mov_b32 s85, s91"); a(f"s_mov_b32 s86, {2048*1024}"); a("s_mov_b32 s87, 0x20000")
        a("buffer_load_dword v21, v20, s[84:87], 0 offen")
        a.label(L('tl2'))
    a("s_mul_i32 s43, s18, 28672")
    a("s_lshl_b32 s44, s20, 10")
    a("s_add_u32 s43, s43, s44")
    a(f"s_add_u32 s43, s43, {WS_STAT}")
    a("v_lshlrev_b32 v2, 4, v1")
    for r in range(4, 8): a(f"v_mov_b32 v{r}, -1")
    for q in range(3):
        a("buffer_store_dwordx4 v[4:7], v2, s[32:35], s43 offen sc1")
        a("s_add_u32 s43, s43, 8192")
    a("s_cmp_lt_u32 s20, 4")
    a(f"s_cbranch_scc0 {L('rs3')}")
    a("buffer_store_dwordx4 v[4:7], v2, s[32:35], s43 offen sc1")
    a.label(L('rs3'))
    if cfg.get('fuse', 1):
        lab = L('zf')
        a("s_cmp_eq_u32 s18, 0")
        a(f"s_cbranch_scc0 {lab}")
        a("s_cmp_ge_u32 s20, 5")
        a(f"s_cbranch_scc0 {lab}")
        a("s_sub_u32 s43, s20, 5")
        a("s_lshl_b32 s43, s43, 10")
        a(f"s_add_u32 s43, s43, {WS_FLAG}")
        for r in range(4, 8): a(f"v_mov_b32 v{r}, 0")
        a("buffer_store_dwordx4 v[4:7], v2, s[32:35], s43 offen sc1")
        a.label(lab)
    a("s_waitcnt vmcnt(0)")
    a("s_barrier")
    a("s_cmp_eq_u32 s20, 0")
    a(f"s_cbranch_scc0 {L('rs4')}")
    a("s_lshl_b32 s43, s18, 2")
    a("v_mov_b32 v2, s43")
    a("v_mov_b32 v3, 1")
    a("s_mov_b64 s[52:53], exec")
    a("s_mov_b64 exec, 1")
    a("global_store_dword v2, v3, s[12:13] sc1")
    a("s_mov_b64 exec, s[52:53]")
    a.label(L('rs4'))
    if not cfg.get('cpfirst', 1): spare_cpf()
    a("s_lshl_b32 s18, s18, 7")
    a("s_lshl_b32 s43, s20, 4")
    a("s_add_u32 s18, s18, s43")
    srd(a, 24, 4, 2048*1024)
    srd(a, 28, 58, 1024)
    srd(a, 32, 14, WS_END)
    a("v_and_b32 v2, 15, v1")
    a("v_lshrrev_b32 v3, 4, v1")
    a("v_lshlrev_b32 v4, 4, v2")
    for q in range(4): a(f"buffer_load_dwordx4 {r4(16+4*q)}, v4, s[28:31], 0 offen offset:{256*q}")
    a("v_add_u32 v5, s18, v3")
    a("v_lshl_add_u32 v5, v5, 10, v4")
    for it in range(4):
        for q in range(4): a(f"buffer_load_dwordx4 {r4(64+16*it+4*q)}, v5, s[24:27], 0 offen offset:{256*q}")
        a("v_add_u32 v5, 4096, v5")
    a("v_add_u32 v6, s18, v3")
    a("v_lshlrev_b32 v6, 2, v6")
    npf2 = 0
    for it in range(4):
        a(f"s_waitcnt vmcnt({4*(3-it)+npf2})")
        b = 64+16*it
        a(f"v_dot2_f32_bf16 v8, v{b}, v16, 0")
        for r in range(1, 16): a(f"v_dot2_f32_bf16 v8, v{b+r}, v{16+r}, v8")
        a("s_nop 2")
        for sh in ('row_shr:8', 'row_shr:4', 'row_shr:2', 'row_shr:1'):
            a(f"v_add_f32_dpp v8, v8, v8 {sh} row_mask:0xf bank_mask:0xf bound_ctrl:1")
        a(f"v_mul_f32 v8, {hex(f2u(-LOG2E))}, v8")
        a("v_exp_f32 v8, v8")
        a("v_add_f32 v8, 1.0, v8")
        a("v_rcp_f32 v8, v8")
        a(f"v_mov_b32 v{32+it}, v8")
    a("v_cmp_eq_u32 s[52:53], 15, v2")
    a("s_mov_b64 s[54:55], exec")
    a("s_and_b64 exec, exec, s[52:53]")
    a(f"s_mov_b32 s51, {WS_G}")
    for it in range(4):
        a(f"buffer_store_dword v{32+it}, v6, s[32:35], s51 offen offset:{16*it}")
    a("s_mov_b64 exec, s[54:55]")
    if cfg.get('pf', 1):
        a("s_lshr_b32 s48, s18, 4")
        a("v_lshlrev_b32 v9, 4, v1")
        srd(a, 36, 60, 512*1024)
        srd(a, 44, 56, 896*1024)
        a("s_lshl_b32 s49, s48, 12")
        for q in range(4): a(f"buffer_load_dwordx4 {r4(128+4*q)}, v9, s[36:39], s49 offen offset:{q*1024}")
        a("s_mul_i32 s49, s48, 7168")
        for q in range(7):
            if q == 4: a("s_add_u32 s49, s49, 4096")
            a(f"buffer_load_dwordx4 {r4(144+4*q)}, v9, s[44:47], s49 offen offset:{(q%4)*1024}")
        srd(a, 80, 10, 2048*4096)
        if cfg.get('pf', 2) == 5:
            a("s_lshl_b32 s43, s48, 15")
            a("s_mov_b32 s50, 0")
            a.label(L('pfl'))
            for q in range(8):
                a(f"buffer_load_dwordx4 {r4(64+4*q)}, v9, s[80:83], s43 offen offset:{(q%4)*1024}")
                if q % 4 == 3: a("s_add_u32 s43, s43, 4096")
            a("s_waitcnt vmcnt(24)")
            a("s_add_u32 s50, s50, 1")
            a("s_cmp_lt_u32 s50, 4")
            a(f"s_cbranch_scc1 {L('pfl')}")
            a("s_lshl_b32 s43, s2, 14")
            a("s_lshl_b32 s44, s20, 11")
            a("s_add_u32 s43, s43, s44")
            a(f"s_add_u32 s43, s43, {4<<20}")
            for q in range(2): a(f"buffer_load_dwordx4 {r4(64+4*q)}, v9, s[80:83], s43 offen offset:{q*1024}")
        else:
            a("s_lshr_b32 s43, s16, 1")
            a("s_lshl_b32 s43, s43, 21")
            a("s_lshl_b32 s44, s17, 16")
            a("s_add_u32 s43, s43, s44")
            a("s_lshl_b32 s44, s20, 13")
            a("s_add_u32 s43, s43, s44")
            for q in range(8):
                a(f"buffer_load_dwordx4 {r4(64+4*q)}, v9, s[80:83], s43 offen offset:{(q%4)*1024}")
                if q == 3: a("s_add_u32 s43, s43, 4096")
        a("s_waitcnt vmcnt(0)")
    a.label(L('fin'))
    if ts.on: a("s_waitcnt vmcnt(0)")
    if not cfg.get('tsc'): ts(7)
    ts.flush()
    a.label(L('fin2'))
    a.label(L('end'))
    a("s_endpgm")
    if cfg.get('lfirst', 1):
        pos = {i.text.strip()[:-1]: k for k, i in enumerate(a.items) if i.cls == 'label'}
        c0, l0, s0 = pos[L('compute')], pos[L('loader')], pos[L('spare')]
        a.items = a.items[:c0] + a.items[l0:s0] + a.items[c0:l0] + a.items[s0:]
    a.check_protected(list(range(4, 16)) + list(range(56, 62)))
    n = a.fix_hazards()
    return a, n
```

```python
from asmlib import *
from common import *

NAME = 'gm_k1_kernel'
SLOT = 32768
NSLOT = 4
EP = NSLOT*SLOT
LDS_BYTES = EP + 1024 + 16384
GRID = 256
BLOCK = 512
VGPRS = 256
HUGE = 0x7ff00000
SENT = 0xffffffff

ACC = 16
X = [128, 144]
W = [160, 176]
XA = [216, 217]
WA = [218+i for i in range(7)]
PK = 192
VX = [16+i for i in range(4)]
VW = [[20+i for i in range(4)], [24+i for i in range(4)]]
def acc(n, tt): return ACC + (n*4+tt)*4
def r4(b): return f"v[{b}:{b+3}]"
def r2(b): return f"v[{b}:{b+1}]"

def gelu_pairs(a, regs, t0, cpair0, cpair1, one, G=4):
    for k in range(0, len(regs), G):
        grp = regs[k:k+G]
        T = [t0 + 2*i for i in range(len(grp))]
        for x, t in zip(grp, T): a(f"v_pk_mul_f32 {r2(t)}, {r2(x)}, {r2(x)}")
        for x, t in zip(grp, T): a(f"v_pk_fma_f32 {r2(t)}, {r2(t)}, {r2(cpair1)}, {r2(cpair0)}")
        for x, t in zip(grp, T): a(f"v_pk_mul_f32 {r2(t)}, {r2(t)}, {r2(x)}")
        for x, t in zip(grp, T):
            a(f"v_exp_f32 v{t}, v{t}"); a(f"v_exp_f32 v{t+1}, v{t+1}")
        for x, t in zip(grp, T): a(f"v_pk_add_f32 {r2(t)}, {r2(t)}, {r2(one)}")
        for x, t in zip(grp, T):
            a(f"v_rcp_f32 v{t}, v{t}"); a(f"v_rcp_f32 v{t+1}, v{t+1}")
        for x, t in zip(grp, T): a(f"v_pk_mul_f32 {r2(x)}, {r2(x)}, {r2(t)}")

def build(cfg):
    a = Asm()
    L = lambda s: f"K1_{s}"
    FL = {0: '', 1: 'sc0 sc1', 2: 'sc1'}
    ST = FL[cfg.get('st1', 2)]
    XS = 'sc1'
    PSTEP = cfg.get('pstep', 10)
    a(f"s_cmp_ge_u32 s2, 256")
    a(f"s_cbranch_scc1 {L('end')}")
    ts = Stamper(a, cfg, 0)
    ts.init()
    for i in range(8): ts(i)
    a(f"s_load_dwordx4 s[4:7], s[0:1], {KA_X}")
    a(f"s_load_dwordx4 s[8:11], s[0:1], {KA_WIN}")
    a(f"s_load_dwordx4 s[12:15], s[0:1], {KA_DBG}")
    a(f"s_load_dwordx4 s[56:59], s[0:1], {KA_WOUT}")
    a(f"s_load_dwordx2 s[60:61], s[0:1], {KA_WO}")
    a("v_lshrrev_b32 v2, 6, v0")
    a("v_and_b32 v1, 63, v0")
    a("v_readfirstlane_b32 s20, v2")
    a("s_and_b32 s16, s2, 7")
    a("s_lshr_b32 s17, s2, 3")
    a("s_lshr_b32 s18, s16, 2")
    a("s_lshl_b32 s18, s18, 3")
    a("s_and_b32 s43, s16, 3")
    a("s_mul_i32 s44, s43, 30")
    a("s_add_u32 s44, s44, s17")
    a("s_lshr_b32 s19, s44, 3")
    a("s_and_b32 s44, s44, 7")
    a("s_lshl_b32 s43, s43, 1")
    a("s_add_u32 s43, s43, s17")
    a("s_sub_u32 s43, s43, 30")
    a("s_cmp_ge_u32 s17, 30")
    a("s_cselect_b32 s44, s43, s44")
    a("s_add_u32 s18, s18, s44")
    a("s_cmp_ge_u32 s17, 30")
    a(f"s_cbranch_scc1 {L('spare')}")
    a("s_cmp_lt_u32 s20, 4")
    a(f"s_cbranch_scc1 {L('compute')}")
    a(f"s_branch {L('loader')}") if not cfg.get('lfirst', 1) else None
    a.label(L('compute'))
    a("s_lshr_b32 s21, s20, 1")
    a("s_and_b32 s22, s20, 1")
    a("s_mul_i32 s43, s18, 14")
    a("s_add_u32 s43, s43, s19")
    a("s_lshl_b32 s43, s43, 11")
    a("s_lshl_b32 s44, s21, 10")
    a("s_add_u32 s43, s43, s44")
    a("s_lshl_b32 s44, s22, 3")
    a("s_add_u32 s43, s43, s44")
    a(f"s_add_u32 s62, s43, {WS_STAT}")
    a("v_and_b32 v2, 15, v1")
    a("v_lshrrev_b32 v3, 4, v1")
    a("v_lshrrev_b32 v4, 1, v2")
    a("v_xor_b32 v4, v4, v3")
    a("s_lshl_b32 s43, s21, 6")
    a("v_add_u32 v5, s43, v2")
    a("v_lshlrev_b32 v5, 7, v5")
    a(f"v_lshl_add_u32 v{XA[0]}, v4, 4, v5")
    a(f"v_xor_b32 v{XA[1]}, 64, v{XA[0]}")
    a("v_lshrrev_b32 v4, 2, v1")
    a("v_and_b32 v4, 7, v4")
    a("v_lshrrev_b32 v5, 5, v1")
    a("v_lshlrev_b32 v5, 11, v5")
    a("v_lshl_add_u32 v5, v4, 7, v5")
    a("v_lshrrev_b32 v4, 1, v4")
    a("v_lshl_add_u32 v5, v4, 5, v5")
    a("v_and_b32 v4, 3, v1")
    a("v_lshl_add_u32 v5, v4, 3, v5")
    a("s_and_b32 s48, s19, 1")
    a("s_lshl_b32 s48, s48, 1")
    a("s_mul_i32 s49, s22, 3")
    a("s_add_u32 s48, s48, s49")
    a("s_lshl_b32 s49, s22, 1")
    a("s_lshl_b32 s50, s22, 2")
    for n in range(7):
        if n < 2: a(f"s_add_u32 s43, s49, {n}"); a(f"s_add_u32 s44, s50, {n}")
        elif n < 4: a(f"s_add_u32 s43, s49, {4+n-2}"); a(f"s_add_u32 s44, s50, {n}")
        else: a(f"s_add_u32 s43, s48, {n-4}"); a(f"s_add_u32 s44, s49, {min(n-4,1)}")
        a("s_cmp_eq_u32 s19, 14")
        a("s_cselect_b32 s43, s44, s43")
        a("s_and_b32 s44, s43, 3")
        a("s_lshl_b32 s44, s44, 5")
        a("s_lshr_b32 s43, s43, 2")
        a("s_lshl_b32 s43, s43, 12")
        a("s_add_u32 s43, s43, 16384")
        a(f"v_xor_b32 v{WA[n]}, s44, v5")
        a(f"v_add_u32 v{WA[n]}, s43, v{WA[n]}")
    for r in range(ACC, ACC+112): a(f"v_mov_b32 v{r}, 0")
    def tiles(ph): return range(4) if ph == 0 else range(4, 7)
    def reads(ph, ks, buf):
        out = []
        for tt in range(4):
            out.append(f"ds_read_b128 {r4(X[buf]+4*tt)}, v{XA[ks]} offset:{tt*2048}")
        for q, n in enumerate(tiles(ph)):
            for s in range(2):
                out.append(f"ds_read_b64_tr_b16 {r2(W[buf]+4*q+2*s)}, v{WA[n]} offset:{ks*8192+s*1024}")
        return out
    def mfmas(ph, buf):
        if cfg.get('nomfma'): return ["s_nop 0"]*4
        return [f"v_mfma_f32_16x16x32_bf16 {r4(acc(n,tt))}, {r4(W[buf]+4*q)}, {r4(X[buf]+4*tt)}, {r4(acc(n,tt))}"
                for q, n in enumerate(tiles(ph)) for tt in range(4)]
    a("s_mov_b32 s40, 0")
    a("s_mov_b32 s41, 0")
    a("s_waitcnt lgkmcnt(0)")
    srd(a, 32, 14, WS_END)
    if cfg.get('l2w', 2) == 1:
        srd(a, 24, 4, 2048*1024)
        srd(a, 28, 6, 512*3072)
        a("s_lshl_b32 s43, s18, 7")
        a("s_and_b32 s44, s19, 3")
        a("s_lshl_b32 s44, s44, 5")
        a("s_add_u32 s43, s43, s44")
        a("s_lshl_b32 s44, s20, 3")
        a("s_add_u32 s43, s43, s44")
        a("s_lshl_b32 s43, s43, 10")
        a("s_and_b32 s44, s18, 7")
        a("s_add_u32 s44, s44, 4")
        a("s_lshl_b32 s44, s44, 7")
        a("v_and_b32 v2, 31, v1")
        a("v_lshlrev_b32 v2, 4, v2")
        a("v_add_u32 v2, s44, v2")
        a("v_and_b32 v2, 1023, v2")
        a("v_lshrrev_b32 v3, 5, v1")
        a("v_lshl_add_u32 v2, v3, 10, v2")
        for q in range(4):
            a(f"buffer_load_dwordx4 {r4(PK+4*q)}, v2, s[24:27], s43 offen offset:{(q%2)*2048}")
            if q == 1: a("s_add_u32 s43, s43, 4096")
        a("s_mul_i32 s44, s19, 3")
        a("s_lshr_b32 s44, s44, 1")
        a("s_lshl_b32 s44, s44, 7")
        a("s_cmp_eq_u32 s19, 14")
        a("s_cselect_b32 s44, 2816, s44")
        a("s_and_b32 s43, s18, 7")
        a("s_lshl_b32 s43, s43, 6")
        a("s_lshl_b32 s45, s20, 4")
        a("s_add_u32 s43, s43, s45")
        a("s_mul_i32 s43, s43, 3072")
        a("s_add_u32 s43, s43, s44")
        a("v_lshrrev_b32 v2, 4, v1")
        a("v_mul_u32_u24 v2, 3072, v2")
        a("v_and_b32 v3, 15, v1")
        a("v_lshl_add_u32 v2, v3, 4, v2")
        for q in range(4):
            a(f"buffer_load_dwordx4 {r4(PK+4*q)}, v2, s[28:31], s43 offen")
            if q < 3: a(f"s_add_u32 s43, s43, {4*3072}")
    ts(1)
    a("s_barrier")
    ts(2)
    for t in reads(0, 0, 0): a(t)
    def adv_addr(regs):
        return [f"v_add_u32 v{r}, s51, v{r}" for r in regs]
    def loop(ph):
        if cfg.get('tsc') == ph + 1:
            a("s_waitcnt lgkmcnt(0)")
            for it in range(8): loop_body(ph, it)
            return
        loop_body(ph, None)
    def loop_body(ph, it):
        lab = L(f'loop{ph}')
        if it is None:
            a("s_waitcnt lgkmcnt(0)")
            a.label(lab)
        else:
            a(f"s_memtime s[{64+2*it}:{65+2*it}]")
        if ph == 1:
            if it is None or it == cfg.get('h1it', 4):
                if cfg.get('h1it', 4) >= 0 and not cfg.get('z1k1', 0):
                    a("s_cmp_eq_u32 s40, s89")
                    a(f"s_cbranch_scc1 {L('h1blk')}")
                    a.label(L('h1back'))
            if it is None or it == PSTEP-4:
                a("s_cmp_eq_u32 s40, s62")
                a(f"s_cbranch_scc1 {L('zfin')}")
                a.label(L('zback'))
        sal = ["s_cmp_eq_u32 s41, %d" % (NSLOT-1), f"s_mov_b32 s51, {SLOT}", f"s_cselect_b32 s51, {(-(NSLOT-1)*SLOT) & 0xffffffff}, s51",
               "s_add_u32 s41, s41, 1", f"s_and_b32 s41, s41, {NSLOT-1}", "s_add_u32 s40, s40, 1"]
        for t in interleave(mfmas(ph, 0), reads(ph, 1, 1) + sal, per=cfg.get('k1per', 2)): a(t)
        a("s_waitcnt lgkmcnt(0)")
        a("s_barrier")
        rd = reads(ph, 0, 0)
        nW = len(list(tiles(ph)))
        fill = [f"v_add_u32 v{XA[0]}, s51, v{XA[0]}"] + rd[:4] + [f"v_add_u32 v{XA[1]}, s51, v{XA[1]}"]
        cur = list(tiles(ph)); oth = [n for n in range(7) if n not in cur]
        for q, n in enumerate(cur):
            fill.append(f"v_add_u32 v{WA[n]}, s51, v{WA[n]}")
            fill += rd[4+2*q:6+2*q]
        fill += adv_addr([WA[n] for n in oth])
        fill += ["s_cmp_lt_u32 s40, 8"]
        for t in interleave(mfmas(ph, 1), fill, per=cfg.get('k1per2', 3)): a(t)
        if ph == 0:
            pass
        a("s_waitcnt lgkmcnt(0)")
        if it is None: a(f"s_cbranch_scc1 {lab}")
    loop(0)
    def h1_store():
        a("s_lshl_b32 s43, s18, 2")
        a("s_lshl_b32 s44, s21, 1")
        a("s_add_u32 s43, s43, s44")
        a("s_mul_i32 s43, s43, 56")
        a("s_lshl_b32 s44, s19, 2")
        a("s_add_u32 s43, s43, s44")
        a("s_lshl_b32 s44, s22, 1")
        a("s_add_u32 s43, s43, s44")
        a("s_lshl_b32 s43, s43, 10")
        a(f"s_add_u32 s54, s43, {WS_H1}")
        a("v_lshlrev_b32 v5, 4, v1")
        for tp in range(2):
            for k, n in enumerate((2, 3)):
                t = PK + 8*tp + 4*k
                for e in range(2):
                    c = acc(n, 2*tp+e)
                    a(f"v_cvt_pk_bf16_f32 v{t+2*e}, v{c}, v{c+1}")
                    a(f"v_cvt_pk_bf16_f32 v{t+2*e+1}, v{c+2}, v{c+3}")
                if k == 0: a(f"s_add_u32 s43, s54, {tp*56*1024}")
                a(f"buffer_store_dwordx4 {r4(t)}, v5, s[32:35], s43 offen offset:{k*1024} {FL[cfg.get('sth1', 2)]}")
    if not cfg.get('tsc'): ts(3)
    a("v_and_b32 v2, 15, v1")
    a("v_lshrrev_b32 v3, 4, v1")
    for t in reads(1, 0, 0): a(t)
    a("s_waitcnt vmcnt(0)")
    a("s_cmp_eq_u32 s19, 14")
    a(f"s_cbranch_scc1 {L('pure_mid')}")
    a("s_lshl_b32 s43, s18, 2")
    a("v_mov_b32 v10, s43")
    a("global_load_dword v11, v10, s[12:13] sc1")
    Z1K1 = cfg.get('z1k1', 0)
    if Z1K1:
        a("s_lshl_b32 s47, s20, 12")
        a(f"s_add_u32 s47, s47, {EP+1024}")
        a("v_lshlrev_b32 v5, 4, v1")
        a("v_add_u32 v5, s47, v5")
        for tp in range(2):
            for k, n in enumerate((2, 3)):
                t = PK + 8*tp + 4*k
                for e in range(2):
                    c = acc(n, 2*tp+e)
                    a(f"v_cvt_pk_bf16_f32 v{t+2*e}, v{c}, v{c+1}")
                    a(f"v_cvt_pk_bf16_f32 v{t+2*e+1}, v{c+2}, v{c+3}")
                a(f"ds_write_b128 v5, {r4(t)} offset:{(tp*2+k)*1024}")
    CP0, CP1, ONE = 226, 228, 230
    for r in (CP0, CP0+1): a(f"v_mov_b32 v{r}, {hex(f2u(GELU_C0))}")
    for r in (CP1, CP1+1): a(f"v_mov_b32 v{r}, {hex(f2u(GELU_C1))}")
    for r in (ONE, ONE+1): a(f"v_mov_b32 v{r}, 1.0")
    zregs = [acc(n, tt) + 2*h for n in range(2) for tt in range(4) for h in range(2)]
    gelu_pairs(a, zregs, PK, CP0, CP1, ONE)
    T = PK
    for tt in range(4):
        z = [acc(0, tt), acc(0, tt)+2, acc(1, tt), acc(1, tt)+2]
        t = T + 6*tt
        a(f"v_pk_add_f32 {r2(t)}, {r2(z[0])}, {r2(z[1])}")
        a(f"v_pk_mul_f32 {r2(t+2)}, {r2(z[0])}, {r2(z[0])}")
        a(f"v_pk_add_f32 {r2(t+4)}, {r2(z[2])}, {r2(z[3])}")
        a(f"v_pk_fma_f32 {r2(t+2)}, {r2(z[1])}, {r2(z[1])}, {r2(t+2)}")
        a(f"v_pk_add_f32 {r2(t)}, {r2(t)}, {r2(t+4)}")
        a(f"v_pk_fma_f32 {r2(t+2)}, {r2(z[2])}, {r2(z[2])}, {r2(t+2)}")
        a(f"v_pk_fma_f32 {r2(t+2)}, {r2(z[3])}, {r2(z[3])}, {r2(t+2)}")
        a(f"v_add_f32 v{t}, v{t}, v{t+1}")
        a(f"v_add_f32 v{t+1}, v{t+2}, v{t+3}")
    V = lambda tt, c: T + 6*tt + c
    for c in range(2):
        a(f"v_permlane32_swap_b32 v{V(0,c)}, v{V(2,c)}")
        a(f"v_permlane32_swap_b32 v{V(1,c)}, v{V(3,c)}")
    for c in range(2):
        a(f"v_add_f32 v{V(0,c)}, v{V(0,c)}, v{V(2,c)}")
        a(f"v_add_f32 v{V(1,c)}, v{V(1,c)}, v{V(3,c)}")
    for c in range(2): a(f"v_permlane16_swap_b32 v{V(0,c)}, v{V(1,c)}")
    a(f"v_add_f32 v4, v{V(0,0)}, v{V(1,0)}")
    a(f"v_add_f32 v5, v{V(0,1)}, v{V(1,1)}")
    a("v_lshlrev_b32 v6, 4, v1")
    a("s_mov_b32 s88, 0")
    a.label(L('fchk'))
    a("s_waitcnt vmcnt(0)")
    a("v_readfirstlane_b32 s43, v11")
    a("s_cmp_lg_u32 s43, 0")
    a(f"s_cbranch_scc1 {L('fok')}")
    a("s_add_u32 s88, s88, 1")
    a("s_cmp_ge_u32 s88, 0x40000")
    a(f"s_cbranch_scc1 {L('fok')}")
    a("global_load_dword v11, v10, s[12:13] sc1")
    a(f"s_branch {L('fchk')}")
    a.label(L('fok'))
    a(f"buffer_store_dwordx2 v[4:5], v6, s[32:35], s62 offen {XS}")
    if not cfg.get('tsc'): ts(4)
    a(f"s_mov_b32 s62, {PSTEP-4}")
    H1IT = cfg.get('h1it', 4)
    if not Z1K1:
        if H1IT < 0:
            h1_store()
        else:
            a(f"s_mov_b32 s63x, {H1IT}".replace('s63x', 's89'))
    a(f"s_branch {L('phase1')}")
    a.label(L('pure_mid'))
    a("s_mov_b32 s62, 99")
    a("s_mov_b32 s89, 99")
    def vq():
        a("s_lshl_b32 s43, s18, 7")
        a("s_lshl_b32 s44, s21, 6")
        a("s_add_u32 s43, s43, s44")
        a("v_add_u32 v4, s43, v2")
        a("v_lshlrev_b32 v4, 5, v4")
        a("v_lshl_add_u32 v4, v3, 3, v4")
    def qkv_out(n, ct_sgpr_expr, T2):
        a("s_cmp_lt_u32 s45, 32")
        a(f"s_cselect_b32 s44, {hex(f2u(QSCALE))}, 1.0")
        a("s_lshl_b32 s43, s45, 16")
        if WS_QKV: a(f"s_add_u32 s43, s43, {WS_QKV}")
        a(f"v_mov_b32 v8, s44")
        a(f"v_mov_b32 v9, s44")
        for tt in range(4):
            c = acc(n, tt); t = T2 + 2*tt
            a(f"v_pk_mul_f32 {r2(c)}, {r2(c)}, v[8:9]")
            a(f"v_pk_mul_f32 {r2(c+2)}, {r2(c+2)}, v[8:9]")
            a(f"v_cvt_pk_bf16_f32 v{t}, v{c}, v{c+1}")
            a(f"v_cvt_pk_bf16_f32 v{t+1}, v{c+2}, v{c+3}")
            a(f"buffer_store_dwordx2 {r2(t)}, v4, s[32:35], s43 offen offset:{tt*512} {ST}")
    vq()
    for n in range(4):
        a("s_lshl_b32 s45, s22, 2")
        a(f"s_add_u32 s45, s45, {84+n}")
        qkv_out(n, None, PK + 8*(n % 3))
    a.label(L('phase1'))
    if cfg.get('pf', 2) == 7:
        srd(a, 24, 10, 2048*4096)
        a("s_lshr_b32 s43, s16, 1")
        a("s_lshl_b32 s43, s43, 21")
        a("s_lshl_b32 s44, s17, 16")
        a("s_add_u32 s43, s43, s44")
        a("s_and_b32 s44, s16, 1")
        a("s_lshl_b32 s44, s44, 11")
        a("s_add_u32 s43, s43, s44")
        a("s_lshl_b32 s44, s20, 14")
        a("s_add_u32 s43, s43, s44")
        a("v_lshlrev_b32 v8, 4, v1")
        for q in range(8):
            a(f"buffer_load_dwordx4 v[228:231], v8, s[24:27], s43 offen offset:{(q%2)*1024}")
            if q % 2 == 1: a("s_add_u32 s43, s43, 4096")
    a("s_mov_b32 s40, 0")
    loop(1)
    if not cfg.get('tsc'): ts(5)
    a("v_and_b32 v2, 15, v1")
    a("v_lshrrev_b32 v3, 4, v1")
    vq()
    a("s_cmp_eq_u32 s19, 14")
    a(f"s_cbranch_scc1 {L('pure_tail')}")
    a("s_mul_i32 s55, s19, 6")
    a("s_mul_i32 s44, s22, 3")
    a("s_add_u32 s55, s55, s44")
    for k in range(3):
        a(f"s_add_u32 s45, s55, {k}")
        qkv_out(4+k, None, W[0] + 8*k)
    a(f"s_branch {L('fin')}")
    if cfg.get('h1it', 4) >= 0 and not cfg.get('z1k1', 0):
        a.label(L('h1blk'))
        h1_store()
        a("s_mov_b32 s89, 99")
        a(f"s_branch {L('h1back')}")
    a.label(L('zfin'))
    ZS, ZT = 232, 240
    a("v_and_b32 v2, 15, v1")
    a("v_lshrrev_b32 v3, 4, v1")
    a("s_lshl_b32 s43, s21, 6")
    a("v_add_u32 v6, s43, v2")
    a("v_lshlrev_b32 v6, 3, v6")
    a(f"v_add_u32 v6, {EP}, v6")
    for tt in range(4): a(f"ds_read_b64 {r2(ZS+2*tt)}, v6 offset:{tt*128}")
    a("s_lshl_b32 s47, s20, 12")
    a(f"s_add_u32 s47, s47, {EP+1024}")
    a("v_lshlrev_b32 v6, 5, v2")
    a("v_lshl_add_u32 v6, v3, 3, v6")
    a("v_add_u32 v6, s47, v6")
    a("s_waitcnt lgkmcnt(0)")
    for n in range(2):
        for tt in range(4):
            c = acc(n, tt); mr, r = ZS+2*tt, ZS+2*tt+1
            for i in range(4): a(f"v_fma_f32 v{c+i}, v{c+i}, v{r}, v{mr}")
            t = PK + 2*(n*4+tt)
            a(f"v_cvt_pk_bf16_f32 v{t}, v{c}, v{c+1}")
            a(f"v_cvt_pk_bf16_f32 v{t+1}, v{c+2}, v{c+3}")
            a(f"ds_write_b64 v6, {r2(t)} offset:{n*2048+tt*512}")
    a("v_lshlrev_b32 v6, 3, v2")
    a("v_lshl_add_u32 v6, v3, 8, v6")
    a("v_add_u32 v6, s47, v6")
    a("s_lshl_b32 s43, s19, 2")
    a("s_lshl_b32 s44, s22, 1")
    a("s_add_u32 s43, s43, s44")
    a("s_lshl_b32 s43, s43, 16")
    a("s_lshl_b32 s44, s18, 2")
    a("s_lshl_b32 s45, s21, 1")
    a("s_add_u32 s44, s44, s45")
    a("s_lshl_b32 s44, s44, 10")
    a("s_add_u32 s43, s43, s44")
    a(f"s_add_u32 s46, s43, {WS_Z2N}")
    a("s_add_u32 s47, s46, 65536")
    a("v_lshlrev_b32 v7, 4, v1")
    a("s_waitcnt lgkmcnt(0)")
    for n in range(2):
        for kk in range(2):
            for sx in range(2):
                a(f"ds_read_b64_tr_b16 {r2(ZT+4*(n*2+kk)+2*sx)}, v6 offset:{n*2048+kk*1024+sx*128}")
    for n in range(2):
        for kk in range(2):
            a(f"s_waitcnt lgkmcnt({6-2*(n*2+kk)})")
            a(f"buffer_store_dwordx4 {r4(ZT+4*(n*2+kk))}, v7, s[32:35], {'s46' if n==0 else 's47'} offen offset:{kk*1024} {FL[cfg.get('stz', 2)]}")
    a("s_mov_b32 s62, 99")
    a(f"s_branch {L('zback')}")
    a.label(L('pure_tail'))
    for k in range(2):
        a("s_lshl_b32 s45, s22, 1")
        a(f"s_add_u32 s45, s45, {92+k}")
        qkv_out(4+k, None, W[0] + 8*k)
    a(f"s_branch {L('fin')}")
    a.label(L('loader'))
    if cfg.get('lprio', 1): a(f"s_setprio {cfg.get('lprio', 1)}")
    a("s_sub_u32 s20, s20, 4")
    ts.role(1)
    a("s_lshr_b32 s21, s20, 1")
    a("s_and_b32 s22, s20, 1")
    a("s_lshl_b32 s43, s19, 7")
    a("s_cmp_eq_u32 s21, 0")
    a("s_cselect_b32 s44, 1792, 0")
    a("s_add_u32 s43, s43, s44")
    a("s_lshl_b32 s44, s21, 7")
    a("s_add_u32 s44, s44, 2688")
    a("s_mul_i32 s45, s19, 3")
    a("s_lshr_b32 s45, s45, 1")
    a("s_add_u32 s45, s45, s21")
    a("s_lshl_b32 s45, s45, 7")
    a("s_cmp_eq_u32 s19, 14")
    a("s_cselect_b32 s43, s44, s43")
    a("s_cselect_b32 s45, 2944, s45")
    a("s_movk_i32 s36, 3584")
    a("s_cselect_b32 s36, 3072, s36")
    a("s_cselect_b32 s46, 0, 1")
    a("v_lshrrev_b32 v2, 3, v1")
    a("v_and_b32 v3, 7, v1")
    a("v_lshrrev_b32 v4, 1, v2")
    a("s_lshl_b32 s44, s18, 7")
    a("s_lshl_b32 s47, s20, 5")
    a("s_add_u32 s44, s44, s47")
    a("v_add_u32 v5, s44, v2")
    a("v_lshlrev_b32 v5, 10, v5")
    a("v_xor_b32 v6, v3, v4")
    a("v_xor_b32 v7, 4, v6")
    a("v_lshl_add_u32 v6, v6, 4, v5")
    a("v_lshl_add_u32 v7, v7, 4, v5")
    a(f"v_mov_b32 v{VX[0]}, v6")
    a(f"v_add_u32 v{VX[1]}, 7168, v7")
    a(f"v_add_u32 v{VX[2]}, {2*7168}, v6")
    a(f"v_add_u32 v{VX[3]}, {3*7168}, v7")
    a("v_and_b32 v5, 3, v2")
    a("v_lshrrev_b32 v6, 2, v2")
    a("v_lshl_add_u32 v5, v6, 3, v5")
    a("v_lshlrev_b32 v6, 1, v4")
    a("v_xor_b32 v6, v3, v6")
    a("v_lshlrev_b32 v6, 4, v6")
    a("s_lshl_b32 s48, s22, 5")
    a("v_add_u32 v5, s48, v5")
    def vw_setup(ph):
        st = 's36' if ph == 0 else 's37'
        if ph == 1: a("s_movk_i32 s37, 3072")
        a(f"v_mul_lo_u32 v7, v12, {st}")
        a("v_add_u32 v7, v7, v13")
        for b in range(4):
            h, s = b >> 1, b & 1
            a(f"s_mul_i32 s92, {st}, {16*h+4*s}")
            a(f"s_sub_u32 s92, s92, {b*1024}")
            a(f"v_add_u32 v{VW[ph][b]}, s92, v7")
    a("v_mov_b32 v12, v5")
    a("v_mov_b32 v13, v6")
    a("s_mov_b32 s93, s45")
    vw_setup(0)
    a("s_lshl_b32 s47, s20, 12")
    a("s_lshl_b32 s48, s22, 13")
    a("s_lshl_b32 s49, s21, 12")
    a("s_add_u32 s48, s48, s49")
    a("s_add_u32 s48, s48, 16384")
    a("s_cmp_eq_u32 s46, 1")
    a("s_waitcnt lgkmcnt(0)")
    a("s_cselect_b32 s28, s8, s6")
    a("s_cselect_b32 s29, s9, s7")
    a("s_add_u32 s28, s28, s43")
    a("s_addc_u32 s29, s29, 0")
    a("s_lshl_b32 s30, s36, 9")
    a("s_sub_u32 s30, s30, s43")
    a("s_mov_b32 s31, 0x20000")
    srd(a, 84, 4, 2048*1024)
    def late_setup():
        vw_setup(1)
        a("s_add_u32 s24, s6, s93")
        a("s_addc_u32 s25, s7, 0")
        a(f"s_mov_b32 s26, {512*3072}")
        a("s_sub_u32 s26, s26, s93")
        a("s_mov_b32 s27, 0x20000")
        srd(a, 32, 14, WS_END)
    LD = cfg.get('ld1', '')
    XR = cfg.get('xreuse', 1)
    def koff(s_): return s_ if s_ < 8 else ((s_-4 if s_ < 12 else s_-12) if XR else s_-8)
    def hasx(s_): return not (XR and 8 <= s_ < 12)
    def nins(s_): return 8 if hasx(s_) else 4
    def prep(s_):
        ph = s_ >> 3; base = (s_ % NSLOT)*SLOT
        a(f"s_add_u32 s45, s23, {koff(s_)}")
        a("s_and_b32 s45, s45, 7")
        a("s_lshl_b32 s46, s45, 7")
        a(f"s_mul_i32 s44, s45, {'s38' if ph == 0 else 's39'}")
        if cfg.get('nodma'): a("s_mov_b32 s46, 0x7ff00000"); a("s_mov_b32 s44, 0x7ff00000")
        a(f"s_add_u32 s49, s48, {base}")
        if hasx(s_): a(f"s_add_u32 m0, s47, {base}")
        else: a("s_mov_b32 m0, s49")
    def fire(s_):
        ph = s_ >> 3
        if hasx(s_):
            for i in range(4): a(f"buffer_load_dwordx4 v{VX[i]}, s[84:87], s46 offen offset:{i*1024} {LD} lds")
            a("s_mov_b32 m0, s49")
        S = 's[28:31]' if ph == 0 else 's[24:27]'
        for b in range(4): a(f"buffer_load_dwordx4 v{VW[ph][b]}, {S}, s44 offen offset:{b*1024} {LD} lds")
    class LQ:
        def __init__(self, q=None): self.q = list(q or [])
        def add(self, kind, key, n): self.q.append((kind, key, n))
        def allowed(self, step, also=()):
            idx = max([k for k, e in enumerate(self.q) if (e[0] == 'D' and e[1] <= step) or e[0] in also], default=-1)
            return sum(e[2] for e in self.q[idx+1:])
        def copy(self): return LQ(self.q)
    lq = LQ()
    a("s_lshl_b32 s38, s36, 6")
    a(f"s_mov_b32 s39, {64*3072}")
    rot = cfg.get('k1rot', 1)
    if rot == 0: a("s_mov_b32 s23, 0")
    elif rot == 1: a("s_and_b32 s23, s18, 7")
    elif rot == 2: a("s_and_b32 s23, s18, 1"); a("s_lshl_b32 s23, s23, 2")
    elif rot == 3: a("s_and_b32 s23, s18, 3"); a("s_lshl_b32 s23, s23, 1")
    elif rot == 4: a("s_mov_b32 s23, s16")
    elif rot == 5:
        a("s_and_b32 s23, s16, 3"); a("s_lshl_b32 s23, s23, 1"); a("s_lshr_b32 s43, s16, 2"); a("s_add_u32 s23, s23, s43")
    elif rot == 6:
        a("s_and_b32 s23, s18, 1"); a("s_lshl_b32 s23, s23, 2"); a("s_add_u32 s23, s23, s16")
    elif rot == 7:
        a("s_and_b32 s23, s18, 7"); a("s_lshl_b32 s43, s16, 1"); a("s_add_u32 s23, s23, s43")
    for st_ in (0, 1):
        prep(st_); fire(st_); lq.add('D', st_, 8)
    late_setup()
    ts(1)
    prep(2)
    a(f"s_waitcnt vmcnt({lq.allowed(0)})")
    a("s_barrier")
    ts(2)
    fire(2); lq.add('D', 2, 8)
    prep(3); fire(3); lq.add('D', 3, 8)
    NW = 0
    if cfg.get('l2w', 2) == 2:
        NW = 8
        lq.add('W', 0, 8)
        a("s_lshl_b32 s43, s18, 7")
        a("s_and_b32 s44, s19, 3")
        a("s_lshl_b32 s44, s44, 5")
        a("s_add_u32 s43, s43, s44")
        a("s_lshl_b32 s44, s20, 3")
        a("s_add_u32 s43, s43, s44")
        a("s_lshl_b32 s43, s43, 10")
        a("s_add_u32 s44, s23, 4")
        a("s_lshl_b32 s44, s44, 7")
        a("v_and_b32 v2, 31, v1")
        a("v_lshlrev_b32 v2, 4, v2")
        a("v_add_u32 v2, s44, v2")
        a("v_and_b32 v2, 1023, v2")
        a("v_lshrrev_b32 v3, 5, v1")
        a("v_lshl_add_u32 v2, v3, 10, v2")
        for q in range(4):
            a(f"buffer_load_dwordx4 {r4(32+4*q)}, v2, s[84:87], s43 offen offset:{(q%2)*2048}")
            if q == 1: a("s_add_u32 s43, s43, 4096")
        a("s_mul_i32 s44, s19, 3")
        a("s_lshr_b32 s44, s44, 1")
        a("s_lshl_b32 s44, s44, 7")
        a("s_cmp_eq_u32 s19, 14")
        a("s_cselect_b32 s44, 2816, s44")
        a("s_and_b32 s43, s18, 7")
        a("s_lshl_b32 s43, s43, 6")
        a("s_lshl_b32 s45, s20, 4")
        a("s_add_u32 s43, s43, s45")
        a("s_mul_i32 s43, s43, 3072")
        a("s_add_u32 s43, s43, s44")
        srd(a, 80, 6, 512*3072)
        a("v_lshrrev_b32 v2, 4, v1")
        a("v_mul_u32_u24 v2, 3072, v2")
        a("v_and_b32 v3, 15, v1")
        a("v_lshl_add_u32 v2, v3, 4, v2")
        for q in range(4):
            a(f"buffer_load_dwordx4 {r4(48+4*q)}, v2, s[80:83], s43 offen")
            if q < 3: a(f"s_add_u32 s43, s43, {4*3072}")
    PF3 = cfg.get('pf', 2) == 3
    if PF3:
        srd(a, 92, 10, 2048*4096)
        a("s_lshr_b32 s90, s16, 1")
        a("s_lshl_b32 s90, s90, 21")
        a("s_lshl_b32 s43, s17, 16")
        a("s_add_u32 s90, s90, s43")
        a("s_lshl_b32 s43, s20, 14")
        a("s_add_u32 s90, s90, s43")
        a("v_lshlrev_b32 v8, 4, v1")
    for b in range(8):
        prep(b+4)
        a(f"s_waitcnt vmcnt({lq.allowed(b+1)})")
        if cfg.get('tsl') and b < 4: ts(3 + b)
        a("s_barrier")
        fire(b+4); lq.add('D', b+4, nins(b+4))
        if PF3 and b >= 4:
            for q in range(4): a(f"buffer_load_dwordx4 {r4(64+4*q)}, v8, s[92:95], s90 offen offset:{q*1024}")
            a("s_add_u32 s90, s90, 4096")
            lq.add('F', 0, 4)
    a("s_cmp_eq_u32 s19, 14")
    a(f"s_cbranch_scc1 {L('lpure')}")
    a("s_lshl_b32 s43, s20, 12")
    a(f"s_add_u32 s43, s43, {EP+1024}")
    a("v_lshlrev_b32 v5, 4, v1")
    a("v_add_u32 v6, s43, v5")
    HP, HC, HT = 32, 48, 80
    C0, C1, C2 = 90, 92, 94
    for r in (C0, C0+1): a(f"v_mov_b32 v{r}, {hex(f2u(GELU_C0))}")
    for r in (C1, C1+1): a(f"v_mov_b32 v{r}, {hex(f2u(GELU_C1))}")
    for r in (C2, C2+1): a(f"v_mov_b32 v{r}, 1.0")
    a("s_lshl_b32 s43, s18, 2")
    a("s_lshl_b32 s44, s21, 1")
    a("s_add_u32 s43, s43, s44")
    a("s_mul_i32 s43, s43, 56")
    a("s_lshl_b32 s44, s19, 2")
    a("s_add_u32 s43, s43, s44")
    a("s_lshl_b32 s44, s22, 1")
    a("s_add_u32 s43, s43, s44")
    a("s_lshl_b32 s43, s43, 10")
    a(f"s_add_u32 s52, s43, {WS_H1}")
    a(f"s_add_u32 s53, s52, {56*1024}")
    def z1_block(q):
        if not Z1K1: return
        a(f"ds_read_b128 {r4(HP)}, v6 offset:{q*1024}")
        a("s_waitcnt lgkmcnt(0)")
        for e in range(4):
            a(f"v_lshlrev_b32 v{HC+2*e}, 16, v{HP+e}")
            a(f"v_and_b32 v{HC+2*e+1}, 0xffff0000, v{HP+e}")
        gelu_pairs(a, [HC+2*e for e in range(4)], HT, C0, C1, C2, G=4)
        t = HP + 4 + 4*(q % 2)
        for e in range(4): a(f"v_cvt_pk_bf16_f32 v{t+e}, v{HC+2*e}, v{HC+2*e+1}")
        a(f"buffer_store_dwordx4 {r4(t)}, v5, s[32:35], {'s52' if q < 2 else 's53'} offen offset:{(q%2)*1024} {FL[cfg.get('sth1', 2)]}")
    a("s_cmp_lt_u32 s20, 2")
    a(f"s_cbranch_scc1 {L('lx')}")
    l2 = lq.copy()
    for b in (8, 9, 10, 11):
        prep(b+4)
        a(f"s_waitcnt vmcnt({l2.allowed(b+1)})")
        a("s_barrier")
        fire(b+4); l2.add('D', b+4, nins(b+4))
        z1_block(b-8)
        if Z1K1: l2.add('S', 0, 1)
    a(f"s_branch {L('lb12m')}")
    a.label(L('lpure'))
    l3 = lq.copy()
    for b in (8, 9, 10, 11):
        prep(b+4)
        a(f"s_waitcnt vmcnt({l3.allowed(b+1)})")
        a("s_barrier")
        fire(b+4); l3.add('D', b+4, nins(b+4))
    a.label(L('lb12m'))
    PFN = {2: 8, 4: 4, 5: 2, 6: 4}.get(cfg.get('pf', 2), 0)
    PF6 = cfg.get('pf', 2) == 6
    if PF6:
        srd(a, 80, 10, 2048*4096)
        a("s_lshr_b32 s43, s16, 1")
        a("s_lshl_b32 s43, s43, 21")
        a("s_lshl_b32 s44, s17, 16")
        a("s_add_u32 s43, s43, s44")
        a("s_and_b32 s44, s16, 1")
        a("s_lshl_b32 s44, s44, 11")
        a("s_add_u32 s43, s43, s44")
        a("s_and_b32 s44, s20, 1")
        a("s_lshl_b32 s44, s44, 15")
        a("s_add_u32 s43, s43, s44")
        a("v_and_b32 v8, 63, v1")
        a("v_lshlrev_b32 v8, 4, v8")
        if cfg.get('k2rotmode', 5) in (9, 10, 11):
            mul = {9: 4, 10: 2, 11: 1}[cfg['k2rotmode']]
            a("s_lshr_b32 s44, s17, 2")
            a(f"s_mul_i32 s44, s44, {mul*128}")
            a("s_and_b32 s45, s16, 1")
            a("s_lshl_b32 s45, s45, 11")
            a("s_sub_u32 s43, s43, s45")
            a("s_add_u32 s44, s44, s45")
            a("v_add_u32 v9, s44, v8")
            a("v_and_b32 v8, 4095, v9")
            a("v_add_u32 v9, 1024, v9")
            a("v_and_b32 v9, 4095, v9")
    elif PFN == 2:
        srd(a, 80, 10, 2048*4096)
        a("s_lshl_b32 s43, s2, 14")
        a("s_and_b32 s44, s20, 1")
        a("s_lshl_b32 s44, s44, 13")
        a("s_add_u32 s43, s43, s44")
        a(f"s_add_u32 s43, s43, {4<<20}")
        a("v_lshlrev_b32 v8, 4, v1")
    elif PFN:
        srd(a, 80, 10, 2048*4096)
        a("s_lshr_b32 s43, s16, 1")
        a("s_lshl_b32 s43, s43, 21")
        a("s_lshl_b32 s44, s17, 16")
        a("s_add_u32 s43, s43, s44")
        if PFN == 8:
            a("s_and_b32 s44, s20, 1")
            a("s_lshl_b32 s44, s44, 15")
        else:
            a("s_and_b32 s44, s16, 1")
            a("s_lshl_b32 s44, s44, 15")
            a("s_add_u32 s43, s43, s44")
            a("s_and_b32 s44, s20, 1")
            a("s_lshl_b32 s44, s44, 14")
        a("s_add_u32 s43, s43, s44")
        a("v_lshlrev_b32 v8, 4, v1")
    def pf_batch():
        if PF6:
            wrap = cfg.get('k2rotmode', 5) in (9, 10, 11)
            for q in range(4):
                if wrap: a(f"buffer_load_dwordx4 {r4(64+4*q)}, v{8+(q%2)}, s[80:83], s43 offen")
                else: a(f"buffer_load_dwordx4 {r4(64+4*q)}, v8, s[80:83], s43 offen offset:{(q%2)*1024}")
                if q % 2 == 1: a("s_add_u32 s43, s43, 4096")
            return
        for q in range(PFN):
            a(f"buffer_load_dwordx4 {r4(64+4*q)}, v8, s[80:83], s43 offen offset:{(q%4)*1024}")
            if q % 4 == 3 or q == PFN-1: a(f"s_add_u32 s43, s43, {1024*min(4, PFN)}")
    PE = cfg.get('pfearly', 0)
    sched = {0: [0, 1, 1, 1, 1], 1: [4, 0, 0, 0, 0], 2: [2, 2, 0, 0, 0], 3: [1, 1, 1, 1, 0], 4: [0, 4, 0, 0, 0], 5: [0, 2, 2, 0, 0], 6: [0, 0, 1, 1, 2], 7: [0, 0, 0, 2, 2], 8: [0, 0, 0, 0, 4], 9: [0, 0, 2, 1, 1]}[PE]
    done = 0
    for _ in range(sched[0]): pf_batch()
    done += sched[0]
    a(f"s_waitcnt vmcnt({16 + done*PFN})")
    a("s_barrier")
    for _ in range(sched[1]): pf_batch()
    done += sched[1]
    a(f"s_waitcnt vmcnt({8 + done*PFN})")
    a("s_barrier")
    for _ in range(sched[2]): pf_batch()
    done += sched[2]
    a(f"s_waitcnt vmcnt({done*PFN})")
    a("s_barrier")
    for _ in range(sched[3]): pf_batch()
    a("s_barrier")
    for _ in range(sched[4]): pf_batch()
    if cfg.get('cpf2', 1):
        lab2 = L('nocp2')
        a("s_cmp_eq_u32 s20, 3")
        a(f"s_cbranch_scc0 {lab2}")
        code_prefetch(a, 'gm_k2_kernel', 'gm_code_end', 's17', 1, 'k1b', vtmp=100)
        a.label(lab2)
    if cfg.get('xw', 0):
        a(f"s_mul_i32 s43, s2, {cfg['xw']*1024}")
        a(f"s_add_u32 s43, s43, 0x2000000")
        a(f"s_mov_b32 s90, s14"); a("s_mov_b32 s91, s15")
        a("s_mov_b32 s92, 0x8000000"); a("s_mov_b32 s93, 0x20000")
        a("s_mov_b32 s88, s14"); a("s_mov_b32 s89, s15"); a("s_mov_b32 s90, 0x8000000"); a("s_mov_b32 s91, 0x20000")
        a("s_and_b32 s44, s20, 1")
        a(f"s_mul_i32 s44, s44, {cfg['xw']*512}")
        a("s_add_u32 s43, s43, s44")
        for q in range(cfg['xw']//2):
            a(f"buffer_store_dwordx4 v[64:67], v8, s[88:91], s43 offen offset:{(q%4)*1024} {'sc1' if cfg.get('xwsc',1) else ''}")
            if q % 4 == 3: a("s_add_u32 s43, s43, 4096")
    if cfg.get('pfwait', 1): a("s_waitcnt vmcnt(0)")
    a(f"s_branch {L('fin2') if not cfg.get('pfwait', 1) else L('fin')}")
    a.label(L('lx'))
    a("s_lshl_b32 s43, s20, 6")
    a("v_add_u32 v9, s43, v1")
    a("v_lshlrev_b32 v7, 4, v9")
    a("s_mul_i32 s54, s18, 28672")
    a(f"s_add_u32 s54, s54, {WS_STAT}")
    a("s_mov_b32 s88, 0")
    P = 96
    def poll_loads():
        a("s_mov_b32 s43, s54")
        for q in range(14):
            if q % 2 == 0 and q: a("s_add_u32 s43, s43, 4096")
            a(f"buffer_load_dwordx4 {r4(P+4*q)}, v7, s[32:35], s43 offen offset:{(q%2)*2048} {XS}")
    l1 = lq.copy()
    for b in range(8, PSTEP+3):
        if b+4 < 16: prep(b+4)
        a(f"s_waitcnt vmcnt({l1.allowed(b+1)})")
        a("s_barrier")
        if b+4 < 16:
            fire(b+4); l1.add('D', b+4, nins(b+4))
        if b == PSTEP:
            poll_loads(); l1.add('P', 0, 14)
        if b < 12:
            z1_block(b-8)
            if Z1K1: l1.add('S', 0, 1)
    if not cfg.get('tsl'): ts(3)
    a(f"s_waitcnt vmcnt({l1.allowed(PSTEP+4, also=('P',))})")
    a(f"s_branch {L('pchk1')}")
    a.label(L('pchk'))
    a("s_waitcnt vmcnt(0)")
    a.label(L('pchk1'))
    a(f"v_max_u32 v10, v{P}, v{P+1}")
    for q in range(2, 56, 2): a(f"v_max3_u32 v10, v10, v{P+q}, v{P+q+1}")
    a("v_cmp_eq_u32 vcc, -1, v10")
    a("s_add_u32 s88, s88, 1")
    a("s_cmp_ge_u32 s88, 0x20000")
    a(f"s_cbranch_scc1 {L('polled')}")
    a(f"s_cbranch_vccz {L('polled')}")
    poll_loads()
    a(f"s_branch {L('pchk')}")
    a.label(L('polled'))
    if not cfg.get('tsl'): ts(5)
    if ts.on: a("s_mov_b32 s62, s88")
    for q in range(1, 28): a(f"v_pk_add_f32 {r2(P)}, {r2(P)}, {r2(P+2*q)}")
    m, e2 = P, P+1
    a(f"v_mul_f32 v{m}, {hex(f2u(1.0/896))}, v{m}")
    a(f"v_mul_f32 v{e2}, {hex(f2u(1.0/896))}, v{e2}")
    a(f"v_fma_f32 v{e2}, -v{m}, v{m}, v{e2}")
    a(f"v_max_f32 v{e2}, 0, v{e2}")
    a(f"v_add_f32 v{e2}, {hex(f2u(1e-5))}, v{e2}")
    a(f"v_rsq_f32 v{e2}, v{e2}")
    a(f"v_mul_f32 v{m}, v{m}, v{e2}")
    a(f"v_sub_f32 v{m}, 0, v{m}")
    a("v_lshlrev_b32 v7, 3, v9")
    a(f"v_add_u32 v7, {EP}, v7")
    a(f"ds_write_b64 v7, {r2(m)}")
    a("s_waitcnt lgkmcnt(0)")
    a("s_barrier")
    for b in range(PSTEP+4, 16):
        if b+1 <= 15: a("s_waitcnt vmcnt(0)" if b+1 == 15 else f"s_waitcnt vmcnt({8*(15-(b+1))})")
        a("s_barrier")
    a(f"s_branch {L('fin')}")
    a.label(L('spare'))
    def spare_kd():
        lab = L('nokd')
        a("s_cmp_eq_u32 s20, 7")
        a(f"s_cbranch_scc0 {lab}")
        a("s_getpc_b64 s[92:93]")
        a.raw("    s_add_u32 s92, s92, gm_kd_local_1@rel32@lo+4")
        a.raw("    s_addc_u32 s93, s93, gm_kd_local_1@rel32@hi+12")
        a("v_mov_b32 v200, 0")
        a("global_load_dword v201, v200, s[92:93]")
        a.label(lab)
    def spare_cpf():
        if cfg.get('kdpf', 0): spare_kd()
        if cfg.get('cpf', 1):
            a("s_and_b32 s43, s17, 1")
            a("s_lshl_b32 s43, s43, 3")
            a("s_add_u32 s43, s43, s20")
            code_prefetch(a, 'gm_k1_kernel', 'gm_code_end', 's43', 3, 'k1', vtmp=200)
    if cfg.get('cpfirst', 1): spare_cpf()
    a("s_waitcnt lgkmcnt(0)")
    srd(a, 32, 14, WS_END)
    if cfg.get('tlbw', 0):
        G = cfg['tlbw']
        a(f"v_lshlrev_b32 v20, {G}, v1")
        a("s_cmp_lt_u32 s20, 6")
        a(f"s_cbranch_scc0 {L('tl1')}")
        a(f"s_lshl_b32 s43, s20, {G+6}")
        if WS_BASE: a(f"s_add_u32 s43, s43, {WS_BASE}")
        a("buffer_load_dword v21, v20, s[32:35], s43 offen")
        a(f"s_branch {L('tl2')}")
        a.label(L('tl1'))
        a(f"s_load_dwordx2 s[90:91], s[0:1], {KA_OUT}")
        a("s_waitcnt lgkmcnt(0)")
        a("s_mov_b32 s84, s90"); a("s_mov_b32 s85, s91"); a(f"s_mov_b32 s86, {2048*1024}"); a("s_mov_b32 s87, 0x20000")
        a("buffer_load_dword v21, v20, s[84:87], 0 offen")
        a.label(L('tl2'))
    a("s_mul_i32 s43, s18, 28672")
    a("s_lshl_b32 s44, s20, 10")
    a("s_add_u32 s43, s43, s44")
    a(f"s_add_u32 s43, s43, {WS_STAT}")
    a("v_lshlrev_b32 v2, 4, v1")
    for r in range(4, 8): a(f"v_mov_b32 v{r}, -1")
    for q in range(3):
        a("buffer_store_dwordx4 v[4:7], v2, s[32:35], s43 offen sc1")
        a("s_add_u32 s43, s43, 8192")
    a("s_cmp_lt_u32 s20, 4")
    a(f"s_cbranch_scc0 {L('rs3')}")
    a("buffer_store_dwordx4 v[4:7], v2, s[32:35], s43 offen sc1")
    a.label(L('rs3'))
    if cfg.get('fuse', 1):
        lab = L('zf')
        a("s_cmp_eq_u32 s18, 0")
        a(f"s_cbranch_scc0 {lab}")
        a("s_cmp_ge_u32 s20, 5")
        a(f"s_cbranch_scc0 {lab}")
        a("s_sub_u32 s43, s20, 5")
        a("s_lshl_b32 s43, s43, 10")
        a(f"s_add_u32 s43, s43, {WS_FLAG}")
        for r in range(4, 8): a(f"v_mov_b32 v{r}, 0")
        a("buffer_store_dwordx4 v[4:7], v2, s[32:35], s43 offen sc1")
        a.label(lab)
    a("s_waitcnt vmcnt(0)")
    a("s_barrier")
    a("s_cmp_eq_u32 s20, 0")
    a(f"s_cbranch_scc0 {L('rs4')}")
    a("s_lshl_b32 s43, s18, 2")
    a("v_mov_b32 v2, s43")
    a("v_mov_b32 v3, 1")
    a("s_mov_b64 s[52:53], exec")
    a("s_mov_b64 exec, 1")
    a("global_store_dword v2, v3, s[12:13] sc1")
    a("s_mov_b64 exec, s[52:53]")
    a.label(L('rs4'))
    if not cfg.get('cpfirst', 1): spare_cpf()
    a("s_lshl_b32 s18, s18, 7")
    a("s_lshl_b32 s43, s20, 4")
    a("s_add_u32 s18, s18, s43")
    srd(a, 24, 4, 2048*1024)
    srd(a, 28, 58, 1024)
    srd(a, 32, 14, WS_END)
    a("v_and_b32 v2, 15, v1")
    a("v_lshrrev_b32 v3, 4, v1")
    a("v_lshlrev_b32 v4, 4, v2")
    for q in range(4): a(f"buffer_load_dwordx4 {r4(16+4*q)}, v4, s[28:31], 0 offen offset:{256*q}")
    a("v_add_u32 v5, s18, v3")
    a("v_lshl_add_u32 v5, v5, 10, v4")
    for it in range(4):
        for q in range(4): a(f"buffer_load_dwordx4 {r4(64+16*it+4*q)}, v5, s[24:27], 0 offen offset:{256*q}")
        a("v_add_u32 v5, 4096, v5")
    a("v_add_u32 v6, s18, v3")
    a("v_lshlrev_b32 v6, 2, v6")
    npf2 = 0
    for it in range(4):
        a(f"s_waitcnt vmcnt({4*(3-it)+npf2})")
        b = 64+16*it
        a(f"v_dot2_f32_bf16 v8, v{b}, v16, 0")
        for r in range(1, 16): a(f"v_dot2_f32_bf16 v8, v{b+r}, v{16+r}, v8")
        a("s_nop 2")
        for sh in ('row_shr:8', 'row_shr:4', 'row_shr:2', 'row_shr:1'):
            a(f"v_add_f32_dpp v8, v8, v8 {sh} row_mask:0xf bank_mask:0xf bound_ctrl:1")
        a(f"v_mul_f32 v8, {hex(f2u(-LOG2E))}, v8")
        a("v_exp_f32 v8, v8")
        a("v_add_f32 v8, 1.0, v8")
        a("v_rcp_f32 v8, v8")
        a(f"v_mov_b32 v{32+it}, v8")
    a("v_cmp_eq_u32 s[52:53], 15, v2")
    a("s_mov_b64 s[54:55], exec")
    a("s_and_b64 exec, exec, s[52:53]")
    a(f"s_mov_b32 s51, {WS_G}")
    for it in range(4):
        a(f"buffer_store_dword v{32+it}, v6, s[32:35], s51 offen offset:{16*it}")
    a("s_mov_b64 exec, s[54:55]")
    if cfg.get('pf', 1):
        a("s_lshr_b32 s48, s18, 4")
        a("v_lshlrev_b32 v9, 4, v1")
        srd(a, 36, 60, 512*1024)
        srd(a, 44, 56, 896*1024)
        a("s_lshl_b32 s49, s48, 12")
        for q in range(4): a(f"buffer_load_dwordx4 {r4(128+4*q)}, v9, s[36:39], s49 offen offset:{q*1024}")
        a("s_mul_i32 s49, s48, 7168")
        for q in range(7):
            if q == 4: a("s_add_u32 s49, s49, 4096")
            a(f"buffer_load_dwordx4 {r4(144+4*q)}, v9, s[44:47], s49 offen offset:{(q%4)*1024}")
        srd(a, 80, 10, 2048*4096)
        if cfg.get('pf', 2) == 5:
            a("s_lshl_b32 s43, s48, 15")
            a("s_mov_b32 s50, 0")
            a.label(L('pfl'))
            for q in range(8):
                a(f"buffer_load_dwordx4 {r4(64+4*q)}, v9, s[80:83], s43 offen offset:{(q%4)*1024}")
                if q % 4 == 3: a("s_add_u32 s43, s43, 4096")
            a("s_waitcnt vmcnt(24)")
            a("s_add_u32 s50, s50, 1")
            a("s_cmp_lt_u32 s50, 4")
            a(f"s_cbranch_scc1 {L('pfl')}")
            a("s_lshl_b32 s43, s2, 14")
            a("s_lshl_b32 s44, s20, 11")
            a("s_add_u32 s43, s43, s44")
            a(f"s_add_u32 s43, s43, {4<<20}")
            for q in range(2): a(f"buffer_load_dwordx4 {r4(64+4*q)}, v9, s[80:83], s43 offen offset:{q*1024}")
        else:
            a("s_lshr_b32 s43, s16, 1")
            a("s_lshl_b32 s43, s43, 21")
            a("s_lshl_b32 s44, s17, 16")
            a("s_add_u32 s43, s43, s44")
            a("s_lshl_b32 s44, s20, 13")
            a("s_add_u32 s43, s43, s44")
            for q in range(8):
                a(f"buffer_load_dwordx4 {r4(64+4*q)}, v9, s[80:83], s43 offen offset:{(q%4)*1024}")
                if q == 3: a("s_add_u32 s43, s43, 4096")
        a("s_waitcnt vmcnt(0)")
    a.label(L('fin'))
    if ts.on: a("s_waitcnt vmcnt(0)")
    if not cfg.get('tsc'): ts(7)
    ts.flush()
    a.label(L('fin2'))
    a.label(L('end'))
    a("s_endpgm")
    if cfg.get('lfirst', 1):
        pos = {i.text.strip()[:-1]: k for k, i in enumerate(a.items) if i.cls == 'label'}
        c0, l0, s0 = pos[L('compute')], pos[L('loader')], pos[L('spare')]
        a.items = a.items[:c0] + a.items[l0:s0] + a.items[c0:l0] + a.items[s0:]
    a.check_protected(list(range(4, 16)) + list(range(56, 62)))
    n = a.fix_hazards()
    return a, n
```
